```python
import torch

def _softmax(x, axis=-1):
    return torch.softmax(x, dim=axis)

def _gelu(x):
    return torch.nn.functional.gelu(x, approximate='tanh')

def _silu(x):
    return torch.nn.functional.silu(x)

def _sigmoid(x):
    return torch.sigmoid(x)

def _layernorm(x, axis=-1, eps=1e-05):
    m = x.mean(dim=axis, keepdim=True)
    v = x.var(dim=axis, keepdim=True, unbiased=False)
    return (x - m) / torch.sqrt(v + eps)

def _scatter_add(tgt, idx, src, axis=0):
    return tgt.clone().index_add_(axis, idx, src)

def _segment_sum(src, seg, n):
    out = torch.zeros((n,) + src.shape[1:], dtype=src.dtype)
    return out.index_add_(0, seg, src)

def _pad(x, pw):
    flat = tuple((v for pair in reversed(pw) for v in pair))
    return torch.nn.functional.pad(x, flat)
kernel_name = 'adaLN_cond__spectral_fnet__dense_activation_relu__prompt'

def setup_inputs():

    _w = lambda a: (lambda t: t.to(torch.bfloat16) if t.is_floating_point() else t)(torch.as_tensor(a))

    def _A_setup():
        B, S, D = (1, 2048, 640)
        ns = torch.arange(S)[:, None] * torch.arange(S)[None, :]
        nd = torch.arange(D)[:, None] * torch.arange(D)[None, :]
        Ws_re = torch.cos(-2.0 * torch.pi * ns / S).to(float)
        Ws_im = torch.sin(-2.0 * torch.pi * ns / S).to(float)
        Wd_re = torch.cos(-2.0 * torch.pi * nd / D).to(float)
        Wd_im = torch.sin(-2.0 * torch.pi * nd / D).to(float)
        return {'x': _w((lambda *s: torch.randn(*s, dtype=torch.bfloat16) * 0.1)(B, S, D)), 'dft_seq_re': _w(Ws_re), 'dft_seq_im': _w(Ws_im), 'dft_hid_re': _w(Wd_re), 'dft_hid_im': _w(Wd_im)}
    _A_in = _A_setup()

    def _B_setup():
        B, S, D, Dff = (1, 2048, 640, 1536)
        return {'x': _w((lambda *s: torch.randn(*s, dtype=torch.bfloat16) * 0.1)(B, S, D)), 'w1': _w((lambda *s: torch.randn(*s, dtype=torch.bfloat16) * 3.2)(D, Dff)), 'w2': _w((lambda *s: torch.randn(*s, dtype=torch.bfloat16) * 3.2)(Dff, D))}
    _B_in = _B_setup()
    return {'A_x': _A_in['x'], 'A_dft_seq_re': _A_in['dft_seq_re'], 'A_dft_seq_im': _A_in['dft_seq_im'], 'A_dft_hid_re': _A_in['dft_hid_re'], 'A_dft_hid_im': _A_in['dft_hid_im'], 'B_x': _B_in['x'], 'B_w1': _B_in['w1'], 'B_w2': _B_in['w2'], 'c': _w((lambda *s: torch.randn(*s, dtype=torch.bfloat16) * 0.4)(1, 640) * 8.0), 'w_mod': _w((lambda *s: torch.randn(*s, dtype=torch.bfloat16) * 0.4)(640, 6 * 640) * 640 ** (-0.5) * 8.0)}

def reference(A_x, A_dft_seq_re, A_dft_seq_im, A_dft_hid_re, A_dft_hid_im, B_x, B_w1, B_w2, c, w_mod):

    def _A_ref(x, dft_seq_re, dft_seq_im, dft_hid_re, dft_hid_im):
        a = torch.einsum('bsd,ed->bse', x, dft_hid_re)
        b = torch.einsum('bsd,ed->bse', x, dft_hid_im)
        y = torch.einsum('ts,bse->bte', dft_seq_re, a) - torch.einsum('ts,bse->bte', dft_seq_im, b)
        return y

    def _B_ref(x, w1, w2):
        h = torch.einsum('bsd,df->bsf', x, w1)
        zero = torch.zeros_like(h)
        h = torch.maximum(h, zero)
        return torch.einsum('bsf,fd->bsd', h, w2)
    x = A_x
    mod = (_silu(c) @ w_mod).reshape(c.shape[0], 6, 1, -1)
    sa, ca, ga, sb, cb, gb = (mod[:, 0].clone(), mod[:, 1].clone(), mod[:, 2].clone(), mod[:, 3].clone(), mod[:, 4].clone(), mod[:, 5].clone())
    h = _layernorm(x, axis=-1) * (1 + ca) + sa
    x = x + ga * _A_ref(h, A_dft_seq_re, A_dft_seq_im, A_dft_hid_re, A_dft_hid_im)
    h = _layernorm(x, axis=-1) * (1 + cb) + sb
    x = x + gb * _B_ref(h, B_w1, B_w2)
    return x
```

```python
import sys

NAME = "adaLN_cond__spectral_fnet__dense_activation_relu__prompt"
S_LEN, D, DFF = 2048, 640, 1536

KA = dict(x=0, seq_re=8, seq_im=16, hid_re=24, hid_im=32, bx=40, w1=48, w2=56, c=64, wmod=72,
          out=80, dbg=88, ws=96)

def _al(x, a=0x10000):
    return (x + a - 1) // a * a
WS = {}
_o = 0
for nm, sz in [("mod", 3840 * 2), ("w1t", DFF * D * 2), ("w2t", D * DFF * 2), ("h", S_LEN * D * 2),
               ("abt", 2 * D * S_LEN * 2), ("y", 2 * S_LEN * D * 2), ("x1", S_LEN * D * 2),
               ("h2", S_LEN * D * 2), ("h1", S_LEN * DFF * 2)]:
    WS[nm] = (_o, sz)
    _o = _al(_o + sz)


class Asm:
    def __init__(self):
        self.lines = []

    def __call__(self, s):
        self.lines.append("    " + s)

    def label(self, s):
        self.lines.append(s + ":")

    def raw(self, s):
        self.lines.append(s)

    def text(self):
        return "\n".join(self.lines) + "\n"


def srd(a, sreg, base_lo, base_hi, nbytes, add=0):
    if add:
        a(f"s_add_u32 s{sreg}, s{base_lo}, {add}")
        a(f"s_addc_u32 s{sreg+1}, s{base_hi}, 0")
    else:
        a(f"s_mov_b32 s{sreg}, s{base_lo}")
        a(f"s_mov_b32 s{sreg+1}, s{base_hi}")
    a(f"s_mov_b32 s{sreg+2}, {nbytes}")
    a(f"s_mov_b32 s{sreg+3}, 0x00020000")


def srd_add(a, sreg, soff):
    a(f"s_add_u32 s{sreg}, s{sreg}, s{soff}")
    a(f"s_addc_u32 s{sreg+1}, s{sreg+1}, 0")


def kernel_header(a, label):
    a.raw(f".globl {label}")
    a.raw(".p2align 8")
    a.raw(f".type {label},@function")
    a.label(label)


def kernel_desc(label, nvgpr, nsgpr, accum):
    return f""".amdhsa_kernel {label}
  .amdhsa_next_free_vgpr {nvgpr}
  .amdhsa_next_free_sgpr {nsgpr}
  .amdhsa_accum_offset {accum}
  .amdhsa_group_segment_fixed_size 0
  .amdhsa_kernarg_size 104
  .amdhsa_user_sgpr_count 2
  .amdhsa_user_sgpr_kernarg_segment_ptr 1
  .amdhsa_system_sgpr_workgroup_id_x 1
  .amdhsa_float_denorm_mode_32 3
  .amdhsa_float_denorm_mode_16_64 3
.end_amdhsa_kernel
"""


def unpack(a, lo, hi, src):
    a(f"v_lshlrev_b32 v{lo}, 16, v{src}")
    a(f"v_and_b32 v{hi}, 0xffff0000, v{src}")


def prep_kernel(a):
    L = "prep_kernel"
    kernel_header(a, L)
    a("s_cmp_ge_u32 s2, 600")
    a(f"s_cbranch_scc1 {L}_end")
    a(f"s_load_dwordx2 s[4:5], s[0:1], {KA['ws']}")
    a(f"s_load_dwordx4 s[28:31], s[0:1], {KA['w1']}")
    a(f"s_load_dwordx4 s[32:35], s[0:1], {KA['c']}")
    a("s_waitcnt lgkmcnt(0)")
    a("s_cmp_ge_u32 s2, 120")
    a(f"s_cbranch_scc1 {L}_tr")
    a("s_and_b32 s6, s2, 7")
    a("s_mul_i32 s6, s6, 15")
    a("s_lshr_b32 s7, s2, 3")
    a("s_add_u32 s6, s6, s7")
    srd(a, 8, 34, 35, 640 * 3840 * 2)
    srd(a, 12, 32, 33, 640 * 2)
    srd(a, 16, 4, 5, WS["mod"][1], WS["mod"][0])
    a("v_lshrrev_b32 v1, 2, v0")
    a("v_and_b32 v2, 3, v0")
    a("s_movk_i32 s20, 7680")
    a("v_mul_lo_u32 v3, v1, s20")
    a("v_lshl_add_u32 v3, v2, 4, v3")
    a("s_lshl_b32 s21, s6, 6")
    a("v_add_u32 v3, s21, v3")
    a("v_lshlrev_b32 v4, 1, v1")
    for p in range(10):
        a(f"buffer_load_ushort v{10+p}, v4, s[12:15], 0 offen offset:{p*128}")
    for p in range(10):
        a(f"s_mov_b32 s22, {p*64*7680}")
        a(f"buffer_load_dwordx4 v[{20+4*p}:{23+4*p}], v3, s[8:11], s22 offen")
    for k in range(8):
        a(f"v_mov_b32 v{60+k}, 0")
    a("s_waitcnt vmcnt(10)")
    a("s_mov_b32 s23, 0xbfb8aa3b")
    for p in range(10):
        a(f"v_lshlrev_b32 v{10+p}, 16, v{10+p}")
        a(f"v_mul_f32 v70, s23, v{10+p}")
        a("v_exp_f32 v70, v70")
        a("s_nop 0")
        a("v_add_f32 v70, 1.0, v70")
        a("v_rcp_f32 v70, v70")
        a("s_nop 0")
        a(f"v_mul_f32 v70, v{10+p}, v70")
        a("v_cvt_pk_bf16_f32 v70, v70, v70")
        a(f"v_lshlrev_b32 v{10+p}, 16, v70")
    for p in range(10):
        a(f"s_waitcnt vmcnt({9-p})")
        for q in range(4):
            unpack(a, 70, 71, 20 + 4 * p + q)
            a(f"v_fmac_f32 v{60+2*q}, v{10+p}, v70")
            a(f"v_fmac_f32 v{61+2*q}, v{10+p}, v71")
    a("v_lshlrev_b32 v5, 7, v1")
    a("v_lshl_add_u32 v5, v2, 5, v5")
    a("ds_write_b128 v5, v[60:63]")
    a("ds_write_b128 v5, v[64:67] offset:16")
    a("s_waitcnt lgkmcnt(0)")
    a("s_barrier")
    a("v_and_b32 v6, 31, v0")
    a("v_lshrrev_b32 v7, 5, v0")
    a("v_lshlrev_b32 v8, 10, v7")
    a("v_lshl_add_u32 v8, v6, 2, v8")
    for i in range(8):
        a(f"ds_read_b32 v{20+i}, v8 offset:{i*128}")
    a("s_waitcnt lgkmcnt(0)")
    a("v_add_f32 v20, v20, v21")
    a("v_add_f32 v22, v22, v23")
    a("v_add_f32 v24, v24, v25")
    a("v_add_f32 v26, v26, v27")
    a("v_add_f32 v20, v20, v22")
    a("v_add_f32 v24, v24, v26")
    a("v_add_f32 v20, v20, v24")
    a("v_lshlrev_b32 v9, 2, v0")
    a("ds_write_b32 v9, v20 offset:8192")
    a("s_waitcnt lgkmcnt(0)")
    a("s_barrier")
    a("v_lshlrev_b32 v9, 2, v6")
    for i in range(8):
        a(f"ds_read_b32 v{20+i}, v9 offset:{8192+i*128}")
    a("s_waitcnt lgkmcnt(0)")
    a("v_add_f32 v20, v20, v21")
    a("v_add_f32 v22, v22, v23")
    a("v_add_f32 v24, v24, v25")
    a("v_add_f32 v26, v26, v27")
    a("v_add_f32 v20, v20, v22")
    a("v_add_f32 v24, v24, v26")
    a("v_add_f32 v20, v20, v24")
    a("v_cvt_pk_bf16_f32 v20, v20, v20")
    a("v_lshlrev_b32 v9, 1, v6")
    a("v_add_u32 v9, s21, v9")
    a("v_cmp_gt_u32 vcc, 32, v0")
    a("s_and_saveexec_b64 s[24:25], vcc")
    a(f"s_cbranch_execz {L}_end")
    a("buffer_store_short v20, v9, s[16:19], 0 offen")
    a(f"s_branch {L}_end")
    a.label(f"{L}_tr")
    a("s_sub_u32 s6, s2, 120")
    a("s_cmp_ge_u32 s6, 240")
    a(f"s_cbranch_scc1 {L}_tr2")
    a("s_mul_i32 s7, s6, 2731")
    a("s_lshr_b32 s7, s7, 16")
    a("s_mul_i32 s20, s7, 24")
    a("s_sub_u32 s20, s6, s20")
    srd(a, 8, 28, 29, 640 * 1536 * 2)
    srd(a, 12, 4, 5, WS["w1t"][1], WS["w1t"][0])
    a("s_movk_i32 s21, 3072")
    a("s_movk_i32 s22, 1280")
    a(f"s_branch {L}_trgo")
    a.label(f"{L}_tr2")
    a("s_sub_u32 s6, s6, 240")
    a("s_mul_i32 s7, s6, 6554")
    a("s_lshr_b32 s7, s7, 16")
    a("s_mul_i32 s20, s7, 10")
    a("s_sub_u32 s20, s6, s20")
    srd(a, 8, 30, 31, 640 * 1536 * 2)
    srd(a, 12, 4, 5, WS["w2t"][1], WS["w2t"][0])
    a("s_movk_i32 s21, 1280")
    a("s_movk_i32 s22, 3072")
    a.label(f"{L}_trgo")
    a("v_lshrrev_b32 v1, 3, v0")
    a("v_and_b32 v2, 7, v0")
    a("s_lshl_b32 s23, s7, 6")
    a("v_add_u32 v3, s23, v1")
    a("v_mul_lo_u32 v3, v3, s21")
    a("v_lshl_add_u32 v3, v2, 4, v3")
    a("s_lshl_b32 s24, s20, 7")
    a("v_add_u32 v3, s24, v3")
    a("s_lshl_b32 s25, s21, 5")
    a("buffer_load_dwordx4 v[8:11], v3, s[8:11], 0 offen")
    a("buffer_load_dwordx4 v[12:15], v3, s[8:11], s25 offen")
    a("s_movk_i32 s26, 1152")
    a("v_mul_lo_u32 v4, v2, s26")
    a("v_lshl_add_u32 v4, v1, 1, v4")
    a("s_waitcnt vmcnt(1)")
    for q in range(4):
        a(f"ds_write_b16 v4, v{8+q} offset:{(2*q)*144}")
        a(f"ds_write_b16_d16_hi v4, v{8+q} offset:{(2*q+1)*144}")
    a("s_waitcnt vmcnt(0)")
    for q in range(4):
        a(f"ds_write_b16 v4, v{12+q} offset:{(2*q)*144+64}")
        a(f"ds_write_b16_d16_hi v4, v{12+q} offset:{(2*q+1)*144+64}")
    a("s_waitcnt lgkmcnt(0)")
    a("s_barrier")
    a("s_movk_i32 s26, 144")
    a("v_mul_lo_u32 v5, v1, s26")
    a("v_lshl_add_u32 v5, v2, 4, v5")
    a("ds_read_b128 v[8:11], v5")
    a(f"ds_read_b128 v[12:15], v5 offset:{32*144}")
    a("s_lshl_b32 s23, s20, 6")
    a("v_add_u32 v6, s23, v1")
    a("v_mul_lo_u32 v6, v6, s22")
    a("v_lshl_add_u32 v6, v2, 4, v6")
    a("s_lshl_b32 s24, s7, 7")
    a("v_add_u32 v6, s24, v6")
    a("s_lshl_b32 s25, s22, 5")
    a("s_waitcnt lgkmcnt(1)")
    a("buffer_store_dwordx4 v[8:11], v6, s[12:15], 0 offen")
    a("s_waitcnt lgkmcnt(0)")
    a("buffer_store_dwordx4 v[12:15], v6, s[12:15], s25 offen")
    a.label(f"{L}_end")
    a("s_endpgm")
    return kernel_desc(L, 72, 40, 72)


def reduce32(a, v, t):
    a("s_nop 1")
    a(f"v_add_f32_dpp v{t}, v{v}, v{v} quad_perm:[1,0,3,2] row_mask:0xf bank_mask:0xf")
    a("s_nop 1")
    a(f"v_add_f32_dpp v{v}, v{t}, v{t} quad_perm:[2,3,0,1] row_mask:0xf bank_mask:0xf")
    a("s_nop 1")
    a(f"v_add_f32_dpp v{t}, v{v}, v{v} row_half_mirror row_mask:0xf bank_mask:0xf")
    a("s_nop 1")
    a(f"v_add_f32_dpp v{v}, v{t}, v{t} row_mirror row_mask:0xf bank_mask:0xf")
    a(f"ds_swizzle_b32 v{t}, v{v} offset:0x401F")
    a("s_waitcnt lgkmcnt(0)")
    a(f"v_add_f32 v{v}, v{v}, v{t}")


def ln_core(a, X, C1, SH, OUT, T):
    s, t, m, r = T, T + 1, T + 2, T + 3
    a(f"v_add_f32 v{s}, v{X}, v{X+1}")
    a(f"v_add_f32 v{t}, v{X+2}, v{X+3}")
    for k in range(4, 20, 2):
        a(f"v_add_f32 v{s}, v{s}, v{X+k}")
        a(f"v_add_f32 v{t}, v{t}, v{X+k+1}")
    a(f"v_add_f32 v{s}, v{s}, v{t}")
    reduce32(a, s, t)
    a(f"v_mul_f32 v{m}, 0x3acccccd, v{s}")
    a(f"v_sub_f32 v{t}, v{X}, v{m}")
    a(f"v_mul_f32 v{s}, v{t}, v{t}")
    a(f"v_sub_f32 v{t}, v{X+1}, v{m}")
    a(f"v_mul_f32 v{r}, v{t}, v{t}")
    for k in range(2, 20, 2):
        a(f"v_sub_f32 v{t}, v{X+k}, v{m}")
        a(f"v_fmac_f32 v{s}, v{t}, v{t}")
        a(f"v_sub_f32 v{t}, v{X+k+1}, v{m}")
        a(f"v_fmac_f32 v{r}, v{t}, v{t}")
    a(f"v_add_f32 v{s}, v{s}, v{r}")
    reduce32(a, s, t)
    a(f"v_mul_f32 v{s}, 0x3acccccd, v{s}")
    a(f"v_cvt_pk_bf16_f32 v{t}, v{m}, v{s}")
    unpack(a, m, s, t)
    a(f"v_add_f32 v{s}, 0x3727c5ac, v{s}")
    a(f"v_cvt_pk_bf16_f32 v{t}, v{s}, v{s}")
    a(f"v_lshlrev_b32 v{s}, 16, v{t}")
    a(f"v_sqrt_f32 v{s}, v{s}")
    a("s_nop 0")
    a(f"v_cvt_pk_bf16_f32 v{t}, v{s}, v{s}")
    a(f"v_lshlrev_b32 v{s}, 16, v{t}")
    a(f"v_rcp_f32 v{r}, v{s}")
    a("s_nop 0")
    u, w = T + 4, T + 5
    for k in range(0, 20, 2):
        a(f"v_sub_f32 v{u}, v{X+k}, v{m}")
        a(f"v_sub_f32 v{w}, v{X+k+1}, v{m}")
        a(f"v_cvt_pk_bf16_f32 v{t}, v{u}, v{w}")
        unpack(a, u, w, t)
        a(f"v_mul_f32 v{u}, v{u}, v{r}")
        a(f"v_mul_f32 v{w}, v{w}, v{r}")
        a(f"v_cvt_pk_bf16_f32 v{t}, v{u}, v{w}")
        unpack(a, u, w, t)
        a(f"v_mul_f32 v{u}, v{u}, v{C1+k}")
        a(f"v_mul_f32 v{w}, v{w}, v{C1+k+1}")
        a(f"v_cvt_pk_bf16_f32 v{t}, v{u}, v{w}")
        unpack(a, u, w, t)
        a(f"v_add_f32 v{u}, v{u}, v{SH+k}")
        a(f"v_add_f32 v{w}, v{w}, v{SH+k+1}")
        a(f"v_cvt_pk_bf16_f32 v{OUT+k//2}, v{u}, v{w}")


def ln_kernel(a, second):
    L = "ln2_kernel" if second else "ln1_kernel"
    kernel_header(a, L)
    a("s_cmp_ge_u32 s2, 256")
    a(f"s_cbranch_scc1 {L}_end")
    a(f"s_load_dwordx2 s[4:5], s[0:1], {KA['ws']}")
    a(f"s_load_dwordx2 s[6:7], s[0:1], {KA['x']}")
    a("s_waitcnt lgkmcnt(0)")
    NB = S_LEN * D * 2
    srd(a, 8, 6, 7, NB)
    srd(a, 12, 4, 5, WS["mod"][1], WS["mod"][0])
    srd(a, 16, 4, 5, NB, WS["h2" if second else "h"][0])
    if second:
        srd(a, 20, 4, 5, NB, WS["y"][0])
        srd(a, 24, 4, 5, NB, WS["y"][0] + NB)
        srd(a, 28, 4, 5, NB, WS["x1"][0])
    a("v_lshrrev_b32 v1, 5, v0")
    a("s_lshl_b32 s3, s2, 3")
    a("v_add_u32 v1, s3, v1")
    a("v_and_b32 v2, 31, v0")
    a("v_lshlrev_b32 v2, 3, v2")
    a("s_movk_i32 s3, 1280")
    a("v_mul_lo_u32 v1, v1, s3")
    a("v_add_u32 v1, v1, v2")
    for i in range(5):
        a(f"buffer_load_dwordx2 v[{10+2*i}:{11+2*i}], v1, s[8:11], 0 offen offset:{i*256}")
    if second:
        for i in range(5):
            a(f"buffer_load_dwordx2 v[{20+2*i}:{21+2*i}], v1, s[20:23], 0 offen offset:{i*256}")
        for i in range(5):
            a(f"buffer_load_dwordx2 v[{30+2*i}:{31+2*i}], v1, s[24:27], 0 offen offset:{i*256}")
        for i in range(5):
            a(f"buffer_load_dwordx2 v[{40+2*i}:{41+2*i}], v2, s[12:15], 0 offen offset:{2*1280+i*256}")
    coff = (4 if second else 1) * 1280
    soff = (3 if second else 0) * 1280
    a(f"s_movk_i32 s3, {coff}")
    for i in range(5):
        a(f"buffer_load_dwordx2 v[{50+2*i}:{51+2*i}], v2, s[12:15], s3 offen offset:{i*256}")
    a(f"s_movk_i32 s32, {soff}")
    for i in range(5):
        a(f"buffer_load_dwordx2 v[{60+2*i}:{61+2*i}], v2, s[12:15], s32 offen offset:{i*256}")
    X, C1, SH, OUT, T = 70, 90, 110, 130, 140
    if second:
        a("s_waitcnt vmcnt(10)")
        for k in range(10):
            unpack(a, T, T + 1, 20 + k)
            unpack(a, T + 2, T + 3, 30 + k)
            a(f"v_sub_f32 v{T}, v{T}, v{T+2}")
            a(f"v_sub_f32 v{T+1}, v{T+1}, v{T+3}")
            a(f"v_cvt_pk_bf16_f32 v{T+4}, v{T}, v{T+1}")
            unpack(a, T, T + 1, T + 4)
            unpack(a, T + 2, T + 3, 40 + k)
            a(f"v_mul_f32 v{T}, v{T}, v{T+2}")
            a(f"v_mul_f32 v{T+1}, v{T+1}, v{T+3}")
            a(f"v_cvt_pk_bf16_f32 v{T+4}, v{T}, v{T+1}")
            unpack(a, T, T + 1, T + 4)
            unpack(a, T + 2, T + 3, 10 + k)
            a(f"v_add_f32 v{T}, v{T}, v{T+2}")
            a(f"v_add_f32 v{T+1}, v{T+1}, v{T+3}")
            a(f"v_cvt_pk_bf16_f32 v{20+k}, v{T}, v{T+1}")
            unpack(a, X + 2 * k, X + 2 * k + 1, 20 + k)
        for i in range(5):
            a(f"buffer_store_dwordx2 v[{20+2*i}:{21+2*i}], v1, s[28:31], 0 offen offset:{i*256}")
        a("s_waitcnt vmcnt(5)")
    else:
        a("s_waitcnt vmcnt(10)")
        for k in range(10):
            unpack(a, X + 2 * k, X + 2 * k + 1, 10 + k)
        a("s_waitcnt vmcnt(0)")
    for k in range(10):
        unpack(a, T, T + 1, 50 + k)
        a(f"v_add_f32 v{T}, 1.0, v{T}")
        a(f"v_add_f32 v{T+1}, 1.0, v{T+1}")
        a(f"v_cvt_pk_bf16_f32 v{T+2}, v{T}, v{T+1}")
        unpack(a, C1 + 2 * k, C1 + 2 * k + 1, T + 2)
        unpack(a, SH + 2 * k, SH + 2 * k + 1, 60 + k)
    ln_core(a, X, C1, SH, OUT, T)
    for i in range(5):
        a(f"buffer_store_dwordx2 v[{OUT+2*i}:{OUT+1+2*i}], v1, s[16:19], 0 offen offset:{i*256}")
    a.label(f"{L}_end")
    a("s_endpgm")
    return kernel_desc(L, 152, 40, 152)


def fsw(n):
    return (n & 15) ^ ((n >> 1) & 12)


def check_conflicts(BS, paired):
    groups = [[0, 1, 2, 3, 12, 13, 14, 15] + list(range(20, 28)),
              list(range(4, 12)) + [16, 17, 18, 19, 28, 29, 30, 31]]
    groups += [[x + 32 for x in g] for g in groups]
    nb = BS // 16
    for b in range(nb):
        for j in range(4):
            for g in groups:
                qs = set()
                for l in g:
                    n = srow(BS, paired, b, l & 15)
                    addr = n * 256 + ((4 * j) ^ (l >> 4) ^ fsw(n)) * 16
                    qs.add((addr // 16) % 16)
                assert len(qs) == 16, (BS, paired, b, j)


def srow(BS, paired, b, i):
    nb = BS // 16
    if paired and not (b == nb - 1 and nb % 2 == 1):
        return 32 * (b >> 1) + 8 * (i >> 2) + 4 * (b & 1) + (i & 3)
    return 16 * b + i


def gemm_kernel(a, L, K, BS, ndimS, ksplit, depth, setup, epilogue, pre_epi=None, nwg=256):
    check_conflicts(BS, ndimS)
    kernel_header(a, L)
    a(f"s_cmp_ge_u32 s2, {nwg}")
    a(f"s_cbranch_scc1 {L}_end")
    a("v_lshrrev_b32 v1, 6, v0")
    a("s_nop 0")
    a("v_readfirstlane_b32 s40, v1")
    a("v_and_b32 v1, 63, v0")
    a("v_and_b32 v2, 15, v1")
    a("v_lshrrev_b32 v3, 4, v1")
    ldS, ldV = setup(a)
    nsb = BS // 16
    nst = K // 128
    spw = 4 // ksplit
    nq = BS // 16
    slotsz = BS * 256
    D_ = min(depth, nst)
    a("s_lshl_b32 s41, s40, 10")
    if ksplit == 2:
        a("s_and_b32 s42, s40, 1")
        a("s_lshr_b32 s43, s40, 1")
    else:
        a("s_mov_b32 s42, s40")
        a("s_mov_b32 s43, 0")
    a(f"s_mul_i32 s44, s42, {32*ldV}")
    srd_add(a, 12, 44)
    vDMA = 8
    vV = vDMA + nq
    vSA = vV + 2
    vT = vSA + nsb * spw
    vF = (vT + 4 + 3) // 4 * 4
    vR = vF + 2 * nsb * 4
    vEnd = vR + D_ * spw * 8
    vE = vEnd
    vTot = vE + (16 if pre_epi else 0)
    accum = (vTot + 3) // 4 * 4
    nacc = nsb * 2 * 4
    a("s_lshl_b32 s45, s40, 2")
    for i in range(nq):
        t0, t1 = vT, vT + 1
        a(f"v_add_u32 v{t0}, s45, v3")
        if i:
            a(f"v_add_u32 v{t0}, {16*i}, v{t0}")
        a(f"v_lshrrev_b32 v{t1}, 1, v{t0}")
        a(f"v_and_b32 v{t1}, 12, v{t1}")
        a(f"v_xor_b32 v{t1}, v{t1}, v2")
        a(f"v_and_b32 v{vT+2}, 15, v{t0}")
        a(f"v_xor_b32 v{t1}, v{t1}, v{vT+2}")
        a(f"s_movk_i32 s46, {ldS}")
        a(f"v_mul_lo_u32 v{t0}, v{t0}, s46")
        a(f"v_lshl_add_u32 v{vDMA+i}, v{t1}, 4, v{t0}")
    for vb in range(2):
        t0 = vT
        if ndimS:
            a(f"v_add_u32 v{t0}, {16*vb}, v2")
        else:
            a(f"v_and_b32 v{t0}, 12, v2")
            a(f"v_lshlrev_b32 v{t0}, 1, v{t0}")
            a(f"v_and_b32 v{vT+1}, 3, v2")
            a(f"v_or_b32 v{t0}, v{t0}, v{vT+1}")
            if vb:
                a(f"v_add_u32 v{t0}, 4, v{t0}")
        a(f"s_movk_i32 s46, {ldV}")
        a(f"v_mul_lo_u32 v{t0}, v{t0}, s46")
        a(f"v_lshl_add_u32 v{vV+vb}, v3, 4, v{t0}")
        if ksplit == 2:
            a("s_lshl_b32 s46, s43, 7")
            a(f"v_add_u32 v{vV+vb}, s46, v{vV+vb}")
    a("s_lshl_b32 s47, s43, 3")
    for b in range(nsb):
        t0, t1 = vT, vT + 1
        if srow(BS, ndimS, b, 5) != 16 * b + 5:
            a(f"v_and_b32 v{t0}, 12, v2")
            a(f"v_lshlrev_b32 v{t0}, 1, v{t0}")
            a(f"v_and_b32 v{t1}, 3, v2")
            a(f"v_or_b32 v{t0}, v{t0}, v{t1}")
            a(f"v_add_u32 v{t0}, {32*(b>>1)+4*(b&1)}, v{t0}")
        else:
            a(f"v_add_u32 v{t0}, {16*b}, v2")
        a(f"v_lshrrev_b32 v{t1}, 1, v{t0}")
        a(f"v_and_b32 v{t1}, 12, v{t1}")
        a(f"v_xor_b32 v{t1}, v{t1}, v3")
        a(f"v_and_b32 v{vT+2}, 15, v{t0}")
        a(f"v_xor_b32 v{t1}, v{t1}, v{vT+2}")
        a(f"v_xor_b32 v{t1}, s47, v{t1}")
        a(f"v_lshlrev_b32 v{t0}, 8, v{t0}")
        for j in range(spw):
            a(f"v_xor_b32 v{vT+2}, {4*j}, v{t1}")
            a(f"v_lshl_add_u32 v{vSA+b*spw+j}, v{vT+2}, 4, v{t0}")
    q = []

    def vm_wait_for(tags):
        last = -1
        for idx, t in enumerate(q):
            if t in tags:
                last = idx
        n = len(q) - 1 - last
        return min(n, 63)

    if pre_epi:
        n = pre_epi(a, vE)
        q += ["E"] * n

    def issue_S(s):
        slot = s % D_
        a(f"s_movk_i32 s46, {s*256}")
        for i in range(nq):
            a(f"s_add_u32 m0, s41, {slot*slotsz + i*4096}")
            a("s_nop 0")
            a(f"buffer_load_dwordx4 v{vDMA+i}, s[8:11], s46 offen lds")
            q.append(("S", s))

    def vreg(s, j, vb):
        return vR + ((s % D_) * spw + j) * 8 + vb * 4

    def issue_V(s):
        for j in range(spw):
            for vb in range(2):
                r = vreg(s, j, vb)
                a(f"buffer_load_dwordx4 v[{r}:{r+3}], v{vV+vb}, s[12:15], 0 offen offset:{s*256+j*64}")
                q.append(("V", s))

    bias = [0]

    def frag_reads(s, j, buf):
        slot = s % D_
        base = slot * slotsz - bias[0]
        if base + slotsz > 65536 + bias[0] * 0 and base > 65535 - 0:
            pass
        if base > 65535:
            for r in range(nsb * spw):
                a(f"v_add_u32 v{vSA+r}, 0x10000, v{vSA+r}")
            bias[0] += 65536
            base -= 65536
        assert 0 <= base <= 65535, base
        for b in range(nsb):
            r = vF + (buf * nsb + b) * 4
            a(f"ds_read_b128 v[{r}:{r+3}], v{vSA+b*spw+j} offset:{base}")

    def mfmas(s, j, buf, first):
        for b in range(nsb):
            for vb in range(2):
                ar = (b * 2 + vb) * 4
                sf = vF + (buf * nsb + b) * 4
                vf = vreg(s, j, vb)
                A, B = (sf, vf) if ndimS else (vf, sf)
                c = "0" if first else f"a[{ar}:{ar+3}]"
                a(f"v_mfma_f32_16x16x32_bf16 a[{ar}:{ar+3}], v[{A}:{A+3}], v[{B}:{B+3}], {c}")

    for s in range(D_):
        issue_S(s)
        issue_V(s)
    step = 0
    a(f"s_waitcnt vmcnt({vm_wait_for({('S',0),('V',0)})})")
    a("s_barrier")
    frag_reads(0, 0, 0)
    for s in range(nst):
        for j in range(spw):
            buf = step & 1
            last = j == spw - 1
            if not last:
                frag_reads(s, j + 1, buf ^ 1)
                a(f"s_waitcnt lgkmcnt({nsb})")
            else:
                if s + 1 < nst:
                    a(f"s_waitcnt vmcnt({vm_wait_for({('S',s+1),('V',s+1)})}) lgkmcnt(0)")
                    a("s_barrier")
                    if s + D_ < nst:
                        issue_S(s + D_)
                    frag_reads(s + 1, 0, buf ^ 1)
                else:
                    a("s_waitcnt lgkmcnt(0)")
            mfmas(s, j, buf, step == 0)
            if last and s + D_ < nst:
                issue_V(s + D_)
            step += 1
    a("s_nop 7")
    a("s_nop 7")
    if ksplit == 2:
        a("s_barrier")
        a("s_cmp_lt_u32 s40, 2")
        a(f"s_cbranch_scc1 {L}_red")
        a("v_lshlrev_b32 v4, 4, v1")
        a(f"s_mul_i32 s46, s42, {nsb*2*1024}")
        a("v_add_u32 v4, s46, v4")
        for k in range(nsb * 2):
            a(f"ds_write_b128 v4, a[{4*k}:{4*k+3}] offset:{k*1024}")
        a("s_waitcnt lgkmcnt(0)")
        a("s_barrier")
        a(f"s_branch {L}_end")
        a.label(f"{L}_red")
        a("s_barrier")
        a("v_lshlrev_b32 v4, 4, v1")
        a(f"s_mul_i32 s46, s42, {nsb*2*1024}")
        a("v_add_u32 v4, s46, v4")
        for k in range(nsb * 2):
            a(f"ds_read_b128 v[{vR+4*k}:{vR+4*k+3}], v4 offset:{k*1024}")
        a("s_waitcnt lgkmcnt(0)")
        for k in range(nsb * 2 * 4):
            a(f"v_accvgpr_read_b32 v{vF}, a{k}")
            a(f"v_add_f32 v{vR+k}, v{vR+k}, v{vF}")
    else:
        for k in range(nsb * 2 * 4):
            a(f"v_accvgpr_read_b32 v{vR+k}, a{k}")
    a("s_waitcnt vmcnt(0)")
    epilogue(a, vR, vF, vE, nsb)
    a.label(f"{L}_end")
    a("s_endpgm")
    lds = max(D_ * slotsz, (2 * nsb * 2 * 1024) if ksplit == 2 else 0)
    return kernel_desc(L, accum + nacc, 64, accum), lds


def load_ptrs(a, names):
    for k, nm in enumerate(names):
        a(f"s_load_dwordx2 s[{48+2*k}:{49+2*k}], s[0:1], {KA[nm]}")
    a("s_waitcnt lgkmcnt(0)")


def setup_A(a):
    load_ptrs(a, ["ws", "hid_re", "hid_im"])
    a("s_and_b32 s3, s2, 7")
    a("s_lshr_b32 s4, s2, 3")
    a("s_and_b32 s5, s3, 3")
    a("s_lshl_b32 s5, s5, 2")
    a("s_and_b32 s6, s4, 3")
    a("s_add_u32 s5, s5, s6")
    a("s_lshr_b32 s6, s3, 2")
    a("s_lshl_b32 s6, s6, 3")
    a("s_lshr_b32 s7, s4, 2")
    a("s_add_u32 s6, s6, s7")
    a("s_cmp_ge_u32 s5, 8")
    a("s_cselect_b32 s8, s52, s50")
    a("s_cselect_b32 s9, s53, s51")
    a(f"s_mov_b32 s10, {80*1280}")
    a("s_mov_b32 s11, 0x00020000")
    a("s_and_b32 s7, s5, 7")
    a(f"s_mul_i32 s7, s7, {80*1280}")
    srd_add(a, 8, 7)
    srd(a, 12, 48, 49, 32 * 1280, WS["h"][0])
    a(f"s_mul_i32 s7, s6, {128*1280}")
    srd_add(a, 12, 7)
    srd(a, 16, 48, 49, 80 * 4096, WS["abt"][0])
    a(f"s_mul_i32 s7, s5, {80*4096}")
    srd_add(a, 16, 7)
    a("s_lshl_b32 s7, s6, 8")
    srd_add(a, 16, 7)
    return 1280, 1280


def epi_A(a, vR, vF, vE, nsb):
    a("v_lshlrev_b32 v4, 12, v2")
    a("v_lshl_add_u32 v4, v3, 4, v4")
    a("s_lshl_b32 s46, s40, 6")
    a("v_add_u32 v4, s46, v4")
    for b in range(nsb):
        r = vR + b * 8
        o = vF + (b & 1) * 4
        for k in range(4):
            a(f"v_cvt_pk_bf16_f32 v{o+k}, v{r+2*k}, v{r+2*k+1}")
        a(f"s_mov_b32 s46, {b*16*4096}")
        a(f"buffer_store_dwordx4 v[{o}:{o+3}], v4, s[16:19], s46 offen")


def setup_B(a):
    load_ptrs(a, ["ws", "seq_re", "seq_im"])
    a("s_and_b32 s3, s2, 7")
    a("s_lshr_b32 s4, s2, 3")
    a("s_and_b32 s5, s3, 1")
    a("s_lshr_b32 s6, s3, 1")
    a("s_lshl_b32 s6, s6, 2")
    a("s_and_b32 s7, s4, 3")
    a("s_add_u32 s6, s6, s7")
    a("s_lshr_b32 s7, s4, 2")
    srd(a, 8, 48, 49, 80 * 4096, WS["abt"][0])
    a(f"s_mul_i32 s20, s5, {640*4096}")
    a(f"s_mul_i32 s21, s7, {80*4096}")
    a("s_add_u32 s20, s20, s21")
    srd_add(a, 8, 20)
    a("s_cmp_eq_u32 s5, 1")
    a("s_cselect_b32 s12, s52, s50")
    a("s_cselect_b32 s13, s53, s51")
    a(f"s_mov_b32 s14, {32*4096}")
    a("s_mov_b32 s15, 0x00020000")
    a(f"s_mul_i32 s20, s6, {128*4096}")
    srd_add(a, 12, 20)
    srd(a, 16, 48, 49, 128 * 1280, WS["y"][0])
    a(f"s_mul_i32 s20, s5, {2048*1280}")
    a(f"s_mul_i32 s21, s6, {128*1280}")
    a("s_add_u32 s20, s20, s21")
    a("s_mul_i32 s21, s7, 160")
    a("s_add_u32 s20, s20, s21")
    srd_add(a, 16, 20)
    return 4096, 4096


def make_epi_S(ldo, relu=False, resid=False):
    def epi(a, vR, vF, vE, nsb):
        a("s_lshl_b32 s46, s42, 5")
        a("v_add_u32 v4, s46, v2")
        a(f"s_movk_i32 s46, {ldo}")
        a("v_mul_lo_u32 v4, v4, s46")
        a("v_lshl_add_u32 v5, v3, 3, v4")
        a("v_lshl_add_u32 v4, v3, 4, v4")
        a(f"s_mov_b32 s47, {16*ldo}")
        if resid:
            pass
        cnt = 0
        for vb in range(2):
            so = "s47" if vb else "0"
            for p in range((nsb + 1) // 2):
                full = 2 * p + 1 < nsb
                nreg = 4 if full else 2
                o = vF + (cnt & 3) * 4
                cnt += 1
                if resid:
                    xr = vF + 16 + (cnt & 1) * 4
                    a(f"buffer_load_dwordx{nreg} v[{xr}:{xr+nreg-1}], v{4 if full else 5}, s[20:23], {so} offen offset:{p*64}")
                for k in range(nreg):
                    b = 2 * p + (k >> 1)
                    r = vR + (b * 2 + vb) * 4 + (k & 1) * 2
                    if relu:
                        a(f"v_max_f32 v{r}, 0, v{r}")
                        a(f"v_max_f32 v{r+1}, 0, v{r+1}")
                    a(f"v_cvt_pk_bf16_f32 v{o+k}, v{r}, v{r+1}")
                if resid:
                    t = vF + 24
                    a("s_waitcnt vmcnt(0)")
                    for k in range(nreg):
                        unpack(a, t, t + 1, o + k)
                        unpack(a, t + 2, t + 3, vE + p * 4 + k)
                        a(f"v_mul_f32 v{t}, v{t}, v{t+2}")
                        a(f"v_mul_f32 v{t+1}, v{t+1}, v{t+3}")
                        a(f"v_cvt_pk_bf16_f32 v{t+4}, v{t}, v{t+1}")
                        unpack(a, t, t + 1, t + 4)
                        unpack(a, t + 2, t + 3, xr + k)
                        a(f"v_add_f32 v{t}, v{t}, v{t+2}")
                        a(f"v_add_f32 v{t+1}, v{t+1}, v{t+3}")
                        a(f"v_cvt_pk_bf16_f32 v{o+k}, v{t}, v{t+1}")
                a(f"buffer_store_dwordx{nreg} v[{o}:{o+nreg-1}], v{4 if full else 5}, s[16:19], {so} offen offset:{p*64}")
    return epi


def setup_C(a):
    load_ptrs(a, ["ws"])
    a("s_and_b32 s3, s2, 7")
    a("s_lshr_b32 s4, s2, 3")
    a("s_and_b32 s5, s3, 3")
    a("s_lshl_b32 s5, s5, 2")
    a("s_and_b32 s6, s4, 3")
    a("s_add_u32 s5, s5, s6")
    a("s_lshr_b32 s6, s3, 2")
    a("s_lshl_b32 s6, s6, 3")
    a("s_lshr_b32 s7, s4, 2")
    a("s_add_u32 s6, s6, s7")
    srd(a, 8, 48, 49, 96 * 1280, WS["w1t"][0])
    a(f"s_mul_i32 s20, s5, {96*1280}")
    srd_add(a, 8, 20)
    srd(a, 12, 48, 49, 32 * 1280, WS["h2"][0])
    a(f"s_mul_i32 s20, s6, {128*1280}")
    srd_add(a, 12, 20)
    srd(a, 16, 48, 49, 128 * 3072, WS["h1"][0])
    a(f"s_mul_i32 s20, s6, {128*3072}")
    a("s_mul_i32 s21, s5, 192")
    a("s_add_u32 s20, s20, s21")
    srd_add(a, 16, 20)
    return 1280, 1280


def setup_D(a):
    load_ptrs(a, ["ws", "out"])
    a("s_and_b32 s3, s2, 7")
    a("s_lshr_b32 s4, s2, 3")
    a("s_and_b32 s5, s3, 1")
    a("s_lshl_b32 s5, s5, 2")
    a("s_and_b32 s6, s4, 3")
    a("s_add_u32 s5, s5, s6")
    a("s_lshr_b32 s6, s3, 1")
    a("s_lshl_b32 s6, s6, 3")
    a("s_lshr_b32 s7, s4, 2")
    a("s_add_u32 s6, s6, s7")
    srd(a, 8, 48, 49, 80 * 3072, WS["w2t"][0])
    a(f"s_mul_i32 s20, s5, {80*3072}")
    srd_add(a, 8, 20)
    srd(a, 12, 48, 49, 32 * 3072, WS["h1"][0])
    a(f"s_mul_i32 s20, s6, {64*3072}")
    srd_add(a, 12, 20)
    a(f"s_mul_i32 s28, s6, {64*1280}")
    a("s_mul_i32 s29, s5, 160")
    a("s_add_u32 s30, s28, s29")
    srd(a, 16, 50, 51, 64 * 1280 - 0)
    srd_add(a, 16, 30)
    srd(a, 20, 48, 49, 64 * 1280, WS["x1"][0])
    srd_add(a, 20, 30)
    srd(a, 24, 48, 49, 160, WS["mod"][0] + 5 * 1280)
    srd_add(a, 24, 29)
    return 3072, 3072


def pre_epi_D(a, vE):
    a("v_lshlrev_b32 v4, 4, v3")
    a("v_lshlrev_b32 v5, 3, v3")
    a(f"buffer_load_dwordx4 v[{vE}:{vE+3}], v4, s[24:27], 0 offen")
    a(f"buffer_load_dwordx4 v[{vE+4}:{vE+7}], v4, s[24:27], 0 offen offset:64")
    a(f"buffer_load_dwordx2 v[{vE+8}:{vE+9}], v5, s[24:27], 0 offen offset:128")
    return 3


def main():
    a = Asm()
    descs = []
    launches = []
    descs.append(prep_kernel(a)); launches.append(("prep_kernel", 600, 256, 10240))
    descs.append(ln_kernel(a, False)); launches.append(("ln1_kernel", 256, 256, 0))
    d, lds = gemm_kernel(a, "gemma_kernel", 640, 80, False, 1, 5, setup_A, epi_A)
    descs.append(d); launches.append(("gemma_kernel", 256, 256, lds))
    d, lds = gemm_kernel(a, "gemmb_kernel", 2048, 80, True, 1, 4, setup_B, make_epi_S(1280))
    descs.append(d); launches.append(("gemmb_kernel", 256, 256, lds))
    descs.append(ln_kernel(a, True)); launches.append(("ln2_kernel", 256, 256, 0))
    d, lds = gemm_kernel(a, "gemmc_kernel", 640, 96, True, 1, 5, setup_C, make_epi_S(3072, relu=True))
    descs.append(d); launches.append(("gemmc_kernel", 256, 256, lds))
    d, lds = gemm_kernel(a, "gemmd_kernel", 1536, 80, True, 2, 4, setup_D, make_epi_S(1280, resid=True),
                         pre_epi=pre_epi_D)
    descs.append(d); launches.append(("gemmd_kernel", 256, 256, lds))

    hdr = open(f"cdna_kernels/{NAME}.s.ref").read().split("\n")
    out = []
    for ln in hdr:
        if ln.startswith(";") and "@launch" not in ln and "Override" not in ln and "grid=ceil" not in ln:
            out.append(ln)
        elif not ln.startswith(";"):
            break
    for k, g, b, lds in launches:
        out.append(f"; @launch kernel={k} grid=({g},1,1) block=({b},1,1) lds={lds}")
    out.append('.amdgcn_target "amdgcn-amd-amdhsa--gfx950"')
    out.append(".text")
    txt = "\n".join(out) + "\n" + a.text()
    txt += '.section .rodata,"a"\n'
    for d in descs:
        txt += ".p2align 6\n" + d
    path = sys.argv[1] if len(sys.argv) > 1 else f"cdna_kernels/{NAME}.s"
    open(path, "w").write(txt)
    print("wrote", path, len(txt), "bytes")


if __name__ == "__main__":
    main()
```

```python
import sys

NAME = "adaLN_cond__spectral_fnet__dense_activation_relu__prompt"
S_LEN, D, DFF = 2048, 640, 1536

KA = dict(x=0, seq_re=8, seq_im=16, hid_re=24, hid_im=32, bx=40, w1=48, w2=56, c=64, wmod=72,
          out=80, dbg=88, ws=96)

def _al(x, a=0x10000):
    return (x + a - 1) // a * a
WS = {}
_o = 0
for nm, sz in [("mod", 3840 * 2), ("w1t", DFF * D * 2), ("w2t", D * DFF * 2), ("h", S_LEN * D * 2),
               ("abt", 2 * D * S_LEN * 2), ("y", 2 * S_LEN * D * 2), ("x1", S_LEN * D * 2),
               ("h2", S_LEN * D * 2), ("h1", S_LEN * DFF * 2)]:
    WS[nm] = (_o, sz)
    _o = _al(_o + sz)


class Asm:
    def __init__(self):
        self.lines = []

    def __call__(self, s):
        self.lines.append("    " + s)

    def label(self, s):
        self.lines.append(s + ":")

    def raw(self, s):
        self.lines.append(s)

    def text(self):
        return "\n".join(self.lines) + "\n"


def srd(a, sreg, base_lo, base_hi, nbytes, add=0):
    if add:
        a(f"s_add_u32 s{sreg}, s{base_lo}, {add}")
        a(f"s_addc_u32 s{sreg+1}, s{base_hi}, 0")
    else:
        a(f"s_mov_b32 s{sreg}, s{base_lo}")
        a(f"s_mov_b32 s{sreg+1}, s{base_hi}")
    a(f"s_mov_b32 s{sreg+2}, {nbytes}")
    a(f"s_mov_b32 s{sreg+3}, 0x00020000")


def srd_add(a, sreg, soff):
    a(f"s_add_u32 s{sreg}, s{sreg}, s{soff}")
    a(f"s_addc_u32 s{sreg+1}, s{sreg+1}, 0")


def kernel_header(a, label):
    a.raw(f".globl {label}")
    a.raw(".p2align 8")
    a.raw(f".type {label},@function")
    a.label(label)


def kernel_desc(label, nvgpr, nsgpr, accum):
    return f""".amdhsa_kernel {label}
  .amdhsa_next_free_vgpr {nvgpr}
  .amdhsa_next_free_sgpr {nsgpr}
  .amdhsa_accum_offset {accum}
  .amdhsa_group_segment_fixed_size 0
  .amdhsa_kernarg_size 104
  .amdhsa_user_sgpr_count 2
  .amdhsa_user_sgpr_kernarg_segment_ptr 1
  .amdhsa_system_sgpr_workgroup_id_x 1
  .amdhsa_float_denorm_mode_32 3
  .amdhsa_float_denorm_mode_16_64 3
.end_amdhsa_kernel
"""


def unpack(a, lo, hi, src):
    a(f"v_lshlrev_b32 v{lo}, 16, v{src}")
    a(f"v_and_b32 v{hi}, 0xffff0000, v{src}")


def prep_kernel(a):
    L = "prep_kernel"
    kernel_header(a, L)
    a("s_cmp_ge_u32 s2, 600")
    a(f"s_cbranch_scc1 {L}_end")
    a(f"s_load_dwordx2 s[4:5], s[0:1], {KA['ws']}")
    a(f"s_load_dwordx4 s[28:31], s[0:1], {KA['w1']}")
    a(f"s_load_dwordx4 s[32:35], s[0:1], {KA['c']}")
    a("s_waitcnt lgkmcnt(0)")
    a("s_cmp_ge_u32 s2, 120")
    a(f"s_cbranch_scc1 {L}_tr")
    a("s_and_b32 s6, s2, 7")
    a("s_mul_i32 s6, s6, 15")
    a("s_lshr_b32 s7, s2, 3")
    a("s_add_u32 s6, s6, s7")
    srd(a, 8, 34, 35, 640 * 3840 * 2)
    srd(a, 12, 32, 33, 640 * 2)
    srd(a, 16, 4, 5, WS["mod"][1], WS["mod"][0])
    a("v_lshrrev_b32 v1, 2, v0")
    a("v_and_b32 v2, 3, v0")
    a("s_movk_i32 s20, 7680")
    a("v_mul_lo_u32 v3, v1, s20")
    a("v_lshl_add_u32 v3, v2, 4, v3")
    a("s_lshl_b32 s21, s6, 6")
    a("v_add_u32 v3, s21, v3")
    a("v_lshlrev_b32 v4, 1, v1")
    for p in range(10):
        a(f"buffer_load_ushort v{10+p}, v4, s[12:15], 0 offen offset:{p*128}")
    for p in range(10):
        a(f"s_mov_b32 s22, {p*64*7680}")
        a(f"buffer_load_dwordx4 v[{20+4*p}:{23+4*p}], v3, s[8:11], s22 offen")
    for k in range(8):
        a(f"v_mov_b32 v{60+k}, 0")
    a("s_waitcnt vmcnt(10)")
    a("s_mov_b32 s23, 0xbfb8aa3b")
    for p in range(10):
        a(f"v_lshlrev_b32 v{10+p}, 16, v{10+p}")
        a(f"v_mul_f32 v70, s23, v{10+p}")
        a("v_exp_f32 v70, v70")
        a("s_nop 0")
        a("v_add_f32 v70, 1.0, v70")
        a("v_rcp_f32 v70, v70")
        a("s_nop 0")
        a(f"v_mul_f32 v70, v{10+p}, v70")
        a("v_cvt_pk_bf16_f32 v70, v70, v70")
        a(f"v_lshlrev_b32 v{10+p}, 16, v70")
    for p in range(10):
        a(f"s_waitcnt vmcnt({9-p})")
        for q in range(4):
            unpack(a, 70, 71, 20 + 4 * p + q)
            a(f"v_fmac_f32 v{60+2*q}, v{10+p}, v70")
            a(f"v_fmac_f32 v{61+2*q}, v{10+p}, v71")
    a("v_lshlrev_b32 v5, 7, v1")
    a("v_lshl_add_u32 v5, v2, 5, v5")
    a("ds_write_b128 v5, v[60:63]")
    a("ds_write_b128 v5, v[64:67] offset:16")
    a("s_waitcnt lgkmcnt(0)")
    a("s_barrier")
    a("v_and_b32 v6, 31, v0")
    a("v_lshrrev_b32 v7, 5, v0")
    a("v_lshlrev_b32 v8, 10, v7")
    a("v_lshl_add_u32 v8, v6, 2, v8")
    for i in range(8):
        a(f"ds_read_b32 v{20+i}, v8 offset:{i*128}")
    a("s_waitcnt lgkmcnt(0)")
    a("v_add_f32 v20, v20, v21")
    a("v_add_f32 v22, v22, v23")
    a("v_add_f32 v24, v24, v25")
    a("v_add_f32 v26, v26, v27")
    a("v_add_f32 v20, v20, v22")
    a("v_add_f32 v24, v24, v26")
    a("v_add_f32 v20, v20, v24")
    a("v_lshlrev_b32 v9, 2, v0")
    a("ds_write_b32 v9, v20 offset:8192")
    a("s_waitcnt lgkmcnt(0)")
    a("s_barrier")
    a("v_lshlrev_b32 v9, 2, v6")
    for i in range(8):
        a(f"ds_read_b32 v{20+i}, v9 offset:{8192+i*128}")
    a("s_waitcnt lgkmcnt(0)")
    a("v_add_f32 v20, v20, v21")
    a("v_add_f32 v22, v22, v23")
    a("v_add_f32 v24, v24, v25")
    a("v_add_f32 v26, v26, v27")
    a("v_add_f32 v20, v20, v22")
    a("v_add_f32 v24, v24, v26")
    a("v_add_f32 v20, v20, v24")
    a("v_cvt_pk_bf16_f32 v20, v20, v20")
    a("v_lshlrev_b32 v9, 1, v6")
    a("v_add_u32 v9, s21, v9")
    a("v_cmp_gt_u32 vcc, 32, v0")
    a("s_and_saveexec_b64 s[24:25], vcc")
    a(f"s_cbranch_execz {L}_end")
    a("buffer_store_short v20, v9, s[16:19], 0 offen")
    a(f"s_branch {L}_end")
    a.label(f"{L}_tr")
    a("s_sub_u32 s6, s2, 120")
    a("s_cmp_ge_u32 s6, 240")
    a(f"s_cbranch_scc1 {L}_tr2")
    a("s_mul_i32 s7, s6, 2731")
    a("s_lshr_b32 s7, s7, 16")
    a("s_mul_i32 s20, s7, 24")
    a("s_sub_u32 s20, s6, s20")
    srd(a, 8, 28, 29, 640 * 1536 * 2)
    srd(a, 12, 4, 5, WS["w1t"][1], WS["w1t"][0])
    a("s_movk_i32 s21, 3072")
    a("s_movk_i32 s22, 1280")
    a(f"s_branch {L}_trgo")
    a.label(f"{L}_tr2")
    a("s_sub_u32 s6, s6, 240")
    a("s_mul_i32 s7, s6, 6554")
    a("s_lshr_b32 s7, s7, 16")
    a("s_mul_i32 s20, s7, 10")
    a("s_sub_u32 s20, s6, s20")
    srd(a, 8, 30, 31, 640 * 1536 * 2)
    srd(a, 12, 4, 5, WS["w2t"][1], WS["w2t"][0])
    a("s_movk_i32 s21, 1280")
    a("s_movk_i32 s22, 3072")
    a.label(f"{L}_trgo")
    a("v_lshrrev_b32 v1, 3, v0")
    a("v_and_b32 v2, 7, v0")
    a("s_lshl_b32 s23, s7, 6")
    a("v_add_u32 v3, s23, v1")
    a("v_mul_lo_u32 v3, v3, s21")
    a("v_lshl_add_u32 v3, v2, 4, v3")
    a("s_lshl_b32 s24, s20, 7")
    a("v_add_u32 v3, s24, v3")
    a("s_lshl_b32 s25, s21, 5")
    a("buffer_load_dwordx4 v[8:11], v3, s[8:11], 0 offen")
    a("buffer_load_dwordx4 v[12:15], v3, s[8:11], s25 offen")
    a("s_movk_i32 s26, 1152")
    a("v_mul_lo_u32 v4, v2, s26")
    a("v_lshl_add_u32 v4, v1, 1, v4")
    a("s_waitcnt vmcnt(1)")
    for q in range(4):
        a(f"ds_write_b16 v4, v{8+q} offset:{(2*q)*144}")
        a(f"ds_write_b16_d16_hi v4, v{8+q} offset:{(2*q+1)*144}")
    a("s_waitcnt vmcnt(0)")
    for q in range(4):
        a(f"ds_write_b16 v4, v{12+q} offset:{(2*q)*144+64}")
        a(f"ds_write_b16_d16_hi v4, v{12+q} offset:{(2*q+1)*144+64}")
    a("s_waitcnt lgkmcnt(0)")
    a("s_barrier")
    a("s_movk_i32 s26, 144")
    a("v_mul_lo_u32 v5, v1, s26")
    a("v_lshl_add_u32 v5, v2, 4, v5")
    a("ds_read_b128 v[8:11], v5")
    a(f"ds_read_b128 v[12:15], v5 offset:{32*144}")
    a("s_lshl_b32 s23, s20, 6")
    a("v_add_u32 v6, s23, v1")
    a("v_mul_lo_u32 v6, v6, s22")
    a("v_lshl_add_u32 v6, v2, 4, v6")
    a("s_lshl_b32 s24, s7, 7")
    a("v_add_u32 v6, s24, v6")
    a("s_lshl_b32 s25, s22, 5")
    a("s_waitcnt lgkmcnt(1)")
    a("buffer_store_dwordx4 v[8:11], v6, s[12:15], 0 offen")
    a("s_waitcnt lgkmcnt(0)")
    a("buffer_store_dwordx4 v[12:15], v6, s[12:15], s25 offen")
    a.label(f"{L}_end")
    a("s_endpgm")
    return kernel_desc(L, 72, 40, 72)


def reduce32(a, v, t):
    a("s_nop 1")
    a(f"v_add_f32_dpp v{t}, v{v}, v{v} quad_perm:[1,0,3,2] row_mask:0xf bank_mask:0xf")
    a("s_nop 1")
    a(f"v_add_f32_dpp v{v}, v{t}, v{t} quad_perm:[2,3,0,1] row_mask:0xf bank_mask:0xf")
    a("s_nop 1")
    a(f"v_add_f32_dpp v{t}, v{v}, v{v} row_half_mirror row_mask:0xf bank_mask:0xf")
    a("s_nop 1")
    a(f"v_add_f32_dpp v{v}, v{t}, v{t} row_mirror row_mask:0xf bank_mask:0xf")
    a(f"ds_swizzle_b32 v{t}, v{v} offset:0x401F")
    a("s_waitcnt lgkmcnt(0)")
    a(f"v_add_f32 v{v}, v{v}, v{t}")


def ln_core(a, X, C1, SH, OUT, T):
    s, t, m, r = T, T + 1, T + 2, T + 3
    a(f"v_add_f32 v{s}, v{X}, v{X+1}")
    a(f"v_add_f32 v{t}, v{X+2}, v{X+3}")
    for k in range(4, 20, 2):
        a(f"v_add_f32 v{s}, v{s}, v{X+k}")
        a(f"v_add_f32 v{t}, v{t}, v{X+k+1}")
    a(f"v_add_f32 v{s}, v{s}, v{t}")
    reduce32(a, s, t)
    a(f"v_mul_f32 v{m}, 0x3acccccd, v{s}")
    a(f"v_sub_f32 v{t}, v{X}, v{m}")
    a(f"v_mul_f32 v{s}, v{t}, v{t}")
    a(f"v_sub_f32 v{t}, v{X+1}, v{m}")
    a(f"v_mul_f32 v{r}, v{t}, v{t}")
    for k in range(2, 20, 2):
        a(f"v_sub_f32 v{t}, v{X+k}, v{m}")
        a(f"v_fmac_f32 v{s}, v{t}, v{t}")
        a(f"v_sub_f32 v{t}, v{X+k+1}, v{m}")
        a(f"v_fmac_f32 v{r}, v{t}, v{t}")
    a(f"v_add_f32 v{s}, v{s}, v{r}")
    reduce32(a, s, t)
    a(f"v_mul_f32 v{s}, 0x3acccccd, v{s}")
    a(f"v_cvt_pk_bf16_f32 v{t}, v{m}, v{s}")
    unpack(a, m, s, t)
    a(f"v_add_f32 v{s}, 0x3727c5ac, v{s}")
    a(f"v_cvt_pk_bf16_f32 v{t}, v{s}, v{s}")
    a(f"v_lshlrev_b32 v{s}, 16, v{t}")
    a(f"v_sqrt_f32 v{s}, v{s}")
    a("s_nop 0")
    a(f"v_cvt_pk_bf16_f32 v{t}, v{s}, v{s}")
    a(f"v_lshlrev_b32 v{s}, 16, v{t}")
    a(f"v_rcp_f32 v{r}, v{s}")
    a("s_nop 0")
    u, w = T + 4, T + 5
    for k in range(0, 20, 2):
        a(f"v_sub_f32 v{u}, v{X+k}, v{m}")
        a(f"v_sub_f32 v{w}, v{X+k+1}, v{m}")
        a(f"v_cvt_pk_bf16_f32 v{t}, v{u}, v{w}")
        unpack(a, u, w, t)
        a(f"v_mul_f32 v{u}, v{u}, v{r}")
        a(f"v_mul_f32 v{w}, v{w}, v{r}")
        a(f"v_cvt_pk_bf16_f32 v{t}, v{u}, v{w}")
        unpack(a, u, w, t)
        a(f"v_mul_f32 v{u}, v{u}, v{C1+k}")
        a(f"v_mul_f32 v{w}, v{w}, v{C1+k+1}")
        a(f"v_cvt_pk_bf16_f32 v{t}, v{u}, v{w}")
        unpack(a, u, w, t)
        a(f"v_add_f32 v{u}, v{u}, v{SH+k}")
        a(f"v_add_f32 v{w}, v{w}, v{SH+k+1}")
        a(f"v_cvt_pk_bf16_f32 v{OUT+k//2}, v{u}, v{w}")


def ln_kernel(a, second):
    L = "ln2_kernel" if second else "ln1_kernel"
    kernel_header(a, L)
    a("s_cmp_ge_u32 s2, 256")
    a(f"s_cbranch_scc1 {L}_end")
    a(f"s_load_dwordx2 s[4:5], s[0:1], {KA['ws']}")
    a(f"s_load_dwordx2 s[6:7], s[0:1], {KA['x']}")
    a("s_waitcnt lgkmcnt(0)")
    NB = S_LEN * D * 2
    srd(a, 8, 6, 7, NB)
    srd(a, 12, 4, 5, WS["mod"][1], WS["mod"][0])
    srd(a, 16, 4, 5, NB, WS["h2" if second else "h"][0])
    if second:
        srd(a, 20, 4, 5, NB, WS["y"][0])
        srd(a, 24, 4, 5, NB, WS["y"][0] + NB)
        srd(a, 28, 4, 5, NB, WS["x1"][0])
    a("v_lshrrev_b32 v1, 5, v0")
    a("s_lshl_b32 s3, s2, 3")
    a("v_add_u32 v1, s3, v1")
    a("v_and_b32 v2, 31, v0")
    a("v_lshlrev_b32 v2, 3, v2")
    a("s_movk_i32 s3, 1280")
    a("v_mul_lo_u32 v1, v1, s3")
    a("v_add_u32 v1, v1, v2")
    for i in range(5):
        a(f"buffer_load_dwordx2 v[{10+2*i}:{11+2*i}], v1, s[8:11], 0 offen offset:{i*256}")
    if second:
        for i in range(5):
            a(f"buffer_load_dwordx2 v[{20+2*i}:{21+2*i}], v1, s[20:23], 0 offen offset:{i*256}")
        for i in range(5):
            a(f"buffer_load_dwordx2 v[{30+2*i}:{31+2*i}], v1, s[24:27], 0 offen offset:{i*256}")
        for i in range(5):
            a(f"buffer_load_dwordx2 v[{40+2*i}:{41+2*i}], v2, s[12:15], 0 offen offset:{2*1280+i*256}")
    coff = (4 if second else 1) * 1280
    soff = (3 if second else 0) * 1280
    a(f"s_movk_i32 s3, {coff}")
    for i in range(5):
        a(f"buffer_load_dwordx2 v[{50+2*i}:{51+2*i}], v2, s[12:15], s3 offen offset:{i*256}")
    a(f"s_movk_i32 s32, {soff}")
    for i in range(5):
        a(f"buffer_load_dwordx2 v[{60+2*i}:{61+2*i}], v2, s[12:15], s32 offen offset:{i*256}")
    X, C1, SH, OUT, T = 70, 90, 110, 130, 140
    if second:
        a("s_waitcnt vmcnt(10)")
        for k in range(10):
            unpack(a, T, T + 1, 20 + k)
            unpack(a, T + 2, T + 3, 30 + k)
            a(f"v_sub_f32 v{T}, v{T}, v{T+2}")
            a(f"v_sub_f32 v{T+1}, v{T+1}, v{T+3}")
            a(f"v_cvt_pk_bf16_f32 v{T+4}, v{T}, v{T+1}")
            unpack(a, T, T + 1, T + 4)
            unpack(a, T + 2, T + 3, 40 + k)
            a(f"v_mul_f32 v{T}, v{T}, v{T+2}")
            a(f"v_mul_f32 v{T+1}, v{T+1}, v{T+3}")
            a(f"v_cvt_pk_bf16_f32 v{T+4}, v{T}, v{T+1}")
            unpack(a, T, T + 1, T + 4)
            unpack(a, T + 2, T + 3, 10 + k)
            a(f"v_add_f32 v{T}, v{T}, v{T+2}")
            a(f"v_add_f32 v{T+1}, v{T+1}, v{T+3}")
            a(f"v_cvt_pk_bf16_f32 v{20+k}, v{T}, v{T+1}")
            unpack(a, X + 2 * k, X + 2 * k + 1, 20 + k)
        for i in range(5):
            a(f"buffer_store_dwordx2 v[{20+2*i}:{21+2*i}], v1, s[28:31], 0 offen offset:{i*256}")
        a("s_waitcnt vmcnt(5)")
    else:
        a("s_waitcnt vmcnt(10)")
        for k in range(10):
            unpack(a, X + 2 * k, X + 2 * k + 1, 10 + k)
        a("s_waitcnt vmcnt(0)")
    for k in range(10):
        unpack(a, T, T + 1, 50 + k)
        a(f"v_add_f32 v{T}, 1.0, v{T}")
        a(f"v_add_f32 v{T+1}, 1.0, v{T+1}")
        a(f"v_cvt_pk_bf16_f32 v{T+2}, v{T}, v{T+1}")
        unpack(a, C1 + 2 * k, C1 + 2 * k + 1, T + 2)
        unpack(a, SH + 2 * k, SH + 2 * k + 1, 60 + k)
    ln_core(a, X, C1, SH, OUT, T)
    for i in range(5):
        a(f"buffer_store_dwordx2 v[{OUT+2*i}:{OUT+1+2*i}], v1, s[16:19], 0 offen offset:{i*256}")
    a.label(f"{L}_end")
    a("s_endpgm")
    return kernel_desc(L, 152, 40, 152)


def rowmap(paired_ok, nb, b, i):
    if paired_ok and not (b == nb - 1 and nb % 2 == 1):
        return 32 * (b >> 1) + 8 * (i >> 2) + 4 * (b & 1) + (i & 3)
    return 16 * b + i


def fsw_row(paired_ok, nb, n):
    npair = (nb // 2) * 32 if paired_ok else 0
    if n < npair:
        return 2 * ((n >> 3) & 3) + ((n >> 1) & 1)
    return (n >> 1) & 7


def check_conflicts(paired_ok, nb):
    groups = [[0, 1, 2, 3, 12, 13, 14, 15] + list(range(20, 28)),
              list(range(4, 12)) + [16, 17, 18, 19, 28, 29, 30, 31]]
    groups += [[x + 32 for x in g] for g in groups]
    for b in range(nb):
        for j in range(2):
            for g in groups:
                qs = set()
                for l in g:
                    n = rowmap(paired_ok, nb, b, l & 15)
                    assert fsw_row(paired_ok, nb, n) == ((l & 15) >> 1)
                    addr = n * 128 + ((4 * j) ^ (l >> 4) ^ fsw_row(paired_ok, nb, n)) * 16
                    qs.add((addr // 16) % 16)
                assert len(qs) == 16, (paired_ok, nb, b, j)


def gemm_kernel(a, L, K, BS, BV, BK, ndimS, ksplit, nslot, setup, epilogue, pre_epi=None, nwg=256):
    nsb = BS // 16
    check_conflicts(ndimS, nsb)
    check_conflicts(not ndimS, 2)
    kernel_header(a, L)
    a(f"s_cmp_ge_u32 s2, {nwg}")
    a(f"s_cbranch_scc1 {L}_end")
    a("v_lshrrev_b32 v1, 6, v0")
    a("s_nop 0")
    a("v_readfirstlane_b32 s40, v1")
    a("v_and_b32 v1, 63, v0")
    a("v_and_b32 v2, 15, v1")
    a("v_lshrrev_b32 v3, 4, v1")
    ldS, ldV = setup(a)
    nsub = BK // 64
    nst = K // BK
    subS, subV = BS * 128, BV * 128
    slotsz = nsub * (subS + subV)
    NS = min(nslot, nst)
    chunks = [("S", u, r) for u in range(nsub) for r in range(BS // 8)] + \
             [("V", u, r) for u in range(nsub) for r in range(BV // 8)]
    nS = nsub * BS // 8
    assert nS % 4 == 0 and len(chunks) % 4 == 0
    nt = len(chunks) // 4

    def lds_off(op, u, r):
        return (u * subS + r * 1024) if op == "S" else (nsub * subS + u * subV + r * 1024)

    steps = [(u, j) for u in range(nsub) for j in range(2)] if ksplit == 1 else [(u, None) for u in range(nsub)]
    spw = len(steps)
    vDMA = 8
    nj = 2 if ksplit == 1 else 1
    nSA = 2 if (ndimS and nsb % 2 == 1) else 1
    vSA = 8
    vVA = vSA + NS * nSA * nj
    vT = max(vVA + NS * nj, vDMA + nt)
    vF = (vT + 4 + 3) // 4 * 4
    nfr = nsb + 2
    vR = vF + 2 * nfr * 4
    vE = vR + nsb * 8
    vTot = vE + (32 if pre_epi else 0)
    accum = (vTot + 3) // 4 * 4
    nacc = nsb * 2 * 4
    assert accum + nacc <= 256
    sLO = 64
    a("s_cmp_lt_u32 s40, 4")
    a(f"s_cbranch_scc1 {L}_comp")
    a("s_sub_u32 s40, s40, 4")
    a("v_lshrrev_b32 v4, 3, v1")
    a("v_and_b32 v5, 7, v1")
    for t in range(nt):
        ops = [chunks[4 * t + w] for w in range(4)]
        op = ops[0][0]
        assert all(o[0] == op for o in ops)
        ld = ldS if op == "S" else ldV
        rb = [o[2] * 8 for o in ops]
        sb = [o[1] for o in ops]
        lo = [lds_off(*o) for o in ops]
        def sel(dst, vals):
            if all(v == vals[0] + (vals[1] - vals[0]) * k for k, v in enumerate(vals)):
                a(f"s_mul_i32 s{dst}, s40, {vals[1]-vals[0]}")
                a(f"s_add_u32 s{dst}, s{dst}, {vals[0]}")
            else:
                a(f"s_mov_b32 s{dst}, {vals[0]}")
                for w in range(1, 4):
                    a(f"s_cmp_eq_u32 s40, {w}")
                    a(f"s_cselect_b32 s{dst}, {vals[w]}, s{dst}")
        sel(44, rb)
        sel(45, [x * 128 for x in sb])
        sel(sLO + t, lo)
        t0, t1, t2 = vT, vT + 1, vT + 2
        a(f"v_add_u32 v{t0}, s44, v4")
        paired_ok = ndimS if op == "S" else (not ndimS)
        nb = nsb if op == "S" else 2
        if op == "V":
            a(f"v_and_b32 v{t2}, 31, v{t0}")
            nreg = t2
        else:
            nreg = t0
        npair = (nb // 2) * 32 if paired_ok else 0
        a(f"v_bfe_u32 v{t1}, v{nreg}, 1, 3")
        if npair:
            a(f"v_bfe_u32 v{vT+3}, v{nreg}, 3, 2")
            a(f"v_lshlrev_b32 v6, 1, v{vT+3}")
            a(f"v_bfe_u32 v7, v{nreg}, 1, 1")
            a(f"v_or_b32 v6, v6, v7")
            if npair < nb * 16:
                a(f"v_cmp_gt_u32 vcc, {npair}, v{nreg}")
                a("s_nop 1")
                a(f"v_cndmask_b32 v{t1}, v{t1}, v6, vcc")
            else:
                a(f"v_mov_b32 v{t1}, v6")
        a(f"v_xor_b32 v{t1}, v{t1}, v5")
        a(f"s_movk_i32 s46, {ld}")
        a(f"v_mul_lo_u32 v{t0}, v{t0}, s46")
        a(f"v_lshl_add_u32 v{t0}, v{t1}, 4, v{t0}")
        a(f"v_add_u32 v{vDMA+t}, s45, v{t0}")
    q = []

    def vm_wait_for(tag):
        last = -1
        for idx, t in enumerate(q):
            if t == tag:
                last = idx
        return min(len(q) - 1 - last, 63)

    def issue(s):
        slot = s % NS
        a(f"s_movk_i32 s46, {s*BK*2}")
        for t in range(nt):
            op = chunks[4 * t][0]
            a(f"s_add_u32 m0, s{sLO+t}, {slot*slotsz}")
            a("s_nop 0")
            sr = "s[8:11]" if op == "S" else "s[12:15]"
            a(f"buffer_load_dwordx4 v{vDMA+t}, {sr}, s46 offen lds")
            q.append(s)

    for s in range(NS):
        issue(s)
    a(f"s_waitcnt vmcnt({vm_wait_for(0)})")
    a("s_barrier")
    for s in range(nst - 1):
        a(f"s_waitcnt vmcnt({vm_wait_for(s+1)})")
        a("s_barrier")
        if s + NS < nst:
            issue(s + NS)
    a("s_endpgm")
    a.label(f"{L}_comp")
    if ksplit == 2:
        a("s_and_b32 s42, s40, 1")
        a("s_lshr_b32 s43, s40, 1")
    else:
        a("s_mov_b32 s42, s40")
        a("s_mov_b32 s43, 0")
    a("v_lshrrev_b32 v4, 1, v2")
    a("v_xor_b32 v4, v4, v3")
    if ksplit == 2:
        a("s_lshl_b32 s46, s43, 2")
        a("v_xor_b32 v4, s46, v4")
    a("v_and_b32 v5, 12, v2")
    a("v_lshlrev_b32 v5, 1, v5")
    a("v_and_b32 v6, 3, v2")
    a("v_or_b32 v5, v5, v6")
    def addr_regs(dst_fn, rowreg, extra_sgpr=None):
        for j in range(nj):
            a(f"v_xor_b32 v6, {4*j}, v4")
            a(f"v_lshlrev_b32 v6, 4, v6")
            a(f"v_lshl_add_u32 v6, v{rowreg}, 7, v6")
            if extra_sgpr is not None:
                a(f"v_add_u32 v6, s{extra_sgpr}, v6")
            for sl in range(NS):
                a(f"v_add_u32 v{dst_fn(sl, j)}, {sl*slotsz}, v6")
    saddr = lambda kind, sl, j: vSA + (sl * nSA + kind) * nj + j
    vaddr = lambda sl, j: vVA + sl * nj + j
    addr_regs(lambda sl, j: saddr(0, sl, j), 5 if ndimS else 2)
    if nSA == 2:
        addr_regs(lambda sl, j: saddr(1, sl, j), 2)
    a(f"s_lshl_b32 s46, s42, 12")
    a(f"s_add_u32 s46, s46, {nsub*subS}")
    addr_regs(vaddr, 2 if ndimS else 5, 46)
    if pre_epi:
        pre_epi(a, vE)

    def frag_reads(s, k, buf):
        slot = s % NS
        u, j = steps[k]
        jj = j if j is not None else 0
        for vb in range(2):
            r = vF + (buf * nfr + nsb + vb) * 4
            off = u * subV + (rowmap(not ndimS, 2, vb, 0)) * 128
            a(f"ds_read_b128 v[{r}:{r+3}], v{vaddr(slot, jj)} offset:{off}")
        for b in range(nsb):
            r = vF + (buf * nfr + b) * 4
            left = ndimS and nsb % 2 == 1 and b == nsb - 1
            off = u * subS + rowmap(ndimS, nsb, b, 0) * 128
            a(f"ds_read_b128 v[{r}:{r+3}], v{saddr(1 if left else 0, slot, jj)} offset:{off}")

    def mfmas(buf, first):
        for b in range(nsb):
            for vb in range(2):
                ar = (b * 2 + vb) * 4
                sf = vF + (buf * nfr + b) * 4
                vf = vF + (buf * nfr + nsb + vb) * 4
                A, B = (sf, vf) if ndimS else (vf, sf)
                c = "0" if first else f"a[{ar}:{ar+3}]"
                a(f"v_mfma_f32_16x16x32_bf16 a[{ar}:{ar+3}], v[{A}:{A+3}], v[{B}:{B+3}], {c}")

    step = 0
    a("s_barrier")
    frag_reads(0, 0, 0)
    for s in range(nst):
        for k in range(spw):
            buf = step & 1
            last = k == spw - 1
            if not last:
                frag_reads(s, k + 1, buf ^ 1)
                a(f"s_waitcnt lgkmcnt({nfr})")
            else:
                a("s_waitcnt lgkmcnt(0)")
                if s + 1 < nst:
                    a("s_barrier")
                    frag_reads(s + 1, 0, buf ^ 1)
            mfmas(buf, step == 0)
            step += 1
    a("s_nop 7")
    a("s_nop 7")
    if ksplit == 2:
        a("s_barrier")
        a("v_lshlrev_b32 v4, 4, v1")
        a(f"s_mul_i32 s46, s42, {nsb*2*1024}")
        a("v_add_u32 v4, s46, v4")
        a("s_cmp_lt_u32 s40, 2")
        a(f"s_cbranch_scc1 {L}_red")
        for k in range(nsb * 2):
            a(f"ds_write_b128 v4, a[{4*k}:{4*k+3}] offset:{k*1024}")
        a("s_waitcnt lgkmcnt(0)")
        a("s_barrier")
        a(f"s_branch {L}_end")
        a.label(f"{L}_red")
        a("s_barrier")
        for k in range(nsb * 2):
            a(f"ds_read_b128 v[{vR+4*k}:{vR+4*k+3}], v4 offset:{k*1024}")
        a("s_waitcnt lgkmcnt(0)")
        for k in range(nsb * 2 * 4):
            a(f"v_accvgpr_read_b32 v{vF+(k&7)}, a{k}")
            a(f"v_add_f32 v{vR+k}, v{vR+k}, v{vF+(k&7)}")
    else:
        for k in range(nsb * 2 * 4):
            a(f"v_accvgpr_read_b32 v{vR+k}, a{k}")
    a("s_waitcnt vmcnt(0)")
    epilogue(a, vR, vF, vE, nsb)
    a.label(f"{L}_end")
    a("s_endpgm")
    lds = max(NS * slotsz, (2 * nsb * 2 * 1024) if ksplit == 2 else 0)
    assert lds <= 163840, lds
    return kernel_desc(L, accum + nacc, 96, accum), lds


def load_ptrs(a, names):
    for k, nm in enumerate(names):
        a(f"s_load_dwordx2 s[{48+2*k}:{49+2*k}], s[0:1], {KA[nm]}")
    a("s_waitcnt lgkmcnt(0)")


def setup_A(a):
    load_ptrs(a, ["ws", "hid_re", "hid_im"])
    a("s_and_b32 s3, s2, 7")
    a("s_lshr_b32 s4, s2, 3")
    a("s_and_b32 s5, s3, 3")
    a("s_lshl_b32 s5, s5, 2")
    a("s_and_b32 s6, s4, 3")
    a("s_add_u32 s5, s5, s6")
    a("s_lshr_b32 s6, s3, 2")
    a("s_lshl_b32 s6, s6, 3")
    a("s_lshr_b32 s7, s4, 2")
    a("s_add_u32 s6, s6, s7")
    a("s_cmp_ge_u32 s5, 8")
    a("s_cselect_b32 s8, s52, s50")
    a("s_cselect_b32 s9, s53, s51")
    a(f"s_mov_b32 s10, {80*1280}")
    a("s_mov_b32 s11, 0x00020000")
    a("s_and_b32 s7, s5, 7")
    a(f"s_mul_i32 s7, s7, {80*1280}")
    srd_add(a, 8, 7)
    srd(a, 12, 48, 49, 128 * 1280, WS["h"][0])
    a(f"s_mul_i32 s7, s6, {128*1280}")
    srd_add(a, 12, 7)
    srd(a, 16, 48, 49, 80 * 4096, WS["abt"][0])
    a(f"s_mul_i32 s7, s5, {80*4096}")
    srd_add(a, 16, 7)
    a("s_lshl_b32 s7, s6, 8")
    srd_add(a, 16, 7)
    return 1280, 1280


def epi_A(a, vR, vF, vE, nsb):
    a("v_lshlrev_b32 v4, 12, v2")
    a("v_lshl_add_u32 v4, v3, 4, v4")
    a("s_lshl_b32 s46, s40, 6")
    a("v_add_u32 v4, s46, v4")
    for b in range(nsb):
        r = vR + b * 8
        o = vF + (b & 1) * 4
        for k in range(4):
            a(f"v_cvt_pk_bf16_f32 v{o+k}, v{r+2*k}, v{r+2*k+1}")
        a(f"s_mov_b32 s46, {b*16*4096}")
        a(f"buffer_store_dwordx4 v[{o}:{o+3}], v4, s[16:19], s46 offen")


def setup_B(a):
    load_ptrs(a, ["ws", "seq_re", "seq_im"])
    a("s_and_b32 s3, s2, 7")
    a("s_lshr_b32 s4, s2, 3")
    a("s_and_b32 s5, s3, 1")
    a("s_lshr_b32 s6, s3, 1")
    a("s_lshl_b32 s6, s6, 2")
    a("s_and_b32 s7, s4, 3")
    a("s_add_u32 s6, s6, s7")
    a("s_lshr_b32 s7, s4, 2")
    srd(a, 8, 48, 49, 80 * 4096, WS["abt"][0])
    a(f"s_mul_i32 s20, s5, {640*4096}")
    a(f"s_mul_i32 s21, s7, {80*4096}")
    a("s_add_u32 s20, s20, s21")
    srd_add(a, 8, 20)
    a("s_cmp_eq_u32 s5, 1")
    a("s_cselect_b32 s12, s52, s50")
    a("s_cselect_b32 s13, s53, s51")
    a(f"s_mov_b32 s14, {128*4096}")
    a("s_mov_b32 s15, 0x00020000")
    a(f"s_mul_i32 s20, s6, {128*4096}")
    srd_add(a, 12, 20)
    srd(a, 16, 48, 49, 128 * 1280, WS["y"][0])
    a(f"s_mul_i32 s20, s5, {2048*1280}")
    a(f"s_mul_i32 s21, s6, {128*1280}")
    a("s_add_u32 s20, s20, s21")
    a("s_mul_i32 s21, s7, 160")
    a("s_add_u32 s20, s20, s21")
    srd_add(a, 16, 20)
    return 4096, 4096


def make_epi_S(ldo, relu=False, resid=False):
    def epi(a, vR, vF, vE, nsb):
        a("s_lshl_b32 s46, s42, 5")
        a("v_add_u32 v4, s46, v2")
        a(f"s_movk_i32 s46, {ldo}")
        a("v_mul_lo_u32 v4, v4, s46")
        a("v_lshl_add_u32 v5, v3, 3, v4")
        a("v_lshl_add_u32 v4, v3, 4, v4")
        a(f"s_mov_b32 s47, {16*ldo}")
        if resid:
            pass
        cnt = 0
        for vb in range(2):
            so = "s47" if vb else "0"
            for p in range((nsb + 1) // 2):
                full = 2 * p + 1 < nsb
                nreg = 4 if full else 2
                o = vF + (cnt & 3) * 4
                cnt += 1
                if resid:
                    xr = vF + 16 + (cnt & 1) * 4
                    a(f"buffer_load_dwordx{nreg} v[{xr}:{xr+nreg-1}], v{4 if full else 5}, s[20:23], {so} offen offset:{p*64}")
                for k in range(nreg):
                    b = 2 * p + (k >> 1)
                    r = vR + (b * 2 + vb) * 4 + (k & 1) * 2
                    if relu:
                        a(f"v_max_f32 v{r}, 0, v{r}")
                        a(f"v_max_f32 v{r+1}, 0, v{r+1}")
                    a(f"v_cvt_pk_bf16_f32 v{o+k}, v{r}, v{r+1}")
                if resid:
                    t = vF + 24
                    a("s_waitcnt vmcnt(0)")
                    for k in range(nreg):
                        unpack(a, t, t + 1, o + k)
                        unpack(a, t + 2, t + 3, vE + p * 4 + k)
                        a(f"v_mul_f32 v{t}, v{t}, v{t+2}")
                        a(f"v_mul_f32 v{t+1}, v{t+1}, v{t+3}")
                        a(f"v_cvt_pk_bf16_f32 v{t+4}, v{t}, v{t+1}")
                        unpack(a, t, t + 1, t + 4)
                        unpack(a, t + 2, t + 3, xr + k)
                        a(f"v_add_f32 v{t}, v{t}, v{t+2}")
                        a(f"v_add_f32 v{t+1}, v{t+1}, v{t+3}")
                        a(f"v_cvt_pk_bf16_f32 v{o+k}, v{t}, v{t+1}")
                a(f"buffer_store_dwordx{nreg} v[{o}:{o+nreg-1}], v{4 if full else 5}, s[16:19], {so} offen offset:{p*64}")
    return epi


def setup_C(a):
    load_ptrs(a, ["ws"])
    a("s_and_b32 s3, s2, 7")
    a("s_lshr_b32 s4, s2, 3")
    a("s_and_b32 s5, s3, 3")
    a("s_lshl_b32 s5, s5, 2")
    a("s_and_b32 s6, s4, 3")
    a("s_add_u32 s5, s5, s6")
    a("s_lshr_b32 s6, s3, 2")
    a("s_lshl_b32 s6, s6, 3")
    a("s_lshr_b32 s7, s4, 2")
    a("s_add_u32 s6, s6, s7")
    srd(a, 8, 48, 49, 96 * 1280, WS["w1t"][0])
    a(f"s_mul_i32 s20, s5, {96*1280}")
    srd_add(a, 8, 20)
    srd(a, 12, 48, 49, 128 * 1280, WS["h2"][0])
    a(f"s_mul_i32 s20, s6, {128*1280}")
    srd_add(a, 12, 20)
    srd(a, 16, 48, 49, 128 * 3072, WS["h1"][0])
    a(f"s_mul_i32 s20, s6, {128*3072}")
    a("s_mul_i32 s21, s5, 192")
    a("s_add_u32 s20, s20, s21")
    srd_add(a, 16, 20)
    return 1280, 1280


def setup_D(a):
    load_ptrs(a, ["ws", "out"])
    a("s_and_b32 s3, s2, 7")
    a("s_lshr_b32 s4, s2, 3")
    a("s_and_b32 s5, s3, 1")
    a("s_lshl_b32 s5, s5, 2")
    a("s_and_b32 s6, s4, 3")
    a("s_add_u32 s5, s5, s6")
    a("s_lshr_b32 s6, s3, 1")
    a("s_lshl_b32 s6, s6, 3")
    a("s_lshr_b32 s7, s4, 2")
    a("s_add_u32 s6, s6, s7")
    srd(a, 8, 48, 49, 80 * 3072, WS["w2t"][0])
    a(f"s_mul_i32 s20, s5, {80*3072}")
    srd_add(a, 8, 20)
    srd(a, 12, 48, 49, 64 * 3072, WS["h1"][0])
    a(f"s_mul_i32 s20, s6, {64*3072}")
    srd_add(a, 12, 20)
    a(f"s_mul_i32 s28, s6, {64*1280}")
    a("s_mul_i32 s29, s5, 160")
    a("s_add_u32 s30, s28, s29")
    srd(a, 16, 50, 51, 64 * 1280 - 0)
    srd_add(a, 16, 30)
    srd(a, 20, 48, 49, 64 * 1280, WS["x1"][0])
    srd_add(a, 20, 30)
    srd(a, 24, 48, 49, 160, WS["mod"][0] + 5 * 1280)
    srd_add(a, 24, 29)
    return 3072, 3072


def pre_epi_D(a, vE):
    a("v_lshlrev_b32 v4, 4, v3")
    a("v_lshlrev_b32 v5, 3, v3")
    a(f"buffer_load_dwordx4 v[{vE}:{vE+3}], v4, s[24:27], 0 offen")
    a(f"buffer_load_dwordx4 v[{vE+4}:{vE+7}], v4, s[24:27], 0 offen offset:64")
    a(f"buffer_load_dwordx2 v[{vE+8}:{vE+9}], v5, s[24:27], 0 offen offset:128")
    return 3


def main():
    a = Asm()
    descs = []
    launches = []
    descs.append(prep_kernel(a)); launches.append(("prep_kernel", 600, 256, 10240))
    descs.append(ln_kernel(a, False)); launches.append(("ln1_kernel", 256, 256, 0))
    d, lds = gemm_kernel(a, "gemma_kernel", 640, 80, 128, 128, False, 1, 3, setup_A, epi_A)
    descs.append(d); launches.append(("gemma_kernel", 256, 512, lds))
    d, lds = gemm_kernel(a, "gemmb_kernel", 2048, 80, 128, 128, True, 1, 3, setup_B, make_epi_S(1280))
    descs.append(d); launches.append(("gemmb_kernel", 256, 512, lds))
    descs.append(ln_kernel(a, True)); launches.append(("ln2_kernel", 256, 256, 0))
    d, lds = gemm_kernel(a, "gemmc_kernel", 640, 96, 128, 64, True, 1, 5, setup_C, make_epi_S(3072, relu=True))
    descs.append(d); launches.append(("gemmc_kernel", 256, 512, lds))
    d, lds = gemm_kernel(a, "gemmd_kernel", 1536, 80, 64, 128, True, 2, 4, setup_D, make_epi_S(1280, resid=True),
                         pre_epi=pre_epi_D)
    descs.append(d); launches.append(("gemmd_kernel", 256, 512, lds))

    hdr = open(f"cdna_kernels/{NAME}.s.ref").read().split("\n")
    out = []
    for ln in hdr:
        if ln.startswith(";") and "@launch" not in ln and "Override" not in ln and "grid=ceil" not in ln:
            out.append(ln)
        elif not ln.startswith(";"):
            break
    for k, g, b, lds in launches:
        out.append(f"; @launch kernel={k} grid=({g},1,1) block=({b},1,1) lds={lds}")
    out.append('.amdgcn_target "amdgcn-amd-amdhsa--gfx950"')
    out.append(".text")
    txt = "\n".join(out) + "\n" + a.text()
    txt += '.section .rodata,"a"\n'
    for d in descs:
        txt += ".p2align 6\n" + d
    path = sys.argv[1] if len(sys.argv) > 1 else f"cdna_kernels/{NAME}.s"
    open(path, "w").write(txt)
    print("wrote", path, len(txt), "bytes")


if __name__ == "__main__":
    main()
```

```python
import sys

NAME = "adaLN_cond__spectral_fnet__dense_activation_relu__prompt"
S_LEN, D, DFF = 2048, 640, 1536

KA = dict(x=0, seq_re=8, seq_im=16, hid_re=24, hid_im=32, bx=40, w1=48, w2=56, c=64, wmod=72,
          out=80, dbg=88, ws=96)

def _al(x, a=0x10000):
    return (x + a - 1) // a * a
WS = {}
_o = 0
for nm, sz in [("mod", 3840 * 2), ("w1t", DFF * D * 2), ("w2t", D * DFF * 2), ("h", S_LEN * D * 2),
               ("abt", 2 * D * S_LEN * 2), ("y", 2 * S_LEN * D * 2), ("x1", S_LEN * D * 2),
               ("h2", S_LEN * D * 2), ("h1", S_LEN * DFF * 2)]:
    WS[nm] = (_o, sz)
    _o = _al(_o + sz)


PREP_WGS = 600 + 26 + 256
LN1_WGS = 256


class Asm:
    def __init__(self):
        self.lines = []

    def __call__(self, s):
        import re
        m = re.search(r"offset:(\d+)", s)
        if m and s.startswith("buffer_"):
            assert int(m.group(1)) <= 4095, s
        if m and s.startswith("ds_"):
            assert int(m.group(1)) <= 65535, s
        self.lines.append("    " + s)

    def label(self, s):
        self.lines.append(s + ":")

    def raw(self, s):
        self.lines.append(s)

    def text(self):
        return "\n".join(self.lines) + "\n"


def srd(a, sreg, base_lo, base_hi, nbytes, add=0):
    if add:
        a(f"s_add_u32 s{sreg}, s{base_lo}, {add}")
        a(f"s_addc_u32 s{sreg+1}, s{base_hi}, 0")
    else:
        a(f"s_mov_b32 s{sreg}, s{base_lo}")
        a(f"s_mov_b32 s{sreg+1}, s{base_hi}")
    a(f"s_mov_b32 s{sreg+2}, {nbytes}")
    a(f"s_mov_b32 s{sreg+3}, 0x00020000")


def srd_add(a, sreg, soff):
    a(f"s_add_u32 s{sreg}, s{sreg}, s{soff}")
    a(f"s_addc_u32 s{sreg+1}, s{sreg+1}, 0")


def kernel_header(a, label):
    a.raw(f".globl {label}")
    a.raw(".p2align 8")
    a.raw(f".type {label},@function")
    a.label(label)


def kernel_desc(label, nvgpr, nsgpr, accum):
    return f""".amdhsa_kernel {label}
  .amdhsa_next_free_vgpr {nvgpr}
  .amdhsa_next_free_sgpr {nsgpr}
  .amdhsa_accum_offset {accum}
  .amdhsa_group_segment_fixed_size 0
  .amdhsa_kernarg_size 104
  .amdhsa_user_sgpr_count 2
  .amdhsa_user_sgpr_kernarg_segment_ptr 1
  .amdhsa_system_sgpr_workgroup_id_x 1
  .amdhsa_float_denorm_mode_32 3
  .amdhsa_float_denorm_mode_16_64 3
.end_amdhsa_kernel
"""


def unpack(a, lo, hi, src):
    a(f"v_lshlrev_b32 v{lo}, 16, v{src}")
    a(f"v_and_b32 v{hi}, 0xffff0000, v{src}")


def prep_kernel(a):
    L = "prep_kernel"
    kernel_header(a, L)
    a(f"s_cmp_ge_u32 s2, {PREP_WGS}")
    a(f"s_cbranch_scc1 {L}_end")
    a("s_cmp_ge_u32 s2, 626")
    a(f"s_cbranch_scc1 {L}_ln")
    a("s_cmp_ge_u32 s2, 600")
    a(f"s_cbranch_scc1 {L}_pf")
    a(f"s_load_dwordx2 s[4:5], s[0:1], {KA['ws']}")
    a(f"s_load_dwordx4 s[28:31], s[0:1], {KA['w1']}")
    a(f"s_load_dwordx4 s[32:35], s[0:1], {KA['c']}")
    a("s_waitcnt lgkmcnt(0)")
    a("s_cmp_ge_u32 s2, 120")
    a(f"s_cbranch_scc1 {L}_tr")
    a("s_and_b32 s6, s2, 7")
    a("s_mul_i32 s6, s6, 15")
    a("s_lshr_b32 s7, s2, 3")
    a("s_add_u32 s6, s6, s7")
    srd(a, 8, 34, 35, 640 * 3840 * 2)
    srd(a, 12, 32, 33, 640 * 2)
    srd(a, 16, 4, 5, WS["mod"][1], WS["mod"][0])
    a("v_lshrrev_b32 v1, 2, v0")
    a("v_and_b32 v2, 3, v0")
    a("s_movk_i32 s20, 7680")
    a("v_mul_lo_u32 v3, v1, s20")
    a("v_lshl_add_u32 v3, v2, 4, v3")
    a("s_lshl_b32 s21, s6, 6")
    a("v_add_u32 v3, s21, v3")
    a("v_lshlrev_b32 v4, 1, v1")
    for p in range(10):
        a(f"buffer_load_ushort v{10+p}, v4, s[12:15], 0 offen offset:{p*128}")
    for p in range(10):
        a(f"s_mov_b32 s22, {p*64*7680}")
        a(f"buffer_load_dwordx4 v[{20+4*p}:{23+4*p}], v3, s[8:11], s22 offen")
    for k in range(8):
        a(f"v_mov_b32 v{60+k}, 0")
    a("s_waitcnt vmcnt(10)")
    a("s_mov_b32 s23, 0xbfb8aa3b")
    for p in range(10):
        a(f"v_lshlrev_b32 v{10+p}, 16, v{10+p}")
        a(f"v_mul_f32 v70, s23, v{10+p}")
        a("v_exp_f32 v70, v70")
        a("s_nop 0")
        a("v_add_f32 v70, 1.0, v70")
        a("v_rcp_f32 v70, v70")
        a("s_nop 0")
        a(f"v_mul_f32 v70, v{10+p}, v70")
        a("v_cvt_pk_bf16_f32 v70, v70, v70")
        a(f"v_lshlrev_b32 v{10+p}, 16, v70")
    for p in range(10):
        a(f"s_waitcnt vmcnt({9-p})")
        for q in range(4):
            unpack(a, 70, 71, 20 + 4 * p + q)
            a(f"v_fmac_f32 v{60+2*q}, v{10+p}, v70")
            a(f"v_fmac_f32 v{61+2*q}, v{10+p}, v71")
    a("v_lshlrev_b32 v5, 7, v1")
    a("v_lshl_add_u32 v5, v2, 5, v5")
    a("ds_write_b128 v5, v[60:63]")
    a("ds_write_b128 v5, v[64:67] offset:16")
    a("s_waitcnt lgkmcnt(0)")
    a("s_barrier")
    a("v_and_b32 v6, 31, v0")
    a("v_lshrrev_b32 v7, 5, v0")
    a("v_lshlrev_b32 v8, 10, v7")
    a("v_lshl_add_u32 v8, v6, 2, v8")
    for i in range(8):
        a(f"ds_read_b32 v{20+i}, v8 offset:{i*128}")
    a("s_waitcnt lgkmcnt(0)")
    a("v_add_f32 v20, v20, v21")
    a("v_add_f32 v22, v22, v23")
    a("v_add_f32 v24, v24, v25")
    a("v_add_f32 v26, v26, v27")
    a("v_add_f32 v20, v20, v22")
    a("v_add_f32 v24, v24, v26")
    a("v_add_f32 v20, v20, v24")
    a("v_lshlrev_b32 v9, 2, v0")
    a("ds_write_b32 v9, v20 offset:8192")
    a("s_waitcnt lgkmcnt(0)")
    a("s_barrier")
    a("v_lshlrev_b32 v9, 2, v6")
    for i in range(8):
        a(f"ds_read_b32 v{20+i}, v9 offset:{8192+i*128}")
    a("s_waitcnt lgkmcnt(0)")
    a("v_add_f32 v20, v20, v21")
    a("v_add_f32 v22, v22, v23")
    a("v_add_f32 v24, v24, v25")
    a("v_add_f32 v26, v26, v27")
    a("v_add_f32 v20, v20, v22")
    a("v_add_f32 v24, v24, v26")
    a("v_add_f32 v20, v20, v24")
    a("v_cvt_pk_bf16_f32 v20, v20, v20")
    a("v_lshlrev_b32 v9, 1, v6")
    a("v_add_u32 v9, s21, v9")
    a("v_cmp_gt_u32 vcc, 32, v0")
    a("s_and_saveexec_b64 s[24:25], vcc")
    a(f"s_cbranch_execz {L}_end")
    a("buffer_store_short v20, v9, s[16:19], 0 offen")
    a(f"s_branch {L}_end")
    a.label(f"{L}_tr")
    a("s_sub_u32 s6, s2, 120")
    a("s_cmp_ge_u32 s6, 240")
    a(f"s_cbranch_scc1 {L}_tr2")
    a("s_mul_i32 s7, s6, 2731")
    a("s_lshr_b32 s7, s7, 16")
    a("s_mul_i32 s20, s7, 24")
    a("s_sub_u32 s20, s6, s20")
    srd(a, 8, 28, 29, 640 * 1536 * 2)
    srd(a, 12, 4, 5, WS["w1t"][1], WS["w1t"][0])
    a("s_movk_i32 s21, 3072")
    a("s_movk_i32 s22, 1280")
    a(f"s_branch {L}_trgo")
    a.label(f"{L}_tr2")
    a("s_sub_u32 s6, s6, 240")
    a("s_mul_i32 s7, s6, 6554")
    a("s_lshr_b32 s7, s7, 16")
    a("s_mul_i32 s20, s7, 10")
    a("s_sub_u32 s20, s6, s20")
    srd(a, 8, 30, 31, 640 * 1536 * 2)
    srd(a, 12, 4, 5, WS["w2t"][1], WS["w2t"][0])
    a("s_movk_i32 s21, 1280")
    a("s_movk_i32 s22, 3072")
    a.label(f"{L}_trgo")
    a("v_lshrrev_b32 v1, 3, v0")
    a("v_and_b32 v2, 7, v0")
    a("s_lshl_b32 s23, s7, 6")
    a("v_add_u32 v3, s23, v1")
    a("v_mul_lo_u32 v3, v3, s21")
    a("v_lshl_add_u32 v3, v2, 4, v3")
    a("s_lshl_b32 s24, s20, 7")
    a("v_add_u32 v3, s24, v3")
    a("s_lshl_b32 s25, s21, 5")
    a("buffer_load_dwordx4 v[8:11], v3, s[8:11], 0 offen")
    a("buffer_load_dwordx4 v[12:15], v3, s[8:11], s25 offen")
    a("s_movk_i32 s26, 1152")
    a("v_mul_lo_u32 v4, v2, s26")
    a("v_lshl_add_u32 v4, v1, 1, v4")
    a("s_waitcnt vmcnt(1)")
    for q in range(4):
        a(f"ds_write_b16 v4, v{8+q} offset:{(2*q)*144}")
        a(f"ds_write_b16_d16_hi v4, v{8+q} offset:{(2*q+1)*144}")
    a("s_waitcnt vmcnt(0)")
    for q in range(4):
        a(f"ds_write_b16 v4, v{12+q} offset:{(2*q)*144+64}")
        a(f"ds_write_b16_d16_hi v4, v{12+q} offset:{(2*q+1)*144+64}")
    a("s_waitcnt lgkmcnt(0)")
    a("s_barrier")
    a("s_movk_i32 s26, 144")
    a("v_mul_lo_u32 v5, v1, s26")
    a("v_lshl_add_u32 v5, v2, 4, v5")
    a("ds_read_b128 v[8:11], v5")
    a(f"ds_read_b128 v[12:15], v5 offset:{32*144}")
    a("s_lshl_b32 s23, s20, 6")
    a("v_add_u32 v6, s23, v1")
    a("v_mul_lo_u32 v6, v6, s22")
    a("v_lshl_add_u32 v6, v2, 4, v6")
    a("s_lshl_b32 s24, s7, 7")
    a("v_add_u32 v6, s24, v6")
    a("s_lshl_b32 s25, s22, 5")
    a("s_waitcnt lgkmcnt(1)")
    a("buffer_store_dwordx4 v[8:11], v6, s[12:15], 0 offen")
    a("s_waitcnt lgkmcnt(0)")
    a("buffer_store_dwordx4 v[12:15], v6, s[12:15], s25 offen")
    a(f"s_branch {L}_end")
    a.label(f"{L}_pf")
    a(f"s_load_dwordx8 s[28:35], s[0:1], {KA['seq_re']}")
    a("s_sub_u32 s6, s2, 600")
    a("s_waitcnt lgkmcnt(0)")
    a("s_mov_b32 s8, s32")
    a("s_mov_b32 s9, s33")
    a(f"s_mov_b32 s10, {640*640*2}")
    a("s_mov_b32 s11, 0x00020000")
    a("s_cmp_lt_u32 s6, 13")
    a(f"s_cbranch_scc1 {L}_pfgo")
    a("s_sub_u32 s6, s6, 13")
    a("s_mov_b32 s8, s34")
    a("s_mov_b32 s9, s35")
    a.label(f"{L}_pfgo")
    a("s_lshl_b32 s6, s6, 16")
    a("v_lshlrev_b32 v1, 4, v0")
    a("v_add_u32 v1, s6, v1")
    for i in range(16):
        a(f"s_mov_b32 s7, {i*4096}")
        a(f"buffer_load_dwordx4 v[{4+4*i}:{7+4*i}], v1, s[8:11], s7 offen")
    a(f"s_branch {L}_end")
    a.label(f"{L}_ln")
    a(f"s_load_dwordx2 s[4:5], s[0:1], {KA['ws']}")
    a(f"s_load_dwordx2 s[6:7], s[0:1], {KA['x']}")
    a("s_sub_u32 s3, s2, 626")
    a("v_lshrrev_b32 v1, 5, v0")
    a("s_lshl_b32 s3, s3, 3")
    a("v_add_u32 v1, s3, v1")
    a("v_and_b32 v2, 31, v0")
    a("v_lshlrev_b32 v2, 3, v2")
    a("s_movk_i32 s3, 1280")
    a("v_mul_lo_u32 v1, v1, s3")
    a("v_add_u32 v1, v1, v2")
    a("s_waitcnt lgkmcnt(0)")
    NB = S_LEN * D * 2
    srd(a, 8, 6, 7, NB)
    srd(a, 16, 4, 5, NB, WS["h"][0])
    for i in range(5):
        a(f"buffer_load_dwordx2 v[{10+2*i}:{11+2*i}], v1, s[8:11], 0 offen offset:{i*256}")
    a("s_waitcnt vmcnt(0)")
    for k in range(10):
        unpack(a, 20 + 2 * k, 21 + 2 * k, 10 + k)
    ln_core(a, 20, 0, 0, 40, 50, apply=False)
    for i in range(5):
        a(f"buffer_store_dwordx2 v[{40+2*i}:{41+2*i}], v1, s[16:19], 0 offen offset:{i*256}")
    a.label(f"{L}_end")
    a("s_endpgm")
    return kernel_desc(L, 72, 40, 72)


def reduce32(a, v, t):
    a("s_nop 1")
    a(f"v_add_f32_dpp v{t}, v{v}, v{v} quad_perm:[1,0,3,2] row_mask:0xf bank_mask:0xf")
    a("s_nop 1")
    a(f"v_add_f32_dpp v{v}, v{t}, v{t} quad_perm:[2,3,0,1] row_mask:0xf bank_mask:0xf")
    a("s_nop 1")
    a(f"v_add_f32_dpp v{t}, v{v}, v{v} row_half_mirror row_mask:0xf bank_mask:0xf")
    a("s_nop 1")
    a(f"v_add_f32_dpp v{v}, v{t}, v{t} row_mirror row_mask:0xf bank_mask:0xf")
    a(f"ds_swizzle_b32 v{t}, v{v} offset:0x401F")
    a("s_waitcnt lgkmcnt(0)")
    a(f"v_add_f32 v{v}, v{v}, v{t}")


def ln_core(a, X, C1, SH, OUT, T, apply=True):
    s, t, m, r = T, T + 1, T + 2, T + 3
    a(f"v_add_f32 v{s}, v{X}, v{X+1}")
    a(f"v_add_f32 v{t}, v{X+2}, v{X+3}")
    for k in range(4, 20, 2):
        a(f"v_add_f32 v{s}, v{s}, v{X+k}")
        a(f"v_add_f32 v{t}, v{t}, v{X+k+1}")
    a(f"v_add_f32 v{s}, v{s}, v{t}")
    reduce32(a, s, t)
    a(f"v_mul_f32 v{m}, 0x3acccccd, v{s}")
    a(f"v_sub_f32 v{t}, v{X}, v{m}")
    a(f"v_mul_f32 v{s}, v{t}, v{t}")
    a(f"v_sub_f32 v{t}, v{X+1}, v{m}")
    a(f"v_mul_f32 v{r}, v{t}, v{t}")
    for k in range(2, 20, 2):
        a(f"v_sub_f32 v{t}, v{X+k}, v{m}")
        a(f"v_fmac_f32 v{s}, v{t}, v{t}")
        a(f"v_sub_f32 v{t}, v{X+k+1}, v{m}")
        a(f"v_fmac_f32 v{r}, v{t}, v{t}")
    a(f"v_add_f32 v{s}, v{s}, v{r}")
    reduce32(a, s, t)
    a(f"v_mul_f32 v{s}, 0x3acccccd, v{s}")
    a(f"v_cvt_pk_bf16_f32 v{t}, v{m}, v{s}")
    unpack(a, m, s, t)
    a(f"v_add_f32 v{s}, 0x3727c5ac, v{s}")
    a(f"v_cvt_pk_bf16_f32 v{t}, v{s}, v{s}")
    a(f"v_lshlrev_b32 v{s}, 16, v{t}")
    a(f"v_sqrt_f32 v{s}, v{s}")
    a("s_nop 0")
    a(f"v_cvt_pk_bf16_f32 v{t}, v{s}, v{s}")
    a(f"v_lshlrev_b32 v{s}, 16, v{t}")
    a(f"v_rcp_f32 v{r}, v{s}")
    a("s_nop 0")
    u, w = T + 4, T + 5
    for k in range(0, 20, 2):
        a(f"v_sub_f32 v{u}, v{X+k}, v{m}")
        a(f"v_sub_f32 v{w}, v{X+k+1}, v{m}")
        a(f"v_cvt_pk_bf16_f32 v{t}, v{u}, v{w}")
        unpack(a, u, w, t)
        a(f"v_mul_f32 v{u}, v{u}, v{r}")
        a(f"v_mul_f32 v{w}, v{w}, v{r}")
        if not apply:
            a(f"v_cvt_pk_bf16_f32 v{OUT+k//2}, v{u}, v{w}")
            continue
        a(f"v_cvt_pk_bf16_f32 v{t}, v{u}, v{w}")
        unpack(a, u, w, t)
        a(f"v_mul_f32 v{u}, v{u}, v{C1+k}")
        a(f"v_mul_f32 v{w}, v{w}, v{C1+k+1}")
        a(f"v_cvt_pk_bf16_f32 v{t}, v{u}, v{w}")
        unpack(a, u, w, t)
        a(f"v_add_f32 v{u}, v{u}, v{SH+k}")
        a(f"v_add_f32 v{w}, v{w}, v{SH+k+1}")
        a(f"v_cvt_pk_bf16_f32 v{OUT+k//2}, v{u}, v{w}")


def ln_kernel(a, second):
    L = "ln2_kernel" if second else "ln1_kernel"
    kernel_header(a, L)
    if not second:
        a(f"s_cmp_ge_u32 s2, {LN1_WGS}")
        a(f"s_cbranch_scc1 {L}_end")
        a("s_cmp_lt_u32 s2, 256")
        a(f"s_cbranch_scc1 {L}_go")
        a(f"s_load_dwordx4 s[28:31], s[0:1], {KA['seq_re']}")
        a("s_sub_u32 s6, s2, 192")
        a("s_waitcnt lgkmcnt(0)")
        a("s_cmp_ge_u32 s6, 128")
        a("s_cselect_b32 s8, s30, s28")
        a("s_cselect_b32 s9, s31, s29")
        a(f"s_mov_b32 s10, {2048*2048*2}")
        a("s_mov_b32 s11, 0x00020000")
        a("s_and_b32 s6, s6, 127")
        a("s_lshl_b32 s6, s6, 16")
        a("v_lshlrev_b32 v1, 4, v0")
        a("v_add_u32 v1, s6, v1")
        for i in range(16):
            a(f"s_mov_b32 s7, {i*4096}")
            a(f"buffer_load_dwordx4 v[{4+4*i}:{7+4*i}], v1, s[8:11], s7 offen")
        a("s_endpgm")
        a.label(f"{L}_go")
    else:
        a("s_cmp_ge_u32 s2, 256")
        a(f"s_cbranch_scc1 {L}_end")
    a(f"s_load_dwordx2 s[4:5], s[0:1], {KA['ws']}")
    a(f"s_load_dwordx2 s[6:7], s[0:1], {KA['x']}")
    a("s_waitcnt lgkmcnt(0)")
    NB = S_LEN * D * 2
    srd(a, 8, 6, 7, NB)
    srd(a, 12, 4, 5, WS["mod"][1], WS["mod"][0])
    srd(a, 16, 4, 5, NB, WS["h2" if second else "h"][0])
    if second:
        srd(a, 20, 4, 5, NB, WS["y"][0])
        srd(a, 24, 4, 5, NB, WS["y"][0] + NB)
        srd(a, 28, 4, 5, NB, WS["x1"][0])
    a("v_lshrrev_b32 v1, 5, v0")
    a("s_lshl_b32 s3, s2, 3")
    a("v_add_u32 v1, s3, v1")
    a("v_and_b32 v2, 31, v0")
    a("v_lshlrev_b32 v2, 3, v2")
    a("s_movk_i32 s3, 1280")
    a("v_mul_lo_u32 v1, v1, s3")
    a("v_add_u32 v1, v1, v2")
    for i in range(5):
        a(f"buffer_load_dwordx2 v[{10+2*i}:{11+2*i}], v1, s[8:11], 0 offen offset:{i*256}")
    if second:
        for i in range(5):
            a(f"buffer_load_dwordx2 v[{20+2*i}:{21+2*i}], v1, s[20:23], 0 offen offset:{i*256}")
        for i in range(5):
            a(f"buffer_load_dwordx2 v[{30+2*i}:{31+2*i}], v1, s[24:27], 0 offen offset:{i*256}")
        for i in range(5):
            a(f"buffer_load_dwordx2 v[{40+2*i}:{41+2*i}], v2, s[12:15], 0 offen offset:{2*1280+i*256}")
    coff = (4 if second else 1) * 1280
    soff = (3 if second else 0) * 1280
    a(f"s_movk_i32 s3, {coff}")
    for i in range(5):
        a(f"buffer_load_dwordx2 v[{50+2*i}:{51+2*i}], v2, s[12:15], s3 offen offset:{i*256}")
    a(f"s_movk_i32 s32, {soff}")
    for i in range(5):
        a(f"buffer_load_dwordx2 v[{60+2*i}:{61+2*i}], v2, s[12:15], s32 offen offset:{i*256}")
    X, C1, SH, OUT, T = 70, 90, 110, 130, 140
    if second:
        a("s_waitcnt vmcnt(10)")
        for k in range(10):
            unpack(a, T, T + 1, 20 + k)
            unpack(a, T + 2, T + 3, 30 + k)
            a(f"v_sub_f32 v{T}, v{T}, v{T+2}")
            a(f"v_sub_f32 v{T+1}, v{T+1}, v{T+3}")
            a(f"v_cvt_pk_bf16_f32 v{T+4}, v{T}, v{T+1}")
            unpack(a, T, T + 1, T + 4)
            unpack(a, T + 2, T + 3, 40 + k)
            a(f"v_mul_f32 v{T}, v{T}, v{T+2}")
            a(f"v_mul_f32 v{T+1}, v{T+1}, v{T+3}")
            a(f"v_cvt_pk_bf16_f32 v{T+4}, v{T}, v{T+1}")
            unpack(a, T, T + 1, T + 4)
            unpack(a, T + 2, T + 3, 10 + k)
            a(f"v_add_f32 v{T}, v{T}, v{T+2}")
            a(f"v_add_f32 v{T+1}, v{T+1}, v{T+3}")
            a(f"v_cvt_pk_bf16_f32 v{20+k}, v{T}, v{T+1}")
            unpack(a, X + 2 * k, X + 2 * k + 1, 20 + k)
        for i in range(5):
            a(f"buffer_store_dwordx2 v[{20+2*i}:{21+2*i}], v1, s[28:31], 0 offen offset:{i*256}")
        a("s_waitcnt vmcnt(5)")
    else:
        a("s_waitcnt vmcnt(10)")
        for k in range(10):
            unpack(a, X + 2 * k, X + 2 * k + 1, 10 + k)
        a("s_waitcnt vmcnt(0)")
    for k in range(10):
        unpack(a, T, T + 1, 50 + k)
        a(f"v_add_f32 v{T}, 1.0, v{T}")
        a(f"v_add_f32 v{T+1}, 1.0, v{T+1}")
        a(f"v_cvt_pk_bf16_f32 v{T+2}, v{T}, v{T+1}")
        unpack(a, C1 + 2 * k, C1 + 2 * k + 1, T + 2)
        unpack(a, SH + 2 * k, SH + 2 * k + 1, 60 + k)
    ln_core(a, X, C1, SH, OUT, T)
    for i in range(5):
        a(f"buffer_store_dwordx2 v[{OUT+2*i}:{OUT+1+2*i}], v1, s[16:19], 0 offen offset:{i*256}")
    a.label(f"{L}_end")
    a("s_endpgm")
    return kernel_desc(L, 152, 40, 152)


def rowmap(paired_ok, nb, b, i):
    if paired_ok and not (b == nb - 1 and nb % 2 == 1):
        return 32 * (b >> 1) + 8 * (i >> 2) + 4 * (b & 1) + (i & 3)
    return 16 * b + i


def fsw_row(paired_ok, nb, n):
    npair = (nb // 2) * 32 if paired_ok else 0
    if n < npair:
        return 2 * ((n >> 3) & 3) + ((n >> 1) & 1)
    return (n >> 1) & 7


def check_conflicts(paired_ok, nb):
    groups = [[0, 1, 2, 3, 12, 13, 14, 15] + list(range(20, 28)),
              list(range(4, 12)) + [16, 17, 18, 19, 28, 29, 30, 31]]
    groups += [[x + 32 for x in g] for g in groups]
    for b in range(nb):
        for j in range(2):
            for g in groups:
                qs = set()
                for l in g:
                    n = rowmap(paired_ok, nb, b, l & 15)
                    assert fsw_row(paired_ok, nb, n) == ((l & 15) >> 1)
                    addr = n * 128 + ((4 * j) ^ (l >> 4) ^ fsw_row(paired_ok, nb, n)) * 16
                    qs.add((addr // 16) % 16)
                assert len(qs) == 16, (paired_ok, nb, b, j)


def gemm_kernel(a, L, K, BS, BV, BK, ndimS, ksplit, nslot, setup, epilogue, pre_epi=None, nwg=256, stage_hook=None):
    nsb = BS // 16
    check_conflicts(ndimS, nsb)
    check_conflicts(not ndimS, 2)
    kernel_header(a, L)
    a(f"s_cmp_ge_u32 s2, {nwg}")
    a(f"s_cbranch_scc1 {L}_end")
    a("v_lshrrev_b32 v1, 6, v0")
    a("s_nop 0")
    a("v_readfirstlane_b32 s40, v1")
    a("v_and_b32 v1, 63, v0")
    a("v_and_b32 v2, 15, v1")
    a("v_lshrrev_b32 v3, 4, v1")
    ldS, ldV = setup(a)
    nsub = BK // 64
    nst = K // BK
    subS, subV = BS * 128, BV * 128
    slotsz = nsub * (subS + subV)
    NS = min(nslot, nst)
    chunks = [("S", u, r) for u in range(nsub) for r in range(BS // 8)] + \
             [("V", u, r) for u in range(nsub) for r in range(BV // 8)]
    nS = nsub * BS // 8
    assert nS % 4 == 0 and len(chunks) % 4 == 0
    nt = len(chunks) // 4

    def lds_off(op, u, r):
        return (u * subS + r * 1024) if op == "S" else (nsub * subS + u * subV + r * 1024)

    steps = [(u, j) for u in range(nsub) for j in range(2)] if ksplit == 1 else [(u, None) for u in range(nsub)]
    spw = len(steps)
    vDMA = 8
    nj = 2 if ksplit == 1 else 1
    nSA = 2 if (ndimS and nsb % 2 == 1) else 1
    vSA = 8
    vVA = vSA + NS * nSA * nj
    vT = max(vVA + NS * nj, vDMA + nt)
    vF = (vT + 4 + 3) // 4 * 4
    nfr = nsb + 2
    vR = vF + 2 * nfr * 4
    vE = vR + nsb * 8
    vTot = vE + (32 if pre_epi else 0)
    accum = (vTot + 3) // 4 * 4
    nacc = nsb * 2 * 4
    assert accum + nacc <= 256
    sLO = 64
    a("s_cmp_lt_u32 s40, 4")
    a(f"s_cbranch_scc1 {L}_comp")
    a("s_sub_u32 s40, s40, 4")
    a("v_lshrrev_b32 v4, 3, v1")
    a("v_and_b32 v5, 7, v1")
    for t in range(nt):
        ops = [chunks[4 * t + w] for w in range(4)]
        op = ops[0][0]
        assert all(o[0] == op for o in ops)
        ld = ldS if op == "S" else ldV
        rb = [o[2] * 8 for o in ops]
        sb = [o[1] for o in ops]
        lo = [lds_off(*o) for o in ops]
        def sel(dst, vals):
            if all(v == vals[0] + (vals[1] - vals[0]) * k for k, v in enumerate(vals)):
                a(f"s_mul_i32 s{dst}, s40, {vals[1]-vals[0]}")
                a(f"s_add_u32 s{dst}, s{dst}, {vals[0]}")
            else:
                a(f"s_mov_b32 s{dst}, {vals[0]}")
                for w in range(1, 4):
                    a(f"s_cmp_eq_u32 s40, {w}")
                    a(f"s_cselect_b32 s{dst}, {vals[w]}, s{dst}")
        sel(44, rb)
        sel(45, [x * 128 for x in sb])
        sel(sLO + t, lo)
        t0, t1, t2 = vT, vT + 1, vT + 2
        a(f"v_add_u32 v{t0}, s44, v4")
        paired_ok = ndimS if op == "S" else (not ndimS)
        nb = nsb if op == "S" else 2
        if op == "V":
            a(f"v_and_b32 v{t2}, 31, v{t0}")
            nreg = t2
        else:
            nreg = t0
        npair = (nb // 2) * 32 if paired_ok else 0
        a(f"v_bfe_u32 v{t1}, v{nreg}, 1, 3")
        if npair:
            a(f"v_bfe_u32 v{vT+3}, v{nreg}, 3, 2")
            a(f"v_lshlrev_b32 v6, 1, v{vT+3}")
            a(f"v_bfe_u32 v7, v{nreg}, 1, 1")
            a(f"v_or_b32 v6, v6, v7")
            if npair < nb * 16:
                a(f"v_cmp_gt_u32 vcc, {npair}, v{nreg}")
                a("s_nop 1")
                a(f"v_cndmask_b32 v{t1}, v{t1}, v6, vcc")
            else:
                a(f"v_mov_b32 v{t1}, v6")
        a(f"v_xor_b32 v{t1}, v{t1}, v5")
        a(f"s_movk_i32 s46, {ld}")
        a(f"v_mul_lo_u32 v{t0}, v{t0}, s46")
        a(f"v_lshl_add_u32 v{t0}, v{t1}, 4, v{t0}")
        a(f"v_add_u32 v{vDMA+t}, s45, v{t0}")
    q = []

    def vm_wait_for(tag):
        last = -1
        for idx, t in enumerate(q):
            if t == tag:
                last = idx
        return min(len(q) - 1 - last, 63)

    def issue(s):
        slot = s % NS
        a(f"s_movk_i32 s46, {s*BK*2}")
        for t in range(nt):
            op = chunks[4 * t][0]
            a(f"s_add_u32 m0, s{sLO+t}, {slot*slotsz}")
            a("s_nop 0")
            sr = "s[8:11]" if op == "S" else "s[12:15]"
            a(f"buffer_load_dwordx4 v{vDMA+t}, {sr}, s46 offen lds")
            q.append(s)

    for s in range(NS):
        issue(s)
    a(f"s_waitcnt vmcnt({vm_wait_for(0)})")
    a("s_barrier")
    for s in range(nst - 1):
        a(f"s_waitcnt vmcnt({vm_wait_for(s+1)})")
        a("s_barrier")
        if s + NS < nst:
            issue(s + NS)
    a("s_endpgm")
    a.label(f"{L}_comp")
    if ksplit == 2:
        a("s_and_b32 s42, s40, 1")
        a("s_lshr_b32 s43, s40, 1")
    else:
        a("s_mov_b32 s42, s40")
        a("s_mov_b32 s43, 0")
    a("v_lshrrev_b32 v4, 1, v2")
    a("v_xor_b32 v4, v4, v3")
    if ksplit == 2:
        a("s_lshl_b32 s46, s43, 2")
        a("v_xor_b32 v4, s46, v4")
    a("v_and_b32 v5, 12, v2")
    a("v_lshlrev_b32 v5, 1, v5")
    a("v_and_b32 v6, 3, v2")
    a("v_or_b32 v5, v5, v6")
    def addr_regs(dst_fn, rowreg, extra_sgpr=None):
        for j in range(nj):
            a(f"v_xor_b32 v6, {4*j}, v4")
            a(f"v_lshlrev_b32 v6, 4, v6")
            a(f"v_lshl_add_u32 v6, v{rowreg}, 7, v6")
            if extra_sgpr is not None:
                a(f"v_add_u32 v6, s{extra_sgpr}, v6")
            for sl in range(NS):
                a(f"v_add_u32 v{dst_fn(sl, j)}, {sl*slotsz}, v6")
    saddr = lambda kind, sl, j: vSA + (sl * nSA + kind) * nj + j
    vaddr = lambda sl, j: vVA + sl * nj + j
    addr_regs(lambda sl, j: saddr(0, sl, j), 5 if ndimS else 2)
    if nSA == 2:
        addr_regs(lambda sl, j: saddr(1, sl, j), 2)
    a(f"s_lshl_b32 s46, s42, 12")
    a(f"s_add_u32 s46, s46, {nsub*subS}")
    addr_regs(vaddr, 2 if ndimS else 5, 46)
    if pre_epi:
        pre_epi(a, vE)

    def frag_reads(s, k, buf):
        slot = s % NS
        u, j = steps[k]
        jj = j if j is not None else 0
        for vb in range(2):
            r = vF + (buf * nfr + nsb + vb) * 4
            off = u * subV + (rowmap(not ndimS, 2, vb, 0)) * 128
            a(f"ds_read_b128 v[{r}:{r+3}], v{vaddr(slot, jj)} offset:{off}")
        for b in range(nsb):
            r = vF + (buf * nfr + b) * 4
            left = ndimS and nsb % 2 == 1 and b == nsb - 1
            off = u * subS + rowmap(ndimS, nsb, b, 0) * 128
            a(f"ds_read_b128 v[{r}:{r+3}], v{saddr(1 if left else 0, slot, jj)} offset:{off}")

    def mfmas(buf, first):
        for b in range(nsb):
            for vb in range(2):
                ar = (b * 2 + vb) * 4
                sf = vF + (buf * nfr + b) * 4
                vf = vF + (buf * nfr + nsb + vb) * 4
                A, B = (sf, vf) if ndimS else (vf, sf)
                c = "0" if first else f"a[{ar}:{ar+3}]"
                a(f"v_mfma_f32_16x16x32_bf16 a[{ar}:{ar+3}], v[{A}:{A+3}], v[{B}:{B+3}], {c}")

    step = 0
    a("s_barrier")
    frag_reads(0, 0, 0)
    for s in range(nst):
        if stage_hook:
            stage_hook(a, s, vE)
        for k in range(spw):
            buf = step & 1
            last = k == spw - 1
            if not last:
                frag_reads(s, k + 1, buf ^ 1)
                a(f"s_waitcnt lgkmcnt({nfr})")
            else:
                a("s_waitcnt lgkmcnt(0)")
                if s + 1 < nst:
                    a("s_barrier")
                    frag_reads(s + 1, 0, buf ^ 1)
            mfmas(buf, step == 0)
            step += 1
    a("s_nop 7")
    a("s_nop 7")
    if ksplit == 2:
        a("s_barrier")
        a("v_lshlrev_b32 v4, 4, v1")
        a(f"s_mul_i32 s46, s42, {nsb*2*1024}")
        a("v_add_u32 v4, s46, v4")
        a("s_cmp_lt_u32 s40, 2")
        a(f"s_cbranch_scc1 {L}_red")
        for k in range(nsb * 2):
            a(f"ds_write_b128 v4, a[{4*k}:{4*k+3}] offset:{k*1024}")
        a("s_waitcnt lgkmcnt(0)")
        a("s_barrier")
        a(f"s_branch {L}_end")
        a.label(f"{L}_red")
        a("s_barrier")
        for k in range(nsb * 2):
            a(f"ds_read_b128 v[{vR+4*k}:{vR+4*k+3}], v4 offset:{k*1024}")
        a("s_waitcnt lgkmcnt(0)")
        for k in range(nsb * 2 * 4):
            a(f"v_accvgpr_read_b32 v{vF+(k&7)}, a{k}")
            a(f"v_add_f32 v{vR+k}, v{vR+k}, v{vF+(k&7)}")
    else:
        for k in range(nsb * 2 * 4):
            a(f"v_accvgpr_read_b32 v{vR+k}, a{k}")
    a("s_waitcnt vmcnt(0)")
    epilogue(a, vR, vF, vE, nsb)
    a.label(f"{L}_end")
    a("s_endpgm")
    lds = max(NS * slotsz, (2 * nsb * 2 * 1024) if ksplit == 2 else 0)
    assert lds <= 163840, lds
    return kernel_desc(L, accum + nacc, 96, accum), lds


def gemma2_kernel(a):
    L = "gemma_kernel"
    K, NS = 640, 4
    nst = 10
    VB = 0
    SB = 81920
    slotsz = 160 * 128
    kernel_header(a, L)
    a("s_cmp_ge_u32 s2, 256")
    a(f"s_cbranch_scc1 {L}_end")
    a(f"s_load_dwordx2 s[48:49], s[0:1], {KA['ws']}")
    a(f"s_load_dwordx4 s[52:55], s[0:1], {KA['hid_re']}")
    a("v_lshrrev_b32 v1, 6, v0")
    a("s_nop 0")
    a("v_readfirstlane_b32 s40, v1")
    a("v_and_b32 v1, 63, v0")
    a("v_and_b32 v2, 15, v1")
    a("v_lshrrev_b32 v3, 4, v1")
    a("s_and_b32 s3, s2, 7")
    a("s_lshr_b32 s4, s2, 3")
    a("s_and_b32 s5, s3, 1")
    a("s_lshl_b32 s5, s5, 2")
    a("s_and_b32 s6, s4, 3")
    a("s_add_u32 s5, s5, s6")
    a("s_lshr_b32 s6, s3, 1")
    a("s_lshl_b32 s6, s6, 3")
    a("s_lshr_b32 s7, s4, 2")
    a("s_add_u32 s6, s6, s7")
    a("s_lshl_b32 s44, s40, 3")
    a("v_add_u32 v4, s44, v3")
    a("s_movk_i32 s45, 1280")
    a("v_mul_lo_u32 v5, v4, s45")
    a("v_lshl_add_u32 v5, v2, 4, v5")
    a("v_lshlrev_b32 v6, 4, v2")
    a("s_waitcnt lgkmcnt(0)")
    a("s_cmp_ge_u32 s5, 4")
    a("s_cselect_b32 s8, s54, s52")
    a("s_cselect_b32 s9, s55, s53")
    a(f"s_mov_b32 s10, {160*1280}")
    a("s_mov_b32 s11, 0x00020000")
    a("s_and_b32 s7, s5, 3")
    a(f"s_mul_i32 s7, s7, {160*1280}")
    srd_add(a, 8, 7)
    srd(a, 12, 48, 49, 64 * 1280, WS["h"][0])
    a(f"s_mul_i32 s7, s6, {64*1280}")
    srd_add(a, 12, 7)
    srd(a, 20, 48, 49, WS["mod"][1], WS["mod"][0])
    a("s_movk_i32 s45, 5120")
    for rp in range(2):
        for k in range(5):
            r = 16 + (rp * 5 + k) * 4
            so = "s45" if rp else "0"
            a(f"buffer_load_dwordx4 v[{r}:{r+3}], v5, s[12:15], {so} offen offset:{k*256}")
    for k in range(5):
        a(f"buffer_load_dwordx4 v[{56+4*k}:{59+4*k}], v6, s[20:23], 0 offen offset:{1280+k*256}")
    for k in range(5):
        a(f"buffer_load_dwordx4 v[{76+4*k}:{79+4*k}], v6, s[20:23], 0 offen offset:{k*256}")
    srd(a, 16, 48, 49, 160 * 4096, WS["abt"][0])
    a(f"s_mul_i32 s7, s5, {160*4096}")
    srd_add(a, 16, 7)
    a("s_lshl_b32 s7, s6, 7")
    srd_add(a, 16, 7)
    a("s_and_b32 s41, s40, 3")
    a("v_lshrrev_b32 v8, 3, v1")
    a("v_and_b32 v9, 7, v1")
    a("v_xor_b32 v9, v9, v3")
    a("s_and_b32 s44, s41, 1")
    a("s_lshl_b32 s44, s44, 2")
    a("v_xor_b32 v9, s44, v9")
    a("s_lshl_b32 s44, s41, 3")
    a("v_add_u32 v8, s44, v8")
    a("s_movk_i32 s45, 1280")
    a("v_mul_lo_u32 v8, v8, s45")
    a("v_lshl_add_u32 v8, v9, 4, v8")
    a("s_lshl_b32 s42, s41, 10")
    a(f"s_add_u32 s42, s42, {SB}")
    a("s_cmp_lt_u32 s40, 4")
    a(f"s_cbranch_scc1 {L}_p0")

    def issue(s):
        for t in range(5):
            a(f"s_add_u32 m0, s42, {(s % NS)*slotsz + t*4096}")
            a(f"s_mov_b32 s46, {s*128 + t*32*1280}")
            a("buffer_load_dwordx4 v8, s[8:11], s46 offen lds")
    for s in range(NS):
        issue(s)
    a("s_waitcnt vmcnt(20)")
    a(f"s_branch {L}_p0b")
    a.label(f"{L}_p0")
    a("s_waitcnt vmcnt(0)")
    a.label(f"{L}_p0b")
    a("v_lshrrev_b32 v10, 1, v3")
    a("s_and_b32 s44, s40, 3")
    a("s_lshl_b32 s44, s44, 1")
    a("v_or_b32 v10, s44, v10")
    a("v_and_b32 v11, 7, v2")
    a("v_xor_b32 v10, v10, v11")
    a("v_lshlrev_b32 v10, 4, v10")
    a("v_lshl_add_u32 v10, v4, 7, v10")
    a("v_lshrrev_b32 v11, 3, v2")
    a("v_lshl_add_u32 v10, v11, 13, v10")
    a("v_add_u32 v11, 0x8000, v10")
    T = 96
    for k in range(5):
        for q in range(4):
            unpack(a, T, T + 1, 56 + 4 * k + q)
            a(f"v_add_f32 v{T}, 1.0, v{T}")
            a(f"v_add_f32 v{T+1}, 1.0, v{T+1}")
            a(f"v_cvt_pk_bf16_f32 v{T+6}, v{T}, v{T+1}")
            unpack(a, T, T + 1, T + 6)
            unpack(a, T + 2, T + 3, 76 + 4 * k + q)
            for rp in range(2):
                r = 16 + (rp * 5 + k) * 4 + q
                unpack(a, T + 4, T + 5, r)
                a(f"v_mul_f32 v{T+4}, v{T+4}, v{T}")
                a(f"v_mul_f32 v{T+5}, v{T+5}, v{T+1}")
                a(f"v_cvt_pk_bf16_f32 v{T+6}, v{T+4}, v{T+5}")
                unpack(a, T + 4, T + 5, T + 6)
                a(f"v_add_f32 v{T+4}, v{T+4}, v{T+2}")
                a(f"v_add_f32 v{T+5}, v{T+5}, v{T+3}")
                a(f"v_cvt_pk_bf16_f32 v{r}, v{T+4}, v{T+5}")
        for rp in range(2):
            r = 16 + (rp * 5 + k) * 4
            off = k * 16384 + rp * 512
            areg = 10
            if off >= 32768:
                off -= 32768
                areg = 11
            a(f"ds_write_b128 v{areg}, v[{r}:{r+3}] offset:{off}")
    a("s_cmp_lt_u32 s40, 4")
    a(f"s_cbranch_scc1 {L}_comp")
    a("s_waitcnt vmcnt(15) lgkmcnt(0)")
    a("s_barrier")
    for s in range(nst - 1):
        out = min(NS - 1, nst - 2 - s) - 0
        issued = min(nst, NS + s)
        a(f"s_waitcnt vmcnt({(issued - (s + 2)) * 5})")
        a("s_barrier")
        if s + NS < nst:
            issue(s + NS)
    a("s_endpgm")
    a.label(f"{L}_comp")
    a("s_and_b32 s42, s40, 1")
    a("s_lshr_b32 s43, s40, 1")
    a("v_lshrrev_b32 v4, 1, v2")
    a("v_xor_b32 v4, v4, v3")
    a("v_and_b32 v5, 12, v2")
    a("v_lshlrev_b32 v5, 1, v5")
    a("v_and_b32 v6, 3, v2")
    a("v_or_b32 v5, v5, v6")
    vSA, vVA = 8, 16
    a(f"s_mul_i32 s44, s42, {80*128}")
    a(f"s_add_u32 s44, s44, {SB}")
    a(f"s_lshl_b32 s45, s43, 12")
    for j in range(2):
        a(f"v_xor_b32 v6, {4*j}, v4")
        a("v_lshlrev_b32 v6, 4, v6")
        a("v_lshl_add_u32 v7, v2, 7, v6")
        a("v_add_u32 v7, s44, v7")
        for sl in range(NS):
            a(f"v_add_u32 v{vSA+sl*2+j}, {sl*slotsz}, v7")
        a("v_lshl_add_u32 v7, v5, 7, v6")
        a(f"v_add_u32 v{vVA+j}, s45, v7")
        a(f"v_add_u32 v{vVA+2+j}, 0xa000, v{vVA+j}")
    vF = 24
    nfr = 7
    vR = vF + 2 * nfr * 4

    def frag_reads(s, j, buf):
        for vb in range(2):
            r = vF + (buf * nfr + 5 + vb) * 4
            hi = s >= 5
            off = (s - 5 * hi) * 8192 + vb * 512
            a(f"ds_read_b128 v[{r}:{r+3}], v{vVA+2*hi+j} offset:{off}")
        for b in range(5):
            r = vF + (buf * nfr + b) * 4
            a(f"ds_read_b128 v[{r}:{r+3}], v{vSA+(s%NS)*2+j} offset:{b*2048}")

    def mfmas(buf, first):
        for b in range(5):
            for vb in range(2):
                ar = (b * 2 + vb) * 4
                sf = vF + (buf * nfr + b) * 4
                vf = vF + (buf * nfr + 5 + vb) * 4
                c = "0" if first else f"a[{ar}:{ar+3}]"
                a(f"v_mfma_f32_16x16x32_bf16 a[{ar}:{ar+3}], v[{vf}:{vf+3}], v[{sf}:{sf+3}], {c}")

    a("s_waitcnt lgkmcnt(0)")
    a("s_barrier")
    frag_reads(0, 0, 0)
    step = 0
    for s in range(nst):
        for j in range(2):
            buf = step & 1
            if j == 0:
                frag_reads(s, 1, buf ^ 1)
                a(f"s_waitcnt lgkmcnt({nfr})")
            else:
                a("s_waitcnt lgkmcnt(0)")
                if s + 1 < nst:
                    a("s_barrier")
                    frag_reads(s + 1, 0, buf ^ 1)
            mfmas(buf, step == 0)
            step += 1
    a("s_nop 7")
    a("s_nop 7")
    a("s_mul_i32 s44, s42, 80")
    a("v_add_u32 v4, s44, v2")
    a("v_lshlrev_b32 v4, 12, v4")
    a("v_lshl_add_u32 v4, v3, 4, v4")
    a("s_lshl_b32 s46, s43, 6")
    a("v_add_u32 v4, s46, v4")
    for b in range(5):
        o = vR + b * 4
        for k in range(4):
            a(f"v_accvgpr_read_b32 v{vF}, a{b*8+2*k}")
            a(f"v_accvgpr_read_b32 v{vF+1}, a{b*8+2*k+1}")
            a(f"v_cvt_pk_bf16_f32 v{o+k}, v{vF}, v{vF+1}")
        a(f"s_mov_b32 s46, {b*16*4096}")
        a(f"buffer_store_dwordx4 v[{o}:{o+3}], v4, s[16:19], s46 offen")
    a.label(f"{L}_end")
    a("s_endpgm")
    return kernel_desc(L, 120 + 40, 64, 120), 163840


def load_ptrs(a, names):
    for k, nm in enumerate(names):
        a(f"s_load_dwordx2 s[{48+2*k}:{49+2*k}], s[0:1], {KA[nm]}")
    a("s_waitcnt lgkmcnt(0)")


def setup_A(a):
    load_ptrs(a, ["ws", "hid_re", "hid_im"])
    a("s_and_b32 s3, s2, 7")
    a("s_lshr_b32 s4, s2, 3")
    a("s_and_b32 s5, s3, 3")
    a("s_lshl_b32 s5, s5, 2")
    a("s_and_b32 s6, s4, 3")
    a("s_add_u32 s5, s5, s6")
    a("s_lshr_b32 s6, s3, 2")
    a("s_lshl_b32 s6, s6, 3")
    a("s_lshr_b32 s7, s4, 2")
    a("s_add_u32 s6, s6, s7")
    a("s_cmp_ge_u32 s5, 8")
    a("s_cselect_b32 s8, s52, s50")
    a("s_cselect_b32 s9, s53, s51")
    a(f"s_mov_b32 s10, {80*1280}")
    a("s_mov_b32 s11, 0x00020000")
    a("s_and_b32 s7, s5, 7")
    a(f"s_mul_i32 s7, s7, {80*1280}")
    srd_add(a, 8, 7)
    srd(a, 12, 48, 49, 128 * 1280, WS["h"][0])
    a(f"s_mul_i32 s7, s6, {128*1280}")
    srd_add(a, 12, 7)
    srd(a, 16, 48, 49, 80 * 4096, WS["abt"][0])
    a(f"s_mul_i32 s7, s5, {80*4096}")
    srd_add(a, 16, 7)
    a("s_lshl_b32 s7, s6, 8")
    srd_add(a, 16, 7)
    return 1280, 1280


def pre_A(a, vE):
    a(f"s_load_dwordx4 s[56:59], s[0:1], {KA['seq_re']}")
    a("s_and_b32 s36, s2, 127")
    a("s_lshl_b32 s36, s36, 16")
    a("s_lshl_b32 s37, s40, 14")
    a("s_add_u32 s36, s36, s37")
    a("v_lshlrev_b32 v4, 4, v1")
    a("v_add_u32 v4, s36, v4")
    a("s_waitcnt lgkmcnt(0)")
    a("s_cmp_ge_u32 s2, 128")
    a("s_cselect_b32 s60, s58, s56")
    a("s_cselect_b32 s61, s59, s57")
    a(f"s_mov_b32 s62, {2048*2048*2}")
    a("s_mov_b32 s63, 0x00020000")
    for i in range(16):
        a(f"s_mov_b32 s37, {(i//4)*4096}")
        a(f"buffer_load_dwordx4 v[{vE+4*(i&7)}:{vE+4*(i&7)+3}], v4, s[60:63], s37 offen offset:{(i%4)*1024}")
    return 16


def epi_A(a, vR, vF, vE, nsb):
    a("v_lshlrev_b32 v4, 12, v2")
    a("v_lshl_add_u32 v4, v3, 4, v4")
    a("s_lshl_b32 s46, s40, 6")
    a("v_add_u32 v4, s46, v4")
    for b in range(nsb):
        r = vR + b * 8
        o = vF + (b & 1) * 4
        for k in range(4):
            a(f"v_cvt_pk_bf16_f32 v{o+k}, v{r+2*k}, v{r+2*k+1}")
        a(f"s_mov_b32 s46, {b*16*4096}")
        a(f"buffer_store_dwordx4 v[{o}:{o+3}], v4, s[16:19], s46 offen")


def setup_B(a):
    load_ptrs(a, ["ws", "seq_re", "seq_im"])
    a("s_and_b32 s3, s2, 7")
    a("s_lshr_b32 s4, s2, 3")
    a("s_and_b32 s5, s3, 1")
    a("s_lshr_b32 s6, s3, 1")
    a("s_lshl_b32 s6, s6, 2")
    a("s_and_b32 s7, s4, 3")
    a("s_add_u32 s6, s6, s7")
    a("s_lshr_b32 s7, s4, 2")
    srd(a, 8, 48, 49, 80 * 4096, WS["abt"][0])
    a(f"s_mul_i32 s20, s5, {640*4096}")
    a(f"s_mul_i32 s21, s7, {80*4096}")
    a("s_add_u32 s20, s20, s21")
    srd_add(a, 8, 20)
    a("s_cmp_eq_u32 s5, 1")
    a("s_cselect_b32 s12, s52, s50")
    a("s_cselect_b32 s13, s53, s51")
    a(f"s_mov_b32 s14, {128*4096}")
    a("s_mov_b32 s15, 0x00020000")
    a(f"s_mul_i32 s20, s6, {128*4096}")
    srd_add(a, 12, 20)
    srd(a, 16, 48, 49, 128 * 1280, WS["y"][0])
    a(f"s_mul_i32 s20, s5, {2048*1280}")
    a(f"s_mul_i32 s21, s6, {128*1280}")
    a("s_add_u32 s20, s20, s21")
    a("s_mul_i32 s21, s7, 160")
    a("s_add_u32 s20, s20, s21")
    srd_add(a, 16, 20)
    return 4096, 4096


PFD = 13


def pre_B(a, vE):
    a("s_lshl_b32 s58, s7, 4")
    a("s_lshl_b32 s59, s40, 2")
    a("s_add_u32 s58, s58, s59")
    a("v_add_u32 v7, s58, v3")
    a("v_lshlrev_b32 v7, 12, v7")
    a("v_lshl_add_u32 v7, v2, 4, v7")
    for i in range(3, 3 + PFD):
        a(f"buffer_load_dwordx4 v[{vE+4*(i&7)}:{vE+4*(i&7)+3}], v7, s[12:15], 0 offen offset:{i*256}")
    return 16


def stage_hook_B(a, s, vE):
    i = s + 3 + PFD
    if i < 16:
        a(f"buffer_load_dwordx4 v[{vE+4*(i&7)}:{vE+4*(i&7)+3}], v7, s[12:15], 0 offen offset:{i*256}")


def make_epi_S(ldo, relu=False, resid=False):
    def epi(a, vR, vF, vE, nsb):
        a("s_lshl_b32 s46, s42, 5")
        a("v_add_u32 v4, s46, v2")
        a(f"s_movk_i32 s46, {ldo}")
        a("v_mul_lo_u32 v4, v4, s46")
        a("v_lshl_add_u32 v5, v3, 3, v4")
        a("v_lshl_add_u32 v4, v3, 4, v4")
        a(f"s_mov_b32 s47, {16*ldo}")
        if resid:
            pass
        cnt = 0
        for vb in range(2):
            so = "s47" if vb else "0"
            for p in range((nsb + 1) // 2):
                full = 2 * p + 1 < nsb
                nreg = 4 if full else 2
                o = vF + (cnt & 3) * 4
                cnt += 1
                xr = vE + 12 + vb * 10 + p * 4
                for k in range(nreg):
                    b = 2 * p + (k >> 1)
                    r = vR + (b * 2 + vb) * 4 + (k & 1) * 2
                    if relu:
                        a(f"v_max_f32 v{r}, 0, v{r}")
                        a(f"v_max_f32 v{r+1}, 0, v{r+1}")
                    a(f"v_cvt_pk_bf16_f32 v{o+k}, v{r}, v{r+1}")
                if resid:
                    t = vF + 24
                    for k in range(nreg):
                        unpack(a, t, t + 1, o + k)
                        unpack(a, t + 2, t + 3, vE + p * 4 + k)
                        a(f"v_mul_f32 v{t}, v{t}, v{t+2}")
                        a(f"v_mul_f32 v{t+1}, v{t+1}, v{t+3}")
                        a(f"v_cvt_pk_bf16_f32 v{t+4}, v{t}, v{t+1}")
                        unpack(a, t, t + 1, t + 4)
                        unpack(a, t + 2, t + 3, xr + k)
                        a(f"v_add_f32 v{t}, v{t}, v{t+2}")
                        a(f"v_add_f32 v{t+1}, v{t+1}, v{t+3}")
                        a(f"v_cvt_pk_bf16_f32 v{o+k}, v{t}, v{t+1}")
                a(f"buffer_store_dwordx{nreg} v[{o}:{o+nreg-1}], v{4 if full else 5}, s[16:19], {so} offen offset:{p*64}")
    return epi


def setup_C(a):
    load_ptrs(a, ["ws"])
    a("s_and_b32 s3, s2, 7")
    a("s_lshr_b32 s4, s2, 3")
    a("s_and_b32 s5, s3, 3")
    a("s_lshl_b32 s5, s5, 2")
    a("s_and_b32 s6, s4, 3")
    a("s_add_u32 s5, s5, s6")
    a("s_lshr_b32 s6, s3, 2")
    a("s_lshl_b32 s6, s6, 3")
    a("s_lshr_b32 s7, s4, 2")
    a("s_add_u32 s6, s6, s7")
    srd(a, 8, 48, 49, 96 * 1280, WS["w1t"][0])
    a(f"s_mul_i32 s20, s5, {96*1280}")
    srd_add(a, 8, 20)
    srd(a, 12, 48, 49, 128 * 1280, WS["h2"][0])
    a(f"s_mul_i32 s20, s6, {128*1280}")
    srd_add(a, 12, 20)
    srd(a, 16, 48, 49, 128 * 3072, WS["h1"][0])
    a(f"s_mul_i32 s20, s6, {128*3072}")
    a("s_mul_i32 s21, s5, 192")
    a("s_add_u32 s20, s20, s21")
    srd_add(a, 16, 20)
    return 1280, 1280


def setup_D(a):
    load_ptrs(a, ["ws", "out"])
    a("s_and_b32 s3, s2, 7")
    a("s_lshr_b32 s4, s2, 3")
    a("s_and_b32 s5, s3, 1")
    a("s_lshl_b32 s5, s5, 2")
    a("s_and_b32 s6, s4, 3")
    a("s_add_u32 s5, s5, s6")
    a("s_lshr_b32 s6, s3, 1")
    a("s_lshl_b32 s6, s6, 3")
    a("s_lshr_b32 s7, s4, 2")
    a("s_add_u32 s6, s6, s7")
    srd(a, 8, 48, 49, 80 * 3072, WS["w2t"][0])
    a(f"s_mul_i32 s20, s5, {80*3072}")
    srd_add(a, 8, 20)
    srd(a, 12, 48, 49, 64 * 3072, WS["h1"][0])
    a(f"s_mul_i32 s20, s6, {64*3072}")
    srd_add(a, 12, 20)
    a(f"s_mul_i32 s28, s6, {64*1280}")
    a("s_mul_i32 s29, s5, 160")
    a("s_add_u32 s30, s28, s29")
    srd(a, 16, 50, 51, 64 * 1280 - 0)
    srd_add(a, 16, 30)
    srd(a, 20, 48, 49, 64 * 1280, WS["x1"][0])
    srd_add(a, 20, 30)
    srd(a, 24, 48, 49, 160, WS["mod"][0] + 5 * 1280)
    srd_add(a, 24, 29)
    return 3072, 3072


def pre_epi_D(a, vE):
    a("v_lshlrev_b32 v4, 4, v3")
    a("v_lshlrev_b32 v5, 3, v3")
    a(f"buffer_load_dwordx4 v[{vE}:{vE+3}], v4, s[24:27], 0 offen")
    a(f"buffer_load_dwordx4 v[{vE+4}:{vE+7}], v4, s[24:27], 0 offen offset:64")
    a(f"buffer_load_dwordx2 v[{vE+8}:{vE+9}], v5, s[24:27], 0 offen offset:128")
    a("s_lshl_b32 s46, s42, 5")
    a("v_add_u32 v4, s46, v2")
    a("s_movk_i32 s46, 1280")
    a("v_mul_lo_u32 v4, v4, s46")
    a("v_lshl_add_u32 v5, v3, 3, v4")
    a("v_lshl_add_u32 v4, v3, 4, v4")
    a(f"s_movk_i32 s47, {16*1280}")
    for vb in range(2):
        so = "s47" if vb else "0"
        r = vE + 12 + vb * 10
        a(f"buffer_load_dwordx4 v[{r}:{r+3}], v4, s[20:23], {so} offen")
        a(f"buffer_load_dwordx4 v[{r+4}:{r+7}], v4, s[20:23], {so} offen offset:64")
        a(f"buffer_load_dwordx2 v[{r+8}:{r+9}], v5, s[20:23], {so} offen offset:128")
    return 9


def main():
    a = Asm()
    descs = []
    launches = []
    descs.append(prep_kernel(a)); launches.append(("prep_kernel", PREP_WGS, 256, 10240))
    d, lds = gemma2_kernel(a)
    descs.append(d); launches.append(("gemma_kernel", 256, 512, lds))
    d, lds = gemm_kernel(a, "gemmb_kernel", 2048, 80, 128, 128, True, 1, 3, setup_B, make_epi_S(1280), pre_epi=pre_B, stage_hook=stage_hook_B)
    descs.append(d); launches.append(("gemmb_kernel", 256, 512, lds))
    descs.append(ln_kernel(a, True)); launches.append(("ln2_kernel", 256, 256, 0))
    d, lds = gemm_kernel(a, "gemmc_kernel", 640, 96, 128, 64, True, 1, 5, setup_C, make_epi_S(3072, relu=True))
    descs.append(d); launches.append(("gemmc_kernel", 256, 512, lds))
    d, lds = gemm_kernel(a, "gemmd_kernel", 1536, 80, 64, 128, True, 2, 4, setup_D, make_epi_S(1280, resid=True),
                         pre_epi=pre_epi_D)
    descs.append(d); launches.append(("gemmd_kernel", 256, 512, lds))

    hdr = open(f"cdna_kernels/{NAME}.s.ref").read().split("\n")
    out = []
    for ln in hdr:
        if ln.startswith(";") and "@launch" not in ln and "Override" not in ln and "grid=ceil" not in ln:
            out.append(ln)
        elif not ln.startswith(";"):
            break
    for k, g, b, lds in launches:
        out.append(f"; @launch kernel={k} grid=({g},1,1) block=({b},1,1) lds={lds}")
    out.append('.amdgcn_target "amdgcn-amd-amdhsa--gfx950"')
    out.append(".text")
    txt = "\n".join(out) + "\n" + a.text()
    txt += '.section .rodata,"a"\n'
    for d in descs:
        txt += ".p2align 6\n" + d
    path = sys.argv[1] if len(sys.argv) > 1 else f"cdna_kernels/{NAME}.s"
    open(path, "w").write(txt)
    print("wrote", path, len(txt), "bytes")


if __name__ == "__main__":
    main()
```

```python
import sys

NAME = "adaLN_cond__spectral_fnet__dense_activation_relu__prompt"
S_LEN, D, DFF = 2048, 640, 1536

KA = dict(x=0, seq_re=8, seq_im=16, hid_re=24, hid_im=32, bx=40, w1=48, w2=56, c=64, wmod=72,
          out=80, dbg=88, ws=96)

def _al(x, a=0x10000):
    return (x + a - 1) // a * a
WS = {}
_o = 0
for nm, sz in [("mod", 3840 * 2), ("w1t", DFF * D * 2), ("w2t", D * DFF * 2), ("h", S_LEN * D * 2),
               ("abt", 2 * D * S_LEN * 2), ("y", 2 * S_LEN * D * 2), ("x1", S_LEN * D * 2),
               ("h2", S_LEN * D * 2), ("h1", S_LEN * DFF * 2)]:
    WS[nm] = (_o, sz)
    _o = _al(_o + sz)


PREP_WGS = 120 + 26 + 256
LN2_WGS = 256 + 480
LN1_WGS = 256


class Asm:
    def __init__(self):
        self.lines = []

    def __call__(self, s):
        import re
        m = re.search(r"offset:(\d+)", s)
        if m and s.startswith("buffer_"):
            assert int(m.group(1)) <= 4095, s
        if m and s.startswith("ds_"):
            assert int(m.group(1)) <= 65535, s
        self.lines.append("    " + s)

    def label(self, s):
        self.lines.append(s + ":")

    def raw(self, s):
        self.lines.append(s)

    def text(self):
        return "\n".join(self.lines) + "\n"


def srd(a, sreg, base_lo, base_hi, nbytes, add=0):
    if add:
        a(f"s_add_u32 s{sreg}, s{base_lo}, {add}")
        a(f"s_addc_u32 s{sreg+1}, s{base_hi}, 0")
    else:
        a(f"s_mov_b32 s{sreg}, s{base_lo}")
        a(f"s_mov_b32 s{sreg+1}, s{base_hi}")
    a(f"s_mov_b32 s{sreg+2}, {nbytes}")
    a(f"s_mov_b32 s{sreg+3}, 0x00020000")


def srd_add(a, sreg, soff):
    a(f"s_add_u32 s{sreg}, s{sreg}, s{soff}")
    a(f"s_addc_u32 s{sreg+1}, s{sreg+1}, 0")


def kernel_header(a, label):
    a.raw(f".globl {label}")
    a.raw(".p2align 8")
    a.raw(f".type {label},@function")
    a.label(label)


def kernel_desc(label, nvgpr, nsgpr, accum):
    return f""".amdhsa_kernel {label}
  .amdhsa_next_free_vgpr {nvgpr}
  .amdhsa_next_free_sgpr {nsgpr}
  .amdhsa_accum_offset {accum}
  .amdhsa_group_segment_fixed_size 0
  .amdhsa_kernarg_size 104
  .amdhsa_user_sgpr_count 2
  .amdhsa_user_sgpr_kernarg_segment_ptr 1
  .amdhsa_system_sgpr_workgroup_id_x 1
  .amdhsa_float_denorm_mode_32 3
  .amdhsa_float_denorm_mode_16_64 3
.end_amdhsa_kernel
"""


def unpack(a, lo, hi, src):
    a(f"v_lshlrev_b32 v{lo}, 16, v{src}")
    a(f"v_and_b32 v{hi}, 0xffff0000, v{src}")


def transpose_body(a, L, base):
    a.label(f"{L}_tr")
    a(f"s_load_dwordx2 s[4:5], s[0:1], {KA['ws']}")
    a(f"s_load_dwordx4 s[28:31], s[0:1], {KA['w1']}")
    a(f"s_sub_u32 s6, s2, {base}")
    a("s_waitcnt lgkmcnt(0)")
    a("s_cmp_ge_u32 s6, 240")
    a(f"s_cbranch_scc1 {L}_tr2")
    a("s_mul_i32 s7, s6, 2731")
    a("s_lshr_b32 s7, s7, 16")
    a("s_mul_i32 s20, s7, 24")
    a("s_sub_u32 s20, s6, s20")
    srd(a, 8, 28, 29, 640 * 1536 * 2)
    srd(a, 12, 4, 5, WS["w1t"][1], WS["w1t"][0])
    a("s_movk_i32 s21, 3072")
    a("s_movk_i32 s22, 1280")
    a(f"s_branch {L}_trgo")
    a.label(f"{L}_tr2")
    a("s_sub_u32 s6, s6, 240")
    a("s_mul_i32 s7, s6, 6554")
    a("s_lshr_b32 s7, s7, 16")
    a("s_mul_i32 s20, s7, 10")
    a("s_sub_u32 s20, s6, s20")
    srd(a, 8, 30, 31, 640 * 1536 * 2)
    srd(a, 12, 4, 5, WS["w2t"][1], WS["w2t"][0])
    a("s_movk_i32 s21, 1280")
    a("s_movk_i32 s22, 3072")
    a.label(f"{L}_trgo")
    a("v_lshrrev_b32 v1, 3, v0")
    a("v_and_b32 v2, 7, v0")
    a("s_lshl_b32 s23, s7, 6")
    a("v_add_u32 v3, s23, v1")
    a("v_mul_lo_u32 v3, v3, s21")
    a("v_lshl_add_u32 v3, v2, 4, v3")
    a("s_lshl_b32 s24, s20, 7")
    a("v_add_u32 v3, s24, v3")
    a("s_lshl_b32 s25, s21, 5")
    a("buffer_load_dwordx4 v[8:11], v3, s[8:11], 0 offen")
    a("buffer_load_dwordx4 v[12:15], v3, s[8:11], s25 offen")
    a("s_movk_i32 s26, 1152")
    a("v_mul_lo_u32 v4, v2, s26")
    a("v_lshl_add_u32 v4, v1, 1, v4")
    a("s_waitcnt vmcnt(1)")
    for q in range(4):
        a(f"ds_write_b16 v4, v{8+q} offset:{(2*q)*144}")
        a(f"ds_write_b16_d16_hi v4, v{8+q} offset:{(2*q+1)*144}")
    a("s_waitcnt vmcnt(0)")
    for q in range(4):
        a(f"ds_write_b16 v4, v{12+q} offset:{(2*q)*144+64}")
        a(f"ds_write_b16_d16_hi v4, v{12+q} offset:{(2*q+1)*144+64}")
    a("s_waitcnt lgkmcnt(0)")
    a("s_barrier")
    a("s_movk_i32 s26, 144")
    a("v_mul_lo_u32 v5, v1, s26")
    a("v_lshl_add_u32 v5, v2, 4, v5")
    a("ds_read_b128 v[8:11], v5")
    a(f"ds_read_b128 v[12:15], v5 offset:{32*144}")
    a("s_lshl_b32 s23, s20, 6")
    a("v_add_u32 v6, s23, v1")
    a("v_mul_lo_u32 v6, v6, s22")
    a("v_lshl_add_u32 v6, v2, 4, v6")
    a("s_lshl_b32 s24, s7, 7")
    a("v_add_u32 v6, s24, v6")
    a("s_lshl_b32 s25, s22, 5")
    a("s_waitcnt lgkmcnt(1)")
    a("buffer_store_dwordx4 v[8:11], v6, s[12:15], 0 offen")
    a("s_waitcnt lgkmcnt(0)")
    a("buffer_store_dwordx4 v[12:15], v6, s[12:15], s25 offen")
    a(f"s_branch {L}_end")


def prep_kernel(a):
    L = "prep_kernel"
    kernel_header(a, L)
    a(f"s_cmp_ge_u32 s2, {PREP_WGS}")
    a(f"s_cbranch_scc1 {L}_end")
    a("s_cmp_ge_u32 s2, 146")
    a(f"s_cbranch_scc1 {L}_ln")
    a("s_cmp_ge_u32 s2, 120")
    a(f"s_cbranch_scc1 {L}_pf")
    a(f"s_load_dwordx2 s[4:5], s[0:1], {KA['ws']}")
    a(f"s_load_dwordx4 s[32:35], s[0:1], {KA['c']}")
    a("s_waitcnt lgkmcnt(0)")
    a("s_and_b32 s6, s2, 7")
    a("s_mul_i32 s6, s6, 15")
    a("s_lshr_b32 s7, s2, 3")
    a("s_add_u32 s6, s6, s7")
    srd(a, 8, 34, 35, 640 * 3840 * 2)
    srd(a, 12, 32, 33, 640 * 2)
    srd(a, 16, 4, 5, WS["mod"][1], WS["mod"][0])
    a("v_lshrrev_b32 v1, 2, v0")
    a("v_and_b32 v2, 3, v0")
    a("s_movk_i32 s20, 7680")
    a("v_mul_lo_u32 v3, v1, s20")
    a("v_lshl_add_u32 v3, v2, 4, v3")
    a("s_lshl_b32 s21, s6, 6")
    a("v_add_u32 v3, s21, v3")
    a("v_lshlrev_b32 v4, 1, v1")
    for p in range(10):
        a(f"buffer_load_ushort v{10+p}, v4, s[12:15], 0 offen offset:{p*128}")
    for p in range(10):
        a(f"s_mov_b32 s22, {p*64*7680}")
        a(f"buffer_load_dwordx4 v[{20+4*p}:{23+4*p}], v3, s[8:11], s22 offen")
    for k in range(8):
        a(f"v_mov_b32 v{60+k}, 0")
    a("s_waitcnt vmcnt(10)")
    a("s_mov_b32 s23, 0xbfb8aa3b")
    for p in range(10):
        a(f"v_lshlrev_b32 v{10+p}, 16, v{10+p}")
        a(f"v_mul_f32 v70, s23, v{10+p}")
        a("v_exp_f32 v70, v70")
        a("s_nop 0")
        a("v_add_f32 v70, 1.0, v70")
        a("v_rcp_f32 v70, v70")
        a("s_nop 0")
        a(f"v_mul_f32 v70, v{10+p}, v70")
        a("v_cvt_pk_bf16_f32 v70, v70, v70")
        a(f"v_lshlrev_b32 v{10+p}, 16, v70")
    for p in range(10):
        a(f"s_waitcnt vmcnt({9-p})")
        for q in range(4):
            unpack(a, 70, 71, 20 + 4 * p + q)
            a(f"v_fmac_f32 v{60+2*q}, v{10+p}, v70")
            a(f"v_fmac_f32 v{61+2*q}, v{10+p}, v71")
    a("v_lshlrev_b32 v5, 7, v1")
    a("v_lshl_add_u32 v5, v2, 5, v5")
    a("ds_write_b128 v5, v[60:63]")
    a("ds_write_b128 v5, v[64:67] offset:16")
    a("s_waitcnt lgkmcnt(0)")
    a("s_barrier")
    a("v_and_b32 v6, 31, v0")
    a("v_lshrrev_b32 v7, 5, v0")
    a("v_lshlrev_b32 v8, 10, v7")
    a("v_lshl_add_u32 v8, v6, 2, v8")
    for i in range(8):
        a(f"ds_read_b32 v{20+i}, v8 offset:{i*128}")
    a("s_waitcnt lgkmcnt(0)")
    a("v_add_f32 v20, v20, v21")
    a("v_add_f32 v22, v22, v23")
    a("v_add_f32 v24, v24, v25")
    a("v_add_f32 v26, v26, v27")
    a("v_add_f32 v20, v20, v22")
    a("v_add_f32 v24, v24, v26")
    a("v_add_f32 v20, v20, v24")
    a("v_lshlrev_b32 v9, 2, v0")
    a("ds_write_b32 v9, v20 offset:8192")
    a("s_waitcnt lgkmcnt(0)")
    a("s_barrier")
    a("v_lshlrev_b32 v9, 2, v6")
    for i in range(8):
        a(f"ds_read_b32 v{20+i}, v9 offset:{8192+i*128}")
    a("s_waitcnt lgkmcnt(0)")
    a("v_add_f32 v20, v20, v21")
    a("v_add_f32 v22, v22, v23")
    a("v_add_f32 v24, v24, v25")
    a("v_add_f32 v26, v26, v27")
    a("v_add_f32 v20, v20, v22")
    a("v_add_f32 v24, v24, v26")
    a("v_add_f32 v20, v20, v24")
    a("v_cvt_pk_bf16_f32 v20, v20, v20")
    a("v_lshlrev_b32 v9, 1, v6")
    a("v_add_u32 v9, s21, v9")
    a("v_cmp_gt_u32 vcc, 32, v0")
    a("s_and_saveexec_b64 s[24:25], vcc")
    a(f"s_cbranch_execz {L}_end")
    a("buffer_store_short v20, v9, s[16:19], 0 offen")
    a(f"s_branch {L}_end")
    a.label(f"{L}_pf")
    a(f"s_load_dwordx8 s[28:35], s[0:1], {KA['seq_re']}")
    a("s_sub_u32 s6, s2, 120")
    a("s_waitcnt lgkmcnt(0)")
    a("s_mov_b32 s8, s32")
    a("s_mov_b32 s9, s33")
    a(f"s_mov_b32 s10, {640*640*2}")
    a("s_mov_b32 s11, 0x00020000")
    a("s_cmp_lt_u32 s6, 13")
    a(f"s_cbranch_scc1 {L}_pfgo")
    a("s_sub_u32 s6, s6, 13")
    a("s_mov_b32 s8, s34")
    a("s_mov_b32 s9, s35")
    a.label(f"{L}_pfgo")
    a("s_lshl_b32 s6, s6, 16")
    a("v_lshlrev_b32 v1, 4, v0")
    a("v_add_u32 v1, s6, v1")
    for i in range(16):
        a(f"s_mov_b32 s7, {i*4096}")
        a(f"buffer_load_dwordx4 v[{4+4*i}:{7+4*i}], v1, s[8:11], s7 offen")
    a(f"s_branch {L}_end")
    a.label(f"{L}_ln")
    a(f"s_load_dwordx2 s[4:5], s[0:1], {KA['ws']}")
    a(f"s_load_dwordx2 s[6:7], s[0:1], {KA['x']}")
    a("s_sub_u32 s3, s2, 146")
    a("v_lshrrev_b32 v1, 5, v0")
    a("s_lshl_b32 s3, s3, 3")
    a("v_add_u32 v1, s3, v1")
    a("v_and_b32 v2, 31, v0")
    a("v_lshlrev_b32 v2, 3, v2")
    a("s_movk_i32 s3, 1280")
    a("v_mul_lo_u32 v1, v1, s3")
    a("v_add_u32 v1, v1, v2")
    a("s_waitcnt lgkmcnt(0)")
    NB = S_LEN * D * 2
    srd(a, 8, 6, 7, NB)
    srd(a, 16, 4, 5, NB, WS["h"][0])
    for i in range(5):
        a(f"buffer_load_dwordx2 v[{10+2*i}:{11+2*i}], v1, s[8:11], 0 offen offset:{i*256}")
    a("s_waitcnt vmcnt(0)")
    for k in range(10):
        unpack(a, 20 + 2 * k, 21 + 2 * k, 10 + k)
    ln_core(a, 20, 0, 0, 40, 50, apply=False)
    for i in range(5):
        a(f"buffer_store_dwordx2 v[{40+2*i}:{41+2*i}], v1, s[16:19], 0 offen offset:{i*256}")
    a.label(f"{L}_end")
    a("s_endpgm")
    return kernel_desc(L, 72, 40, 72)


def reduce32(a, v, t):
    a("s_nop 1")
    a(f"v_add_f32_dpp v{t}, v{v}, v{v} quad_perm:[1,0,3,2] row_mask:0xf bank_mask:0xf")
    a("s_nop 1")
    a(f"v_add_f32_dpp v{v}, v{t}, v{t} quad_perm:[2,3,0,1] row_mask:0xf bank_mask:0xf")
    a("s_nop 1")
    a(f"v_add_f32_dpp v{t}, v{v}, v{v} row_half_mirror row_mask:0xf bank_mask:0xf")
    a("s_nop 1")
    a(f"v_add_f32_dpp v{v}, v{t}, v{t} row_mirror row_mask:0xf bank_mask:0xf")
    a(f"ds_swizzle_b32 v{t}, v{v} offset:0x401F")
    a("s_waitcnt lgkmcnt(0)")
    a(f"v_add_f32 v{v}, v{v}, v{t}")


def ln_core(a, X, C1, SH, OUT, T, apply=True):
    s, t, m, r = T, T + 1, T + 2, T + 3
    a(f"v_add_f32 v{s}, v{X}, v{X+1}")
    a(f"v_add_f32 v{t}, v{X+2}, v{X+3}")
    for k in range(4, 20, 2):
        a(f"v_add_f32 v{s}, v{s}, v{X+k}")
        a(f"v_add_f32 v{t}, v{t}, v{X+k+1}")
    a(f"v_add_f32 v{s}, v{s}, v{t}")
    reduce32(a, s, t)
    a(f"v_mul_f32 v{m}, 0x3acccccd, v{s}")
    a(f"v_sub_f32 v{t}, v{X}, v{m}")
    a(f"v_mul_f32 v{s}, v{t}, v{t}")
    a(f"v_sub_f32 v{t}, v{X+1}, v{m}")
    a(f"v_mul_f32 v{r}, v{t}, v{t}")
    for k in range(2, 20, 2):
        a(f"v_sub_f32 v{t}, v{X+k}, v{m}")
        a(f"v_fmac_f32 v{s}, v{t}, v{t}")
        a(f"v_sub_f32 v{t}, v{X+k+1}, v{m}")
        a(f"v_fmac_f32 v{r}, v{t}, v{t}")
    a(f"v_add_f32 v{s}, v{s}, v{r}")
    reduce32(a, s, t)
    a(f"v_mul_f32 v{s}, 0x3acccccd, v{s}")
    a(f"v_cvt_pk_bf16_f32 v{t}, v{m}, v{s}")
    unpack(a, m, s, t)
    a(f"v_add_f32 v{s}, 0x3727c5ac, v{s}")
    a(f"v_cvt_pk_bf16_f32 v{t}, v{s}, v{s}")
    a(f"v_lshlrev_b32 v{s}, 16, v{t}")
    a(f"v_sqrt_f32 v{s}, v{s}")
    a("s_nop 0")
    a(f"v_cvt_pk_bf16_f32 v{t}, v{s}, v{s}")
    a(f"v_lshlrev_b32 v{s}, 16, v{t}")
    a(f"v_rcp_f32 v{r}, v{s}")
    a("s_nop 0")
    u, w = T + 4, T + 5
    for k in range(0, 20, 2):
        a(f"v_sub_f32 v{u}, v{X+k}, v{m}")
        a(f"v_sub_f32 v{w}, v{X+k+1}, v{m}")
        a(f"v_cvt_pk_bf16_f32 v{t}, v{u}, v{w}")
        unpack(a, u, w, t)
        a(f"v_mul_f32 v{u}, v{u}, v{r}")
        a(f"v_mul_f32 v{w}, v{w}, v{r}")
        if not apply:
            a(f"v_cvt_pk_bf16_f32 v{OUT+k//2}, v{u}, v{w}")
            continue
        a(f"v_cvt_pk_bf16_f32 v{t}, v{u}, v{w}")
        unpack(a, u, w, t)
        a(f"v_mul_f32 v{u}, v{u}, v{C1+k}")
        a(f"v_mul_f32 v{w}, v{w}, v{C1+k+1}")
        a(f"v_cvt_pk_bf16_f32 v{t}, v{u}, v{w}")
        unpack(a, u, w, t)
        a(f"v_add_f32 v{u}, v{u}, v{SH+k}")
        a(f"v_add_f32 v{w}, v{w}, v{SH+k+1}")
        a(f"v_cvt_pk_bf16_f32 v{OUT+k//2}, v{u}, v{w}")


def ln_kernel(a, second):
    L = "ln2_kernel" if second else "ln1_kernel"
    kernel_header(a, L)
    if not second:
        a(f"s_cmp_ge_u32 s2, {LN1_WGS}")
        a(f"s_cbranch_scc1 {L}_end")
        a("s_cmp_lt_u32 s2, 256")
        a(f"s_cbranch_scc1 {L}_go")
        a(f"s_load_dwordx4 s[28:31], s[0:1], {KA['seq_re']}")
        a("s_sub_u32 s6, s2, 192")
        a("s_waitcnt lgkmcnt(0)")
        a("s_cmp_ge_u32 s6, 128")
        a("s_cselect_b32 s8, s30, s28")
        a("s_cselect_b32 s9, s31, s29")
        a(f"s_mov_b32 s10, {2048*2048*2}")
        a("s_mov_b32 s11, 0x00020000")
        a("s_and_b32 s6, s6, 127")
        a("s_lshl_b32 s6, s6, 16")
        a("v_lshlrev_b32 v1, 4, v0")
        a("v_add_u32 v1, s6, v1")
        for i in range(16):
            a(f"s_mov_b32 s7, {i*4096}")
            a(f"buffer_load_dwordx4 v[{4+4*i}:{7+4*i}], v1, s[8:11], s7 offen")
        a("s_endpgm")
        a.label(f"{L}_go")
    else:
        a(f"s_cmp_ge_u32 s2, {LN2_WGS}")
        a(f"s_cbranch_scc1 {L}_end")
        a("s_cmp_lt_u32 s2, 256")
        a(f"s_cbranch_scc1 {L}_go")
        transpose_body(a, L, 256)
        a.label(f"{L}_go")
    a(f"s_load_dwordx2 s[4:5], s[0:1], {KA['ws']}")
    a(f"s_load_dwordx2 s[6:7], s[0:1], {KA['x']}")
    a("s_waitcnt lgkmcnt(0)")
    NB = S_LEN * D * 2
    srd(a, 8, 6, 7, NB)
    srd(a, 12, 4, 5, WS["mod"][1], WS["mod"][0])
    srd(a, 16, 4, 5, NB, WS["h2" if second else "h"][0])
    if second:
        srd(a, 20, 4, 5, NB, WS["y"][0])
        srd(a, 24, 4, 5, NB, WS["y"][0] + NB)
        srd(a, 28, 4, 5, NB, WS["x1"][0])
    a("v_lshrrev_b32 v1, 5, v0")
    a("s_lshl_b32 s3, s2, 3")
    a("v_add_u32 v1, s3, v1")
    a("v_and_b32 v2, 31, v0")
    a("v_lshlrev_b32 v2, 3, v2")
    a("s_movk_i32 s3, 1280")
    a("v_mul_lo_u32 v1, v1, s3")
    a("v_add_u32 v1, v1, v2")
    for i in range(5):
        a(f"buffer_load_dwordx2 v[{10+2*i}:{11+2*i}], v1, s[8:11], 0 offen offset:{i*256}")
    if second:
        for i in range(5):
            a(f"buffer_load_dwordx2 v[{20+2*i}:{21+2*i}], v1, s[20:23], 0 offen offset:{i*256}")
        for i in range(5):
            a(f"buffer_load_dwordx2 v[{30+2*i}:{31+2*i}], v1, s[24:27], 0 offen offset:{i*256}")
        for i in range(5):
            a(f"buffer_load_dwordx2 v[{40+2*i}:{41+2*i}], v2, s[12:15], 0 offen offset:{2*1280+i*256}")
    coff = (4 if second else 1) * 1280
    soff = (3 if second else 0) * 1280
    a(f"s_movk_i32 s3, {coff}")
    for i in range(5):
        a(f"buffer_load_dwordx2 v[{50+2*i}:{51+2*i}], v2, s[12:15], s3 offen offset:{i*256}")
    a(f"s_movk_i32 s32, {soff}")
    for i in range(5):
        a(f"buffer_load_dwordx2 v[{60+2*i}:{61+2*i}], v2, s[12:15], s32 offen offset:{i*256}")
    X, C1, SH, OUT, T = 70, 90, 110, 130, 140
    if second:
        a("s_waitcnt vmcnt(10)")
        for k in range(10):
            unpack(a, T, T + 1, 20 + k)
            unpack(a, T + 2, T + 3, 30 + k)
            a(f"v_sub_f32 v{T}, v{T}, v{T+2}")
            a(f"v_sub_f32 v{T+1}, v{T+1}, v{T+3}")
            a(f"v_cvt_pk_bf16_f32 v{T+4}, v{T}, v{T+1}")
            unpack(a, T, T + 1, T + 4)
            unpack(a, T + 2, T + 3, 40 + k)
            a(f"v_mul_f32 v{T}, v{T}, v{T+2}")
            a(f"v_mul_f32 v{T+1}, v{T+1}, v{T+3}")
            a(f"v_cvt_pk_bf16_f32 v{T+4}, v{T}, v{T+1}")
            unpack(a, T, T + 1, T + 4)
            unpack(a, T + 2, T + 3, 10 + k)
            a(f"v_add_f32 v{T}, v{T}, v{T+2}")
            a(f"v_add_f32 v{T+1}, v{T+1}, v{T+3}")
            a(f"v_cvt_pk_bf16_f32 v{20+k}, v{T}, v{T+1}")
            unpack(a, X + 2 * k, X + 2 * k + 1, 20 + k)
        for i in range(5):
            a(f"buffer_store_dwordx2 v[{20+2*i}:{21+2*i}], v1, s[28:31], 0 offen offset:{i*256}")
        a("s_waitcnt vmcnt(5)")
    else:
        a("s_waitcnt vmcnt(10)")
        for k in range(10):
            unpack(a, X + 2 * k, X + 2 * k + 1, 10 + k)
        a("s_waitcnt vmcnt(0)")
    for k in range(10):
        unpack(a, T, T + 1, 50 + k)
        a(f"v_add_f32 v{T}, 1.0, v{T}")
        a(f"v_add_f32 v{T+1}, 1.0, v{T+1}")
        a(f"v_cvt_pk_bf16_f32 v{T+2}, v{T}, v{T+1}")
        unpack(a, C1 + 2 * k, C1 + 2 * k + 1, T + 2)
        unpack(a, SH + 2 * k, SH + 2 * k + 1, 60 + k)
    ln_core(a, X, C1, SH, OUT, T)
    for i in range(5):
        a(f"buffer_store_dwordx2 v[{OUT+2*i}:{OUT+1+2*i}], v1, s[16:19], 0 offen offset:{i*256}")
    a.label(f"{L}_end")
    a("s_endpgm")
    return kernel_desc(L, 152, 40, 152)


def rowmap(paired_ok, nb, b, i):
    if paired_ok and not (b == nb - 1 and nb % 2 == 1):
        return 32 * (b >> 1) + 8 * (i >> 2) + 4 * (b & 1) + (i & 3)
    return 16 * b + i


def fsw_row(paired_ok, nb, n):
    npair = (nb // 2) * 32 if paired_ok else 0
    if n < npair:
        return 2 * ((n >> 3) & 3) + ((n >> 1) & 1)
    return (n >> 1) & 7


def check_conflicts(paired_ok, nb):
    groups = [[0, 1, 2, 3, 12, 13, 14, 15] + list(range(20, 28)),
              list(range(4, 12)) + [16, 17, 18, 19, 28, 29, 30, 31]]
    groups += [[x + 32 for x in g] for g in groups]
    for b in range(nb):
        for j in range(2):
            for g in groups:
                qs = set()
                for l in g:
                    n = rowmap(paired_ok, nb, b, l & 15)
                    assert fsw_row(paired_ok, nb, n) == ((l & 15) >> 1)
                    addr = n * 128 + ((4 * j) ^ (l >> 4) ^ fsw_row(paired_ok, nb, n)) * 16
                    qs.add((addr // 16) % 16)
                assert len(qs) == 16, (paired_ok, nb, b, j)


def gemm_kernel(a, L, K, BS, BV, BK, ndimS, ksplit, nslot, setup, epilogue, pre_epi=None, nwg=256, stage_hook=None):
    nsb = BS // 16
    check_conflicts(ndimS, nsb)
    check_conflicts(not ndimS, 2)
    kernel_header(a, L)
    a(f"s_cmp_ge_u32 s2, {nwg}")
    a(f"s_cbranch_scc1 {L}_end")
    a("v_lshrrev_b32 v1, 6, v0")
    a("s_nop 0")
    a("v_readfirstlane_b32 s40, v1")
    a("v_and_b32 v1, 63, v0")
    a("v_and_b32 v2, 15, v1")
    a("v_lshrrev_b32 v3, 4, v1")
    ldS, ldV = setup(a)
    nsub = BK // 64
    nst = K // BK
    subS, subV = BS * 128, BV * 128
    slotsz = nsub * (subS + subV)
    NS = min(nslot, nst)
    chunks = [("S", u, r) for u in range(nsub) for r in range(BS // 8)] + \
             [("V", u, r) for u in range(nsub) for r in range(BV // 8)]
    nS = nsub * BS // 8
    assert nS % 4 == 0 and len(chunks) % 4 == 0
    nt = len(chunks) // 4

    def lds_off(op, u, r):
        return (u * subS + r * 1024) if op == "S" else (nsub * subS + u * subV + r * 1024)

    steps = [(u, j) for u in range(nsub) for j in range(2)] if ksplit == 1 else [(u, None) for u in range(nsub)]
    spw = len(steps)
    vDMA = 8
    nj = 2 if ksplit == 1 else 1
    nSA = 2 if (ndimS and nsb % 2 == 1) else 1
    vSA = 8
    vVA = vSA + NS * nSA * nj
    vT = max(vVA + NS * nj, vDMA + nt)
    vF = (vT + 4 + 3) // 4 * 4
    nfr = nsb + 2
    vR = vF + 2 * nfr * 4
    vE = vR + nsb * 8
    vTot = vE + (32 if pre_epi else 0)
    accum = (vTot + 3) // 4 * 4
    nacc = nsb * 2 * 4
    assert accum + nacc <= 256
    sLO = 64
    a("s_cmp_lt_u32 s40, 4")
    a(f"s_cbranch_scc1 {L}_comp")
    a("s_sub_u32 s40, s40, 4")
    a("v_lshrrev_b32 v4, 3, v1")
    a("v_and_b32 v5, 7, v1")
    for t in range(nt):
        ops = [chunks[4 * t + w] for w in range(4)]
        op = ops[0][0]
        assert all(o[0] == op for o in ops)
        ld = ldS if op == "S" else ldV
        rb = [o[2] * 8 for o in ops]
        sb = [o[1] for o in ops]
        lo = [lds_off(*o) for o in ops]
        def sel(dst, vals):
            if all(v == vals[0] + (vals[1] - vals[0]) * k for k, v in enumerate(vals)):
                a(f"s_mul_i32 s{dst}, s40, {vals[1]-vals[0]}")
                a(f"s_add_u32 s{dst}, s{dst}, {vals[0]}")
            else:
                a(f"s_mov_b32 s{dst}, {vals[0]}")
                for w in range(1, 4):
                    a(f"s_cmp_eq_u32 s40, {w}")
                    a(f"s_cselect_b32 s{dst}, {vals[w]}, s{dst}")
        sel(44, rb)
        sel(45, [x * 128 for x in sb])
        sel(sLO + t, lo)
        t0, t1, t2 = vT, vT + 1, vT + 2
        a(f"v_add_u32 v{t0}, s44, v4")
        paired_ok = ndimS if op == "S" else (not ndimS)
        nb = nsb if op == "S" else 2
        if op == "V":
            a(f"v_and_b32 v{t2}, 31, v{t0}")
            nreg = t2
        else:
            nreg = t0
        npair = (nb // 2) * 32 if paired_ok else 0
        a(f"v_bfe_u32 v{t1}, v{nreg}, 1, 3")
        if npair:
            a(f"v_bfe_u32 v{vT+3}, v{nreg}, 3, 2")
            a(f"v_lshlrev_b32 v6, 1, v{vT+3}")
            a(f"v_bfe_u32 v7, v{nreg}, 1, 1")
            a(f"v_or_b32 v6, v6, v7")
            if npair < nb * 16:
                a(f"v_cmp_gt_u32 vcc, {npair}, v{nreg}")
                a("s_nop 1")
                a(f"v_cndmask_b32 v{t1}, v{t1}, v6, vcc")
            else:
                a(f"v_mov_b32 v{t1}, v6")
        a(f"v_xor_b32 v{t1}, v{t1}, v5")
        a(f"s_movk_i32 s46, {ld}")
        a(f"v_mul_lo_u32 v{t0}, v{t0}, s46")
        a(f"v_lshl_add_u32 v{t0}, v{t1}, 4, v{t0}")
        a(f"v_add_u32 v{vDMA+t}, s45, v{t0}")
    q = []

    def vm_wait_for(tag):
        last = -1
        for idx, t in enumerate(q):
            if t == tag:
                last = idx
        return min(len(q) - 1 - last, 63)

    def issue(s):
        slot = s % NS
        a(f"s_movk_i32 s46, {s*BK*2}")
        for t in range(nt):
            op = chunks[4 * t][0]
            a(f"s_add_u32 m0, s{sLO+t}, {slot*slotsz}")
            a("s_nop 0")
            sr = "s[8:11]" if op == "S" else "s[12:15]"
            a(f"buffer_load_dwordx4 v{vDMA+t}, {sr}, s46 offen lds")
            q.append(s)

    for s in range(NS):
        issue(s)
    a(f"s_waitcnt vmcnt({vm_wait_for(0)})")
    a("s_barrier")
    for s in range(nst - 1):
        a(f"s_waitcnt vmcnt({vm_wait_for(s+1)})")
        a("s_barrier")
        if s + NS < nst:
            issue(s + NS)
    a("s_endpgm")
    a.label(f"{L}_comp")
    if ksplit == 2:
        a("s_and_b32 s42, s40, 1")
        a("s_lshr_b32 s43, s40, 1")
    else:
        a("s_mov_b32 s42, s40")
        a("s_mov_b32 s43, 0")
    a("v_lshrrev_b32 v4, 1, v2")
    a("v_xor_b32 v4, v4, v3")
    if ksplit == 2:
        a("s_lshl_b32 s46, s43, 2")
        a("v_xor_b32 v4, s46, v4")
    a("v_and_b32 v5, 12, v2")
    a("v_lshlrev_b32 v5, 1, v5")
    a("v_and_b32 v6, 3, v2")
    a("v_or_b32 v5, v5, v6")
    def addr_regs(dst_fn, rowreg, extra_sgpr=None):
        for j in range(nj):
            a(f"v_xor_b32 v6, {4*j}, v4")
            a(f"v_lshlrev_b32 v6, 4, v6")
            a(f"v_lshl_add_u32 v6, v{rowreg}, 7, v6")
            if extra_sgpr is not None:
                a(f"v_add_u32 v6, s{extra_sgpr}, v6")
            for sl in range(NS):
                a(f"v_add_u32 v{dst_fn(sl, j)}, {sl*slotsz}, v6")
    saddr = lambda kind, sl, j: vSA + (sl * nSA + kind) * nj + j
    vaddr = lambda sl, j: vVA + sl * nj + j
    addr_regs(lambda sl, j: saddr(0, sl, j), 5 if ndimS else 2)
    if nSA == 2:
        addr_regs(lambda sl, j: saddr(1, sl, j), 2)
    a(f"s_lshl_b32 s46, s42, 12")
    a(f"s_add_u32 s46, s46, {nsub*subS}")
    addr_regs(vaddr, 2 if ndimS else 5, 46)
    if pre_epi:
        pre_epi(a, vE)

    def frag_reads(s, k, buf):
        slot = s % NS
        u, j = steps[k]
        jj = j if j is not None else 0
        for vb in range(2):
            r = vF + (buf * nfr + nsb + vb) * 4
            off = u * subV + (rowmap(not ndimS, 2, vb, 0)) * 128
            a(f"ds_read_b128 v[{r}:{r+3}], v{vaddr(slot, jj)} offset:{off}")
        for b in range(nsb):
            r = vF + (buf * nfr + b) * 4
            left = ndimS and nsb % 2 == 1 and b == nsb - 1
            off = u * subS + rowmap(ndimS, nsb, b, 0) * 128
            a(f"ds_read_b128 v[{r}:{r+3}], v{saddr(1 if left else 0, slot, jj)} offset:{off}")

    def mfmas(buf, first):
        for b in range(nsb):
            for vb in range(2):
                ar = (b * 2 + vb) * 4
                sf = vF + (buf * nfr + b) * 4
                vf = vF + (buf * nfr + nsb + vb) * 4
                A, B = (sf, vf) if ndimS else (vf, sf)
                c = "0" if first else f"a[{ar}:{ar+3}]"
                a(f"v_mfma_f32_16x16x32_bf16 a[{ar}:{ar+3}], v[{A}:{A+3}], v[{B}:{B+3}], {c}")

    step = 0
    a("s_barrier")
    frag_reads(0, 0, 0)
    for s in range(nst):
        if stage_hook:
            stage_hook(a, s, vE)
        for k in range(spw):
            buf = step & 1
            last = k == spw - 1
            if not last:
                frag_reads(s, k + 1, buf ^ 1)
                a(f"s_waitcnt lgkmcnt({nfr})")
            else:
                a("s_waitcnt lgkmcnt(0)")
                if s + 1 < nst:
                    a("s_barrier")
                    frag_reads(s + 1, 0, buf ^ 1)
            mfmas(buf, step == 0)
            step += 1
    a("s_nop 7")
    a("s_nop 7")
    if ksplit == 2:
        a("s_barrier")
        a("v_lshlrev_b32 v4, 4, v1")
        a(f"s_mul_i32 s46, s42, {nsb*2*1024}")
        a("v_add_u32 v4, s46, v4")
        a("s_cmp_lt_u32 s40, 2")
        a(f"s_cbranch_scc1 {L}_red")
        for k in range(nsb * 2):
            a(f"ds_write_b128 v4, a[{4*k}:{4*k+3}] offset:{k*1024}")
        a("s_waitcnt lgkmcnt(0)")
        a("s_barrier")
        a(f"s_branch {L}_end")
        a.label(f"{L}_red")
        a("s_barrier")
        for k in range(nsb * 2):
            a(f"ds_read_b128 v[{vR+4*k}:{vR+4*k+3}], v4 offset:{k*1024}")
        a("s_waitcnt lgkmcnt(0)")
        for k in range(nsb * 2 * 4):
            a(f"v_accvgpr_read_b32 v{vF+(k&7)}, a{k}")
            a(f"v_add_f32 v{vR+k}, v{vR+k}, v{vF+(k&7)}")
    else:
        for k in range(nsb * 2 * 4):
            a(f"v_accvgpr_read_b32 v{vR+k}, a{k}")
    a("s_waitcnt vmcnt(0)")
    epilogue(a, vR, vF, vE, nsb)
    a.label(f"{L}_end")
    a("s_endpgm")
    lds = max(NS * slotsz, (2 * nsb * 2 * 1024) if ksplit == 2 else 0)
    assert lds <= 163840, lds
    return kernel_desc(L, accum + nacc, 96, accum), lds


def gemma2_kernel(a):
    L = "gemma_kernel"
    K, NS = 640, 4
    nst = 10
    VB = 0
    SB = 81920
    slotsz = 160 * 128
    kernel_header(a, L)
    a("s_cmp_ge_u32 s2, 256")
    a(f"s_cbranch_scc1 {L}_end")
    a(f"s_load_dwordx2 s[48:49], s[0:1], {KA['ws']}")
    a(f"s_load_dwordx4 s[52:55], s[0:1], {KA['hid_re']}")
    a("v_lshrrev_b32 v1, 6, v0")
    a("s_nop 0")
    a("v_readfirstlane_b32 s40, v1")
    a("v_and_b32 v1, 63, v0")
    a("v_and_b32 v2, 15, v1")
    a("v_lshrrev_b32 v3, 4, v1")
    a("s_and_b32 s3, s2, 7")
    a("s_lshr_b32 s4, s2, 3")
    a("s_and_b32 s5, s3, 1")
    a("s_lshl_b32 s5, s5, 2")
    a("s_and_b32 s6, s4, 3")
    a("s_add_u32 s5, s5, s6")
    a("s_lshr_b32 s6, s3, 1")
    a("s_lshl_b32 s6, s6, 3")
    a("s_lshr_b32 s7, s4, 2")
    a("s_add_u32 s6, s6, s7")
    a("s_lshl_b32 s44, s40, 3")
    a("v_add_u32 v4, s44, v3")
    a("s_movk_i32 s45, 1280")
    a("v_mul_lo_u32 v5, v4, s45")
    a("v_lshl_add_u32 v5, v2, 4, v5")
    a("v_lshlrev_b32 v6, 4, v2")
    a("s_waitcnt lgkmcnt(0)")
    a("s_cmp_ge_u32 s5, 4")
    a("s_cselect_b32 s8, s54, s52")
    a("s_cselect_b32 s9, s55, s53")
    a(f"s_mov_b32 s10, {160*1280}")
    a("s_mov_b32 s11, 0x00020000")
    a("s_and_b32 s7, s5, 3")
    a(f"s_mul_i32 s7, s7, {160*1280}")
    srd_add(a, 8, 7)
    srd(a, 12, 48, 49, 64 * 1280, WS["h"][0])
    a(f"s_mul_i32 s7, s6, {64*1280}")
    srd_add(a, 12, 7)
    srd(a, 20, 48, 49, WS["mod"][1], WS["mod"][0])
    a("s_movk_i32 s45, 5120")
    for rp in range(2):
        for k in range(5):
            r = 16 + (rp * 5 + k) * 4
            so = "s45" if rp else "0"
            a(f"buffer_load_dwordx4 v[{r}:{r+3}], v5, s[12:15], {so} offen offset:{k*256}")
    for k in range(5):
        a(f"buffer_load_dwordx4 v[{56+4*k}:{59+4*k}], v6, s[20:23], 0 offen offset:{1280+k*256}")
    for k in range(5):
        a(f"buffer_load_dwordx4 v[{76+4*k}:{79+4*k}], v6, s[20:23], 0 offen offset:{k*256}")
    if TLBWARM:
        a(f"s_load_dwordx4 s[56:59], s[0:1], {KA['seq_re']}")
        a("s_lshr_b32 s36, s3, 1")
        a("s_lshl_b32 s36, s36, 9")
        a("s_lshl_b32 s37, s4, 4")
        a("s_add_u32 s36, s36, s37")
        a("v_add_u32 v12, s36, v2")
        a("v_lshlrev_b32 v12, 12, v12")
        a("s_waitcnt lgkmcnt(0)")
        a("s_and_b32 s37, s3, 1")
        a("s_cmp_eq_u32 s37, 1")
        a("s_cselect_b32 s60, s58, s56")
        a("s_cselect_b32 s61, s59, s57")
        a(f"s_mov_b32 s62, {2048*2048*2}")
        a("s_mov_b32 s63, 0x00020000")
        a("buffer_load_dword v13, v12, s[60:63], 0 offen")
    srd(a, 16, 48, 49, 160 * 4096, WS["abt"][0])
    a(f"s_mul_i32 s7, s5, {160*4096}")
    srd_add(a, 16, 7)
    a("s_lshl_b32 s7, s6, 7")
    srd_add(a, 16, 7)
    a("s_and_b32 s41, s40, 3")
    a("v_lshrrev_b32 v8, 3, v1")
    a("v_and_b32 v9, 7, v1")
    a("v_xor_b32 v9, v9, v3")
    a("s_and_b32 s44, s41, 1")
    a("s_lshl_b32 s44, s44, 2")
    a("v_xor_b32 v9, s44, v9")
    a("s_lshl_b32 s44, s41, 3")
    a("v_add_u32 v8, s44, v8")
    a("s_movk_i32 s45, 1280")
    a("v_mul_lo_u32 v8, v8, s45")
    a("v_lshl_add_u32 v8, v9, 4, v8")
    a("s_lshl_b32 s42, s41, 10")
    a(f"s_add_u32 s42, s42, {SB}")
    a("s_cmp_lt_u32 s40, 4")
    a(f"s_cbranch_scc1 {L}_p0")

    def issue(s):
        for t in range(5):
            a(f"s_add_u32 m0, s42, {(s % NS)*slotsz + t*4096}")
            a(f"s_mov_b32 s46, {s*128 + t*32*1280}")
            a("buffer_load_dwordx4 v8, s[8:11], s46 offen lds")
    for s in range(NS):
        issue(s)
    a("s_waitcnt vmcnt(20)")
    a(f"s_branch {L}_p0b")
    a.label(f"{L}_p0")
    a("s_waitcnt vmcnt(0)")
    a.label(f"{L}_p0b")
    a("v_lshrrev_b32 v10, 1, v3")
    a("s_and_b32 s44, s40, 3")
    a("s_lshl_b32 s44, s44, 1")
    a("v_or_b32 v10, s44, v10")
    a("v_and_b32 v11, 7, v2")
    a("v_xor_b32 v10, v10, v11")
    a("v_lshlrev_b32 v10, 4, v10")
    a("v_lshl_add_u32 v10, v4, 7, v10")
    a("v_lshrrev_b32 v11, 3, v2")
    a("v_lshl_add_u32 v10, v11, 13, v10")
    a("v_add_u32 v11, 0x8000, v10")
    T = 96
    for k in range(5):
        for q in range(4):
            unpack(a, T, T + 1, 56 + 4 * k + q)
            a(f"v_add_f32 v{T}, 1.0, v{T}")
            a(f"v_add_f32 v{T+1}, 1.0, v{T+1}")
            a(f"v_cvt_pk_bf16_f32 v{T+6}, v{T}, v{T+1}")
            unpack(a, T, T + 1, T + 6)
            unpack(a, T + 2, T + 3, 76 + 4 * k + q)
            for rp in range(2):
                r = 16 + (rp * 5 + k) * 4 + q
                unpack(a, T + 4, T + 5, r)
                a(f"v_mul_f32 v{T+4}, v{T+4}, v{T}")
                a(f"v_mul_f32 v{T+5}, v{T+5}, v{T+1}")
                a(f"v_cvt_pk_bf16_f32 v{T+6}, v{T+4}, v{T+5}")
                unpack(a, T + 4, T + 5, T + 6)
                a(f"v_add_f32 v{T+4}, v{T+4}, v{T+2}")
                a(f"v_add_f32 v{T+5}, v{T+5}, v{T+3}")
                a(f"v_cvt_pk_bf16_f32 v{r}, v{T+4}, v{T+5}")
        for rp in range(2):
            r = 16 + (rp * 5 + k) * 4
            off = k * 16384 + rp * 512
            areg = 10
            if off >= 32768:
                off -= 32768
                areg = 11
            a(f"ds_write_b128 v{areg}, v[{r}:{r+3}] offset:{off}")
    a("s_cmp_lt_u32 s40, 4")
    a(f"s_cbranch_scc1 {L}_comp")
    a("s_waitcnt vmcnt(15) lgkmcnt(0)")
    a("s_barrier")
    for s in range(nst - 1):
        out = min(NS - 1, nst - 2 - s) - 0
        issued = min(nst, NS + s)
        a(f"s_waitcnt vmcnt({(issued - (s + 2)) * 5})")
        a("s_barrier")
        if s + NS < nst:
            issue(s + NS)
    a("s_endpgm")
    a.label(f"{L}_comp")
    a("s_and_b32 s42, s40, 1")
    a("s_lshr_b32 s43, s40, 1")
    a("v_lshrrev_b32 v4, 1, v2")
    a("v_xor_b32 v4, v4, v3")
    a("v_and_b32 v5, 12, v2")
    a("v_lshlrev_b32 v5, 1, v5")
    a("v_and_b32 v6, 3, v2")
    a("v_or_b32 v5, v5, v6")
    vSA, vVA = 8, 16
    a(f"s_mul_i32 s44, s42, {80*128}")
    a(f"s_add_u32 s44, s44, {SB}")
    a(f"s_lshl_b32 s45, s43, 12")
    for j in range(2):
        a(f"v_xor_b32 v6, {4*j}, v4")
        a("v_lshlrev_b32 v6, 4, v6")
        a("v_lshl_add_u32 v7, v2, 7, v6")
        a("v_add_u32 v7, s44, v7")
        for sl in range(NS):
            a(f"v_add_u32 v{vSA+sl*2+j}, {sl*slotsz}, v7")
        a("v_lshl_add_u32 v7, v5, 7, v6")
        a(f"v_add_u32 v{vVA+j}, s45, v7")
        a(f"v_add_u32 v{vVA+2+j}, 0xa000, v{vVA+j}")
    vF = 24
    nfr = 7
    vR = vF + 2 * nfr * 4

    def frag_reads(s, j, buf):
        for vb in range(2):
            r = vF + (buf * nfr + 5 + vb) * 4
            hi = s >= 5
            off = (s - 5 * hi) * 8192 + vb * 512
            a(f"ds_read_b128 v[{r}:{r+3}], v{vVA+2*hi+j} offset:{off}")
        for b in range(5):
            r = vF + (buf * nfr + b) * 4
            a(f"ds_read_b128 v[{r}:{r+3}], v{vSA+(s%NS)*2+j} offset:{b*2048}")

    def mfmas(buf, first):
        for b in range(5):
            for vb in range(2):
                ar = (b * 2 + vb) * 4
                sf = vF + (buf * nfr + b) * 4
                vf = vF + (buf * nfr + 5 + vb) * 4
                c = "0" if first else f"a[{ar}:{ar+3}]"
                a(f"v_mfma_f32_16x16x32_bf16 a[{ar}:{ar+3}], v[{vf}:{vf+3}], v[{sf}:{sf+3}], {c}")

    a("s_waitcnt lgkmcnt(0)")
    a("s_barrier")
    frag_reads(0, 0, 0)
    step = 0
    for s in range(nst):
        for j in range(2):
            buf = step & 1
            if j == 0:
                frag_reads(s, 1, buf ^ 1)
                a(f"s_waitcnt lgkmcnt({nfr})")
            else:
                a("s_waitcnt lgkmcnt(0)")
                if s + 1 < nst:
                    a("s_barrier")
                    frag_reads(s + 1, 0, buf ^ 1)
            mfmas(buf, step == 0)
            step += 1
    a("s_nop 7")
    a("s_nop 7")
    a("s_mul_i32 s44, s42, 80")
    a("v_add_u32 v4, s44, v2")
    a("v_lshlrev_b32 v4, 12, v4")
    a("v_lshl_add_u32 v4, v3, 4, v4")
    a("s_lshl_b32 s46, s43, 6")
    a("v_add_u32 v4, s46, v4")
    for b in range(5):
        o = vR + b * 4
        for k in range(4):
            a(f"v_accvgpr_read_b32 v{vF}, a{b*8+2*k}")
            a(f"v_accvgpr_read_b32 v{vF+1}, a{b*8+2*k+1}")
            a(f"v_cvt_pk_bf16_f32 v{o+k}, v{vF}, v{vF+1}")
        a(f"s_mov_b32 s46, {b*16*4096}")
        a(f"buffer_store_dwordx4 v[{o}:{o+3}], v4, s[16:19], s46 offen")
    a.label(f"{L}_end")
    a("s_endpgm")
    return kernel_desc(L, 120 + 40, 64, 120), 163840


def load_ptrs(a, names):
    for k, nm in enumerate(names):
        a(f"s_load_dwordx2 s[{48+2*k}:{49+2*k}], s[0:1], {KA[nm]}")
    a("s_waitcnt lgkmcnt(0)")


def setup_A(a):
    load_ptrs(a, ["ws", "hid_re", "hid_im"])
    a("s_and_b32 s3, s2, 7")
    a("s_lshr_b32 s4, s2, 3")
    a("s_and_b32 s5, s3, 3")
    a("s_lshl_b32 s5, s5, 2")
    a("s_and_b32 s6, s4, 3")
    a("s_add_u32 s5, s5, s6")
    a("s_lshr_b32 s6, s3, 2")
    a("s_lshl_b32 s6, s6, 3")
    a("s_lshr_b32 s7, s4, 2")
    a("s_add_u32 s6, s6, s7")
    a("s_cmp_ge_u32 s5, 8")
    a("s_cselect_b32 s8, s52, s50")
    a("s_cselect_b32 s9, s53, s51")
    a(f"s_mov_b32 s10, {80*1280}")
    a("s_mov_b32 s11, 0x00020000")
    a("s_and_b32 s7, s5, 7")
    a(f"s_mul_i32 s7, s7, {80*1280}")
    srd_add(a, 8, 7)
    srd(a, 12, 48, 49, 128 * 1280, WS["h"][0])
    a(f"s_mul_i32 s7, s6, {128*1280}")
    srd_add(a, 12, 7)
    srd(a, 16, 48, 49, 80 * 4096, WS["abt"][0])
    a(f"s_mul_i32 s7, s5, {80*4096}")
    srd_add(a, 16, 7)
    a("s_lshl_b32 s7, s6, 8")
    srd_add(a, 16, 7)
    return 1280, 1280


def pre_A(a, vE):
    a(f"s_load_dwordx4 s[56:59], s[0:1], {KA['seq_re']}")
    a("s_and_b32 s36, s2, 127")
    a("s_lshl_b32 s36, s36, 16")
    a("s_lshl_b32 s37, s40, 14")
    a("s_add_u32 s36, s36, s37")
    a("v_lshlrev_b32 v4, 4, v1")
    a("v_add_u32 v4, s36, v4")
    a("s_waitcnt lgkmcnt(0)")
    a("s_cmp_ge_u32 s2, 128")
    a("s_cselect_b32 s60, s58, s56")
    a("s_cselect_b32 s61, s59, s57")
    a(f"s_mov_b32 s62, {2048*2048*2}")
    a("s_mov_b32 s63, 0x00020000")
    for i in range(16):
        a(f"s_mov_b32 s37, {(i//4)*4096}")
        a(f"buffer_load_dwordx4 v[{vE+4*(i&7)}:{vE+4*(i&7)+3}], v4, s[60:63], s37 offen offset:{(i%4)*1024}")
    return 16


def epi_A(a, vR, vF, vE, nsb):
    a("v_lshlrev_b32 v4, 12, v2")
    a("v_lshl_add_u32 v4, v3, 4, v4")
    a("s_lshl_b32 s46, s40, 6")
    a("v_add_u32 v4, s46, v4")
    for b in range(nsb):
        r = vR + b * 8
        o = vF + (b & 1) * 4
        for k in range(4):
            a(f"v_cvt_pk_bf16_f32 v{o+k}, v{r+2*k}, v{r+2*k+1}")
        a(f"s_mov_b32 s46, {b*16*4096}")
        a(f"buffer_store_dwordx4 v[{o}:{o+3}], v4, s[16:19], s46 offen")


def setup_B(a):
    load_ptrs(a, ["ws", "seq_re", "seq_im"])
    a("s_and_b32 s3, s2, 7")
    a("s_lshr_b32 s4, s2, 3")
    a("s_and_b32 s5, s3, 1")
    a("s_lshr_b32 s6, s3, 1")
    a("s_lshl_b32 s6, s6, 2")
    a("s_and_b32 s7, s4, 3")
    a("s_add_u32 s6, s6, s7")
    a("s_lshr_b32 s7, s4, 2")
    srd(a, 8, 48, 49, 80 * 4096, WS["abt"][0])
    a(f"s_mul_i32 s20, s5, {640*4096}")
    a(f"s_mul_i32 s21, s7, {80*4096}")
    a("s_add_u32 s20, s20, s21")
    srd_add(a, 8, 20)
    a("s_cmp_eq_u32 s5, 1")
    a("s_cselect_b32 s12, s52, s50")
    a("s_cselect_b32 s13, s53, s51")
    a(f"s_mov_b32 s14, {128*4096}")
    a("s_mov_b32 s15, 0x00020000")
    a(f"s_mul_i32 s20, s6, {128*4096}")
    srd_add(a, 12, 20)
    srd(a, 16, 48, 49, 128 * 1280, WS["y"][0])
    a(f"s_mul_i32 s20, s5, {2048*1280}")
    a(f"s_mul_i32 s21, s6, {128*1280}")
    a("s_add_u32 s20, s20, s21")
    a("s_mul_i32 s21, s7, 160")
    a("s_add_u32 s20, s20, s21")
    srd_add(a, 16, 20)
    return 4096, 4096


PFD = 13
TLBWARM = int(__import__('os').environ.get('TLBW', '0'))


def pre_B(a, vE):
    a("s_lshl_b32 s58, s7, 4")
    a("s_lshl_b32 s59, s40, 2")
    a("s_add_u32 s58, s58, s59")
    a("v_add_u32 v7, s58, v3")
    a("v_lshlrev_b32 v7, 12, v7")
    a("v_lshl_add_u32 v7, v2, 4, v7")
    for i in range(3, 3 + PFD):
        a(f"buffer_load_dwordx4 v[{vE+4*(i&7)}:{vE+4*(i&7)+3}], v7, s[12:15], 0 offen offset:{i*256}")
    return 16


def stage_hook_B(a, s, vE):
    i = s + 3 + PFD
    if i < 16:
        a(f"buffer_load_dwordx4 v[{vE+4*(i&7)}:{vE+4*(i&7)+3}], v7, s[12:15], 0 offen offset:{i*256}")


def make_epi_S(ldo, relu=False, resid=False):
    def epi(a, vR, vF, vE, nsb):
        a("s_lshl_b32 s46, s42, 5")
        a("v_add_u32 v4, s46, v2")
        a(f"s_movk_i32 s46, {ldo}")
        a("v_mul_lo_u32 v4, v4, s46")
        a("v_lshl_add_u32 v5, v3, 3, v4")
        a("v_lshl_add_u32 v4, v3, 4, v4")
        a(f"s_mov_b32 s47, {16*ldo}")
        if resid:
            pass
        cnt = 0
        for vb in range(2):
            so = "s47" if vb else "0"
            for p in range((nsb + 1) // 2):
                full = 2 * p + 1 < nsb
                nreg = 4 if full else 2
                o = vF + (cnt & 3) * 4
                cnt += 1
                xr = vE + 12 + vb * 10 + p * 4
                for k in range(nreg):
                    b = 2 * p + (k >> 1)
                    r = vR + (b * 2 + vb) * 4 + (k & 1) * 2
                    if relu:
                        a(f"v_max_f32 v{r}, 0, v{r}")
                        a(f"v_max_f32 v{r+1}, 0, v{r+1}")
                    a(f"v_cvt_pk_bf16_f32 v{o+k}, v{r}, v{r+1}")
                if resid:
                    t = vF + 24
                    for k in range(nreg):
                        unpack(a, t, t + 1, o + k)
                        unpack(a, t + 2, t + 3, vE + p * 4 + k)
                        a(f"v_mul_f32 v{t}, v{t}, v{t+2}")
                        a(f"v_mul_f32 v{t+1}, v{t+1}, v{t+3}")
                        a(f"v_cvt_pk_bf16_f32 v{t+4}, v{t}, v{t+1}")
                        unpack(a, t, t + 1, t + 4)
                        unpack(a, t + 2, t + 3, xr + k)
                        a(f"v_add_f32 v{t}, v{t}, v{t+2}")
                        a(f"v_add_f32 v{t+1}, v{t+1}, v{t+3}")
                        a(f"v_cvt_pk_bf16_f32 v{o+k}, v{t}, v{t+1}")
                a(f"buffer_store_dwordx{nreg} v[{o}:{o+nreg-1}], v{4 if full else 5}, s[16:19], {so} offen offset:{p*64}")
    return epi


def setup_C(a):
    load_ptrs(a, ["ws"])
    a("s_and_b32 s3, s2, 7")
    a("s_lshr_b32 s4, s2, 3")
    a("s_and_b32 s5, s3, 3")
    a("s_lshl_b32 s5, s5, 2")
    a("s_and_b32 s6, s4, 3")
    a("s_add_u32 s5, s5, s6")
    a("s_lshr_b32 s6, s3, 2")
    a("s_lshl_b32 s6, s6, 3")
    a("s_lshr_b32 s7, s4, 2")
    a("s_add_u32 s6, s6, s7")
    srd(a, 8, 48, 49, 96 * 1280, WS["w1t"][0])
    a(f"s_mul_i32 s20, s5, {96*1280}")
    srd_add(a, 8, 20)
    srd(a, 12, 48, 49, 128 * 1280, WS["h2"][0])
    a(f"s_mul_i32 s20, s6, {128*1280}")
    srd_add(a, 12, 20)
    srd(a, 16, 48, 49, 128 * 3072, WS["h1"][0])
    a(f"s_mul_i32 s20, s6, {128*3072}")
    a("s_mul_i32 s21, s5, 192")
    a("s_add_u32 s20, s20, s21")
    srd_add(a, 16, 20)
    return 1280, 1280


def setup_D(a):
    load_ptrs(a, ["ws", "out"])
    a("s_and_b32 s3, s2, 7")
    a("s_lshr_b32 s4, s2, 3")
    a("s_and_b32 s5, s3, 1")
    a("s_lshl_b32 s5, s5, 2")
    a("s_and_b32 s6, s4, 3")
    a("s_add_u32 s5, s5, s6")
    a("s_lshr_b32 s6, s3, 1")
    a("s_lshl_b32 s6, s6, 3")
    a("s_lshr_b32 s7, s4, 2")
    a("s_add_u32 s6, s6, s7")
    srd(a, 8, 48, 49, 80 * 3072, WS["w2t"][0])
    a(f"s_mul_i32 s20, s5, {80*3072}")
    srd_add(a, 8, 20)
    srd(a, 12, 48, 49, 64 * 3072, WS["h1"][0])
    a(f"s_mul_i32 s20, s6, {64*3072}")
    srd_add(a, 12, 20)
    a(f"s_mul_i32 s28, s6, {64*1280}")
    a("s_mul_i32 s29, s5, 160")
    a("s_add_u32 s30, s28, s29")
    srd(a, 16, 50, 51, 64 * 1280 - 0)
    srd_add(a, 16, 30)
    srd(a, 20, 48, 49, 64 * 1280, WS["x1"][0])
    srd_add(a, 20, 30)
    srd(a, 24, 48, 49, 160, WS["mod"][0] + 5 * 1280)
    srd_add(a, 24, 29)
    return 3072, 3072


def pre_epi_D(a, vE):
    a("v_lshlrev_b32 v4, 4, v3")
    a("v_lshlrev_b32 v5, 3, v3")
    a(f"buffer_load_dwordx4 v[{vE}:{vE+3}], v4, s[24:27], 0 offen")
    a(f"buffer_load_dwordx4 v[{vE+4}:{vE+7}], v4, s[24:27], 0 offen offset:64")
    a(f"buffer_load_dwordx2 v[{vE+8}:{vE+9}], v5, s[24:27], 0 offen offset:128")
    a("s_lshl_b32 s46, s42, 5")
    a("v_add_u32 v4, s46, v2")
    a("s_movk_i32 s46, 1280")
    a("v_mul_lo_u32 v4, v4, s46")
    a("v_lshl_add_u32 v5, v3, 3, v4")
    a("v_lshl_add_u32 v4, v3, 4, v4")
    a(f"s_movk_i32 s47, {16*1280}")
    for vb in range(2):
        so = "s47" if vb else "0"
        r = vE + 12 + vb * 10
        a(f"buffer_load_dwordx4 v[{r}:{r+3}], v4, s[20:23], {so} offen")
        a(f"buffer_load_dwordx4 v[{r+4}:{r+7}], v4, s[20:23], {so} offen offset:64")
        a(f"buffer_load_dwordx2 v[{r+8}:{r+9}], v5, s[20:23], {so} offen offset:128")
    return 9


def main():
    a = Asm()
    descs = []
    launches = []
    descs.append(prep_kernel(a)); launches.append(("prep_kernel", PREP_WGS, 256, 10240))
    d, lds = gemma2_kernel(a)
    descs.append(d); launches.append(("gemma_kernel", 256, 512, lds))
    d, lds = gemm_kernel(a, "gemmb_kernel", 2048, 80, 128, 128, True, 1, 3, setup_B, make_epi_S(1280), pre_epi=pre_B, stage_hook=stage_hook_B)
    descs.append(d); launches.append(("gemmb_kernel", 256, 512, lds))
    descs.append(ln_kernel(a, True)); launches.append(("ln2_kernel", LN2_WGS, 256, 10240))
    d, lds = gemm_kernel(a, "gemmc_kernel", 640, 96, 128, 64, True, 1, 5, setup_C, make_epi_S(3072, relu=True))
    descs.append(d); launches.append(("gemmc_kernel", 256, 512, lds))
    d, lds = gemm_kernel(a, "gemmd_kernel", 1536, 80, 64, 128, True, 2, 4, setup_D, make_epi_S(1280, resid=True),
                         pre_epi=pre_epi_D)
    descs.append(d); launches.append(("gemmd_kernel", 256, 512, lds))

    hdr = open(f"cdna_kernels/{NAME}.s.ref").read().split("\n")
    out = []
    for ln in hdr:
        if ln.startswith(";") and "@launch" not in ln and "Override" not in ln and "grid=ceil" not in ln:
            out.append(ln)
        elif not ln.startswith(";"):
            break
    for k, g, b, lds in launches:
        out.append(f"; @launch kernel={k} grid=({g},1,1) block=({b},1,1) lds={lds}")
    out.append('.amdgcn_target "amdgcn-amd-amdhsa--gfx950"')
    out.append(".text")
    txt = "\n".join(out) + "\n" + a.text()
    txt += '.section .rodata,"a"\n'
    for d in descs:
        txt += ".p2align 6\n" + d
    path = sys.argv[1] if len(sys.argv) > 1 else f"cdna_kernels/{NAME}.s"
    open(path, "w").write(txt)
    print("wrote", path, len(txt), "bytes")


if __name__ == "__main__":
    main()
```

```python
import sys

NAME = "adaLN_cond__spectral_fnet__dense_activation_relu__prompt"
S_LEN, D, DFF = 2048, 640, 1536

KA = dict(x=0, seq_re=8, seq_im=16, hid_re=24, hid_im=32, bx=40, w1=48, w2=56, c=64, wmod=72,
          out=80, dbg=88, ws=96)

def _al(x, a=0x10000):
    return (x + a - 1) // a * a
WS = {}
_o = 0
for nm, sz in [("mod", 3840 * 2), ("modf", 3840 * 4), ("w1t", DFF * D * 2), ("w2t", D * DFF * 2), ("h", S_LEN * D * 2),
               ("abt", 2 * D * S_LEN * 2), ("y", 2 * S_LEN * D * 2), ("x1", S_LEN * D * 2),
               ("h2", S_LEN * D * 2), ("h1", S_LEN * DFF * 2)]:
    WS[nm] = (_o, sz)
    _o = _al(_o + sz)


PREP_WGS = 120 + 26 + 256
LN2_WGS = 256 + 480
LN1_WGS = 256


class Asm:
    def __init__(self):
        self.lines = []

    def __call__(self, s):
        import re
        m = re.search(r"offset:(\d+)", s)
        if m and s.startswith("buffer_"):
            assert int(m.group(1)) <= 4095, s
        if m and s.startswith("ds_"):
            assert int(m.group(1)) <= 65535, s
        self.lines.append("    " + s)

    def label(self, s):
        self.lines.append(s + ":")

    def raw(self, s):
        self.lines.append(s)

    def text(self):
        return "\n".join(self.lines) + "\n"


def srd(a, sreg, base_lo, base_hi, nbytes, add=0):
    if add:
        a(f"s_add_u32 s{sreg}, s{base_lo}, {add}")
        a(f"s_addc_u32 s{sreg+1}, s{base_hi}, 0")
    else:
        a(f"s_mov_b32 s{sreg}, s{base_lo}")
        a(f"s_mov_b32 s{sreg+1}, s{base_hi}")
    a(f"s_mov_b32 s{sreg+2}, {nbytes}")
    a(f"s_mov_b32 s{sreg+3}, 0x00020000")


def srd_add(a, sreg, soff):
    a(f"s_add_u32 s{sreg}, s{sreg}, s{soff}")
    a(f"s_addc_u32 s{sreg+1}, s{sreg+1}, 0")


def kernel_header(a, label):
    a.raw(f".globl {label}")
    a.raw(".p2align 8")
    a.raw(f".type {label},@function")
    a.label(label)


def kernel_desc(label, nvgpr, nsgpr, accum):
    return f""".amdhsa_kernel {label}
  .amdhsa_next_free_vgpr {nvgpr}
  .amdhsa_next_free_sgpr {nsgpr}
  .amdhsa_accum_offset {accum}
  .amdhsa_group_segment_fixed_size 0
  .amdhsa_kernarg_size 104
  .amdhsa_user_sgpr_count 2
  .amdhsa_user_sgpr_kernarg_segment_ptr 1
  .amdhsa_system_sgpr_workgroup_id_x 1
  .amdhsa_float_denorm_mode_32 3
  .amdhsa_float_denorm_mode_16_64 3
.end_amdhsa_kernel
"""


def unpack(a, lo, hi, src):
    a(f"v_lshlrev_b32 v{lo}, 16, v{src}")
    a(f"v_and_b32 v{hi}, 0xffff0000, v{src}")


def transpose_body(a, L, base):
    a.label(f"{L}_tr")
    a(f"s_load_dwordx2 s[4:5], s[0:1], {KA['ws']}")
    a(f"s_load_dwordx4 s[28:31], s[0:1], {KA['w1']}")
    a(f"s_sub_u32 s6, s2, {base}")
    a("s_waitcnt lgkmcnt(0)")
    a("s_cmp_ge_u32 s6, 240")
    a(f"s_cbranch_scc1 {L}_tr2")
    a("s_mul_i32 s7, s6, 2731")
    a("s_lshr_b32 s7, s7, 16")
    a("s_mul_i32 s20, s7, 24")
    a("s_sub_u32 s20, s6, s20")
    srd(a, 8, 28, 29, 640 * 1536 * 2)
    srd(a, 12, 4, 5, WS["w1t"][1], WS["w1t"][0])
    a("s_movk_i32 s21, 3072")
    a("s_movk_i32 s22, 1280")
    a(f"s_branch {L}_trgo")
    a.label(f"{L}_tr2")
    a("s_sub_u32 s6, s6, 240")
    a("s_mul_i32 s7, s6, 6554")
    a("s_lshr_b32 s7, s7, 16")
    a("s_mul_i32 s20, s7, 10")
    a("s_sub_u32 s20, s6, s20")
    srd(a, 8, 30, 31, 640 * 1536 * 2)
    srd(a, 12, 4, 5, WS["w2t"][1], WS["w2t"][0])
    a("s_movk_i32 s21, 1280")
    a("s_movk_i32 s22, 3072")
    a.label(f"{L}_trgo")
    a("v_lshrrev_b32 v1, 3, v0")
    a("v_and_b32 v2, 7, v0")
    a("s_lshl_b32 s23, s7, 6")
    a("v_add_u32 v3, s23, v1")
    a("v_mul_lo_u32 v3, v3, s21")
    a("v_lshl_add_u32 v3, v2, 4, v3")
    a("s_lshl_b32 s24, s20, 7")
    a("v_add_u32 v3, s24, v3")
    a("s_lshl_b32 s25, s21, 5")
    a("buffer_load_dwordx4 v[8:11], v3, s[8:11], 0 offen")
    a("buffer_load_dwordx4 v[12:15], v3, s[8:11], s25 offen")
    a("s_movk_i32 s26, 1152")
    a("v_mul_lo_u32 v4, v2, s26")
    a("v_lshl_add_u32 v4, v1, 1, v4")
    a("s_waitcnt vmcnt(1)")
    for q in range(4):
        a(f"ds_write_b16 v4, v{8+q} offset:{(2*q)*144}")
        a(f"ds_write_b16_d16_hi v4, v{8+q} offset:{(2*q+1)*144}")
    a("s_waitcnt vmcnt(0)")
    for q in range(4):
        a(f"ds_write_b16 v4, v{12+q} offset:{(2*q)*144+64}")
        a(f"ds_write_b16_d16_hi v4, v{12+q} offset:{(2*q+1)*144+64}")
    a("s_waitcnt lgkmcnt(0)")
    a("s_barrier")
    a("s_movk_i32 s26, 144")
    a("v_mul_lo_u32 v5, v1, s26")
    a("v_lshl_add_u32 v5, v2, 4, v5")
    a("ds_read_b128 v[8:11], v5")
    a(f"ds_read_b128 v[12:15], v5 offset:{32*144}")
    a("s_lshl_b32 s23, s20, 6")
    a("v_add_u32 v6, s23, v1")
    a("v_mul_lo_u32 v6, v6, s22")
    a("v_lshl_add_u32 v6, v2, 4, v6")
    a("s_lshl_b32 s24, s7, 7")
    a("v_add_u32 v6, s24, v6")
    a("s_lshl_b32 s25, s22, 5")
    a("s_waitcnt lgkmcnt(1)")
    a("buffer_store_dwordx4 v[8:11], v6, s[12:15], 0 offen")
    a("s_waitcnt lgkmcnt(0)")
    a("buffer_store_dwordx4 v[12:15], v6, s[12:15], s25 offen")
    a(f"s_branch {L}_end")


def prep_kernel(a):
    L = "prep_kernel"
    kernel_header(a, L)
    a(f"s_cmp_ge_u32 s2, {PREP_WGS}")
    a(f"s_cbranch_scc1 {L}_end")
    a("s_cmp_ge_u32 s2, 146")
    a(f"s_cbranch_scc1 {L}_ln")
    a("s_cmp_ge_u32 s2, 120")
    a(f"s_cbranch_scc1 {L}_pf")
    a(f"s_load_dwordx2 s[4:5], s[0:1], {KA['ws']}")
    a(f"s_load_dwordx4 s[32:35], s[0:1], {KA['c']}")
    a("s_waitcnt lgkmcnt(0)")
    a("s_and_b32 s6, s2, 7")
    a("s_mul_i32 s6, s6, 15")
    a("s_lshr_b32 s7, s2, 3")
    a("s_add_u32 s6, s6, s7")
    srd(a, 8, 34, 35, 640 * 3840 * 2)
    srd(a, 12, 32, 33, 640 * 2)
    srd(a, 16, 4, 5, WS["mod"][1], WS["mod"][0])
    a("v_lshrrev_b32 v1, 2, v0")
    a("v_and_b32 v2, 3, v0")
    a("s_movk_i32 s20, 7680")
    a("v_mul_lo_u32 v3, v1, s20")
    a("v_lshl_add_u32 v3, v2, 4, v3")
    a("s_lshl_b32 s21, s6, 6")
    a("v_add_u32 v3, s21, v3")
    a("v_lshlrev_b32 v4, 1, v1")
    for p in range(10):
        a(f"buffer_load_ushort v{10+p}, v4, s[12:15], 0 offen offset:{p*128}")
    for p in range(10):
        a(f"s_mov_b32 s22, {p*64*7680}")
        a(f"buffer_load_dwordx4 v[{20+4*p}:{23+4*p}], v3, s[8:11], s22 offen")
    for k in range(8):
        a(f"v_mov_b32 v{60+k}, 0")
    a("s_waitcnt vmcnt(10)")
    a("s_mov_b32 s23, 0xbfb8aa3b")
    for p in range(10):
        a(f"v_lshlrev_b32 v{10+p}, 16, v{10+p}")
        a(f"v_mul_f32 v70, s23, v{10+p}")
        a("v_exp_f32 v70, v70")
        a("s_nop 0")
        a("v_add_f32 v70, 1.0, v70")
        a("v_rcp_f32 v70, v70")
        a("s_nop 0")
        a(f"v_mul_f32 v70, v{10+p}, v70")
        a("v_cvt_pk_bf16_f32 v70, v70, v70")
        a(f"v_lshlrev_b32 v{10+p}, 16, v70")
    for p in range(10):
        a(f"s_waitcnt vmcnt({9-p})")
        for q in range(4):
            unpack(a, 70, 71, 20 + 4 * p + q)
            a(f"v_fmac_f32 v{60+2*q}, v{10+p}, v70")
            a(f"v_fmac_f32 v{61+2*q}, v{10+p}, v71")
    a("v_lshlrev_b32 v5, 7, v1")
    a("v_lshl_add_u32 v5, v2, 5, v5")
    a("ds_write_b128 v5, v[60:63]")
    a("ds_write_b128 v5, v[64:67] offset:16")
    a("s_waitcnt lgkmcnt(0)")
    a("s_barrier")
    a("v_and_b32 v6, 31, v0")
    a("v_lshrrev_b32 v7, 5, v0")
    a("v_lshlrev_b32 v8, 10, v7")
    a("v_lshl_add_u32 v8, v6, 2, v8")
    for i in range(8):
        a(f"ds_read_b32 v{20+i}, v8 offset:{i*128}")
    a("s_waitcnt lgkmcnt(0)")
    a("v_add_f32 v20, v20, v21")
    a("v_add_f32 v22, v22, v23")
    a("v_add_f32 v24, v24, v25")
    a("v_add_f32 v26, v26, v27")
    a("v_add_f32 v20, v20, v22")
    a("v_add_f32 v24, v24, v26")
    a("v_add_f32 v20, v20, v24")
    a("v_lshlrev_b32 v9, 2, v0")
    a("ds_write_b32 v9, v20 offset:8192")
    a("s_waitcnt lgkmcnt(0)")
    a("s_barrier")
    a("v_lshlrev_b32 v9, 2, v6")
    for i in range(8):
        a(f"ds_read_b32 v{20+i}, v9 offset:{8192+i*128}")
    a("s_waitcnt lgkmcnt(0)")
    a("v_add_f32 v20, v20, v21")
    a("v_add_f32 v22, v22, v23")
    a("v_add_f32 v24, v24, v25")
    a("v_add_f32 v26, v26, v27")
    a("v_add_f32 v20, v20, v22")
    a("v_add_f32 v24, v24, v26")
    a("v_add_f32 v20, v20, v24")
    a("v_cvt_pk_bf16_f32 v20, v20, v20")
    a("v_lshlrev_b32 v9, 1, v6")
    a("v_add_u32 v9, s21, v9")
    a("v_cmp_gt_u32 vcc, 32, v0")
    a("s_and_saveexec_b64 s[24:25], vcc")
    a(f"s_cbranch_execz {L}_end")
    a("buffer_store_short v20, v9, s[16:19], 0 offen")
    a(f"s_branch {L}_end")
    a.label(f"{L}_pf")
    a(f"s_load_dwordx8 s[28:35], s[0:1], {KA['seq_re']}")
    a("s_sub_u32 s6, s2, 120")
    a("s_waitcnt lgkmcnt(0)")
    a("s_mov_b32 s8, s32")
    a("s_mov_b32 s9, s33")
    a(f"s_mov_b32 s10, {640*640*2}")
    a("s_mov_b32 s11, 0x00020000")
    a("s_cmp_lt_u32 s6, 13")
    a(f"s_cbranch_scc1 {L}_pfgo")
    a("s_sub_u32 s6, s6, 13")
    a("s_mov_b32 s8, s34")
    a("s_mov_b32 s9, s35")
    a.label(f"{L}_pfgo")
    a("s_lshl_b32 s6, s6, 16")
    a("v_lshlrev_b32 v1, 4, v0")
    a("v_add_u32 v1, s6, v1")
    for i in range(16):
        a(f"s_mov_b32 s7, {i*4096}")
        a(f"buffer_load_dwordx4 v[{4+4*i}:{7+4*i}], v1, s[8:11], s7 offen")
    a(f"s_branch {L}_end")
    a.label(f"{L}_ln")
    a(f"s_load_dwordx2 s[4:5], s[0:1], {KA['ws']}")
    a(f"s_load_dwordx2 s[6:7], s[0:1], {KA['x']}")
    a("s_sub_u32 s3, s2, 146")
    a("v_lshrrev_b32 v1, 5, v0")
    a("s_lshl_b32 s3, s3, 3")
    a("v_add_u32 v1, s3, v1")
    a("v_and_b32 v2, 31, v0")
    a("v_lshlrev_b32 v2, 3, v2")
    a("s_movk_i32 s3, 1280")
    a("v_mul_lo_u32 v1, v1, s3")
    a("v_add_u32 v1, v1, v2")
    a("s_waitcnt lgkmcnt(0)")
    NB = S_LEN * D * 2
    srd(a, 8, 6, 7, NB)
    srd(a, 16, 4, 5, NB, WS["h"][0])
    for i in range(5):
        a(f"buffer_load_dwordx2 v[{10+2*i}:{11+2*i}], v1, s[8:11], 0 offen offset:{i*256}")
    a("s_waitcnt vmcnt(0)")
    for k in range(10):
        unpack(a, 20 + 2 * k, 21 + 2 * k, 10 + k)
    ln_core(a, 20, 0, 0, 40, 50, apply=False)
    for i in range(5):
        a(f"buffer_store_dwordx2 v[{40+2*i}:{41+2*i}], v1, s[16:19], 0 offen offset:{i*256}")
    a.label(f"{L}_end")
    a("s_endpgm")
    return kernel_desc(L, 72, 40, 72)


def reduce32(a, v, t):
    a("s_nop 1")
    a(f"v_add_f32_dpp v{t}, v{v}, v{v} quad_perm:[1,0,3,2] row_mask:0xf bank_mask:0xf")
    a("s_nop 1")
    a(f"v_add_f32_dpp v{v}, v{t}, v{t} quad_perm:[2,3,0,1] row_mask:0xf bank_mask:0xf")
    a("s_nop 1")
    a(f"v_add_f32_dpp v{t}, v{v}, v{v} row_half_mirror row_mask:0xf bank_mask:0xf")
    a("s_nop 1")
    a(f"v_add_f32_dpp v{v}, v{t}, v{t} row_mirror row_mask:0xf bank_mask:0xf")
    a(f"ds_swizzle_b32 v{t}, v{v} offset:0x401F")
    a("s_waitcnt lgkmcnt(0)")
    a(f"v_add_f32 v{v}, v{v}, v{t}")


def ln_core(a, X, C1, SH, OUT, T, apply=True):
    s, t, m, r = T, T + 1, T + 2, T + 3
    a(f"v_add_f32 v{s}, v{X}, v{X+1}")
    a(f"v_add_f32 v{t}, v{X+2}, v{X+3}")
    for k in range(4, 20, 2):
        a(f"v_add_f32 v{s}, v{s}, v{X+k}")
        a(f"v_add_f32 v{t}, v{t}, v{X+k+1}")
    a(f"v_add_f32 v{s}, v{s}, v{t}")
    reduce32(a, s, t)
    a(f"v_mul_f32 v{m}, 0x3acccccd, v{s}")
    a(f"v_sub_f32 v{t}, v{X}, v{m}")
    a(f"v_mul_f32 v{s}, v{t}, v{t}")
    a(f"v_sub_f32 v{t}, v{X+1}, v{m}")
    a(f"v_mul_f32 v{r}, v{t}, v{t}")
    for k in range(2, 20, 2):
        a(f"v_sub_f32 v{t}, v{X+k}, v{m}")
        a(f"v_fmac_f32 v{s}, v{t}, v{t}")
        a(f"v_sub_f32 v{t}, v{X+k+1}, v{m}")
        a(f"v_fmac_f32 v{r}, v{t}, v{t}")
    a(f"v_add_f32 v{s}, v{s}, v{r}")
    reduce32(a, s, t)
    a(f"v_mul_f32 v{s}, 0x3acccccd, v{s}")
    a(f"v_cvt_pk_bf16_f32 v{t}, v{m}, v{s}")
    unpack(a, m, s, t)
    a(f"v_add_f32 v{s}, 0x3727c5ac, v{s}")
    a(f"v_cvt_pk_bf16_f32 v{t}, v{s}, v{s}")
    a(f"v_lshlrev_b32 v{s}, 16, v{t}")
    a(f"v_sqrt_f32 v{s}, v{s}")
    a("s_nop 0")
    a(f"v_cvt_pk_bf16_f32 v{t}, v{s}, v{s}")
    a(f"v_lshlrev_b32 v{s}, 16, v{t}")
    a(f"v_rcp_f32 v{r}, v{s}")
    a("s_nop 0")
    u, w = T + 4, T + 5
    for k in range(0, 20, 2):
        a(f"v_sub_f32 v{u}, v{X+k}, v{m}")
        a(f"v_sub_f32 v{w}, v{X+k+1}, v{m}")
        a(f"v_cvt_pk_bf16_f32 v{t}, v{u}, v{w}")
        unpack(a, u, w, t)
        a(f"v_mul_f32 v{u}, v{u}, v{r}")
        a(f"v_mul_f32 v{w}, v{w}, v{r}")
        if not apply:
            a(f"v_cvt_pk_bf16_f32 v{OUT+k//2}, v{u}, v{w}")
            continue
        a(f"v_cvt_pk_bf16_f32 v{t}, v{u}, v{w}")
        unpack(a, u, w, t)
        a(f"v_mul_f32 v{u}, v{u}, v{C1+k}")
        a(f"v_mul_f32 v{w}, v{w}, v{C1+k+1}")
        a(f"v_cvt_pk_bf16_f32 v{t}, v{u}, v{w}")
        unpack(a, u, w, t)
        a(f"v_add_f32 v{u}, v{u}, v{SH+k}")
        a(f"v_add_f32 v{w}, v{w}, v{SH+k+1}")
        a(f"v_cvt_pk_bf16_f32 v{OUT+k//2}, v{u}, v{w}")


def ln_kernel(a, second):
    L = "ln2_kernel" if second else "ln1_kernel"
    kernel_header(a, L)
    if not second:
        a(f"s_cmp_ge_u32 s2, {LN1_WGS}")
        a(f"s_cbranch_scc1 {L}_end")
        a("s_cmp_lt_u32 s2, 256")
        a(f"s_cbranch_scc1 {L}_go")
        a(f"s_load_dwordx4 s[28:31], s[0:1], {KA['seq_re']}")
        a("s_sub_u32 s6, s2, 192")
        a("s_waitcnt lgkmcnt(0)")
        a("s_cmp_ge_u32 s6, 128")
        a("s_cselect_b32 s8, s30, s28")
        a("s_cselect_b32 s9, s31, s29")
        a(f"s_mov_b32 s10, {2048*2048*2}")
        a("s_mov_b32 s11, 0x00020000")
        a("s_and_b32 s6, s6, 127")
        a("s_lshl_b32 s6, s6, 16")
        a("v_lshlrev_b32 v1, 4, v0")
        a("v_add_u32 v1, s6, v1")
        for i in range(16):
            a(f"s_mov_b32 s7, {i*4096}")
            a(f"buffer_load_dwordx4 v[{4+4*i}:{7+4*i}], v1, s[8:11], s7 offen")
        a("s_endpgm")
        a.label(f"{L}_go")
    else:
        a(f"s_cmp_ge_u32 s2, {LN2_WGS}")
        a(f"s_cbranch_scc1 {L}_end")
        a("s_cmp_lt_u32 s2, 256")
        a(f"s_cbranch_scc1 {L}_go")
        transpose_body(a, L, 256)
        a.label(f"{L}_go")
    a(f"s_load_dwordx2 s[4:5], s[0:1], {KA['ws']}")
    a(f"s_load_dwordx2 s[6:7], s[0:1], {KA['x']}")
    a("s_waitcnt lgkmcnt(0)")
    NB = S_LEN * D * 2
    srd(a, 8, 6, 7, NB)
    srd(a, 12, 4, 5, WS["mod"][1], WS["mod"][0])
    srd(a, 16, 4, 5, NB, WS["h2" if second else "h"][0])
    if second:
        srd(a, 20, 4, 5, NB, WS["y"][0])
        srd(a, 24, 4, 5, NB, WS["y"][0] + NB)
        srd(a, 28, 4, 5, NB, WS["x1"][0])
    a("v_lshrrev_b32 v1, 5, v0")
    a("s_lshl_b32 s3, s2, 3")
    a("v_add_u32 v1, s3, v1")
    a("v_and_b32 v2, 31, v0")
    a("v_lshlrev_b32 v2, 3, v2")
    a("s_movk_i32 s3, 1280")
    a("v_mul_lo_u32 v1, v1, s3")
    a("v_add_u32 v1, v1, v2")
    for i in range(5):
        a(f"buffer_load_dwordx2 v[{10+2*i}:{11+2*i}], v1, s[8:11], 0 offen offset:{i*256}")
    if second:
        for i in range(5):
            a(f"buffer_load_dwordx2 v[{20+2*i}:{21+2*i}], v1, s[20:23], 0 offen offset:{i*256}")
        for i in range(5):
            a(f"buffer_load_dwordx2 v[{30+2*i}:{31+2*i}], v1, s[24:27], 0 offen offset:{i*256}")
        for i in range(5):
            a(f"buffer_load_dwordx2 v[{40+2*i}:{41+2*i}], v2, s[12:15], 0 offen offset:{2*1280+i*256}")
    coff = (4 if second else 1) * 1280
    soff = (3 if second else 0) * 1280
    a(f"s_movk_i32 s3, {coff}")
    for i in range(5):
        a(f"buffer_load_dwordx2 v[{50+2*i}:{51+2*i}], v2, s[12:15], s3 offen offset:{i*256}")
    a(f"s_movk_i32 s32, {soff}")
    for i in range(5):
        a(f"buffer_load_dwordx2 v[{60+2*i}:{61+2*i}], v2, s[12:15], s32 offen offset:{i*256}")
    X, C1, SH, OUT, T = 70, 90, 110, 130, 140
    if second:
        a("s_waitcnt vmcnt(10)")
        for k in range(10):
            unpack(a, T, T + 1, 20 + k)
            unpack(a, T + 2, T + 3, 30 + k)
            a(f"v_sub_f32 v{T}, v{T}, v{T+2}")
            a(f"v_sub_f32 v{T+1}, v{T+1}, v{T+3}")
            a(f"v_cvt_pk_bf16_f32 v{T+4}, v{T}, v{T+1}")
            unpack(a, T, T + 1, T + 4)
            unpack(a, T + 2, T + 3, 40 + k)
            a(f"v_mul_f32 v{T}, v{T}, v{T+2}")
            a(f"v_mul_f32 v{T+1}, v{T+1}, v{T+3}")
            a(f"v_cvt_pk_bf16_f32 v{T+4}, v{T}, v{T+1}")
            unpack(a, T, T + 1, T + 4)
            unpack(a, T + 2, T + 3, 10 + k)
            a(f"v_add_f32 v{T}, v{T}, v{T+2}")
            a(f"v_add_f32 v{T+1}, v{T+1}, v{T+3}")
            a(f"v_cvt_pk_bf16_f32 v{20+k}, v{T}, v{T+1}")
            unpack(a, X + 2 * k, X + 2 * k + 1, 20 + k)
        for i in range(5):
            a(f"buffer_store_dwordx2 v[{20+2*i}:{21+2*i}], v1, s[28:31], 0 offen offset:{i*256}")
        a("s_waitcnt vmcnt(5)")
    else:
        a("s_waitcnt vmcnt(10)")
        for k in range(10):
            unpack(a, X + 2 * k, X + 2 * k + 1, 10 + k)
        a("s_waitcnt vmcnt(0)")
    for k in range(10):
        unpack(a, T, T + 1, 50 + k)
        a(f"v_add_f32 v{T}, 1.0, v{T}")
        a(f"v_add_f32 v{T+1}, 1.0, v{T+1}")
        a(f"v_cvt_pk_bf16_f32 v{T+2}, v{T}, v{T+1}")
        unpack(a, C1 + 2 * k, C1 + 2 * k + 1, T + 2)
        unpack(a, SH + 2 * k, SH + 2 * k + 1, 60 + k)
    ln_core(a, X, C1, SH, OUT, T)
    for i in range(5):
        a(f"buffer_store_dwordx2 v[{OUT+2*i}:{OUT+1+2*i}], v1, s[16:19], 0 offen offset:{i*256}")
    a.label(f"{L}_end")
    a("s_endpgm")
    return kernel_desc(L, 152, 40, 152)


def rowmap(paired_ok, nb, b, i):
    if paired_ok and not (b == nb - 1 and nb % 2 == 1):
        return 32 * (b >> 1) + 8 * (i >> 2) + 4 * (b & 1) + (i & 3)
    return 16 * b + i


def fsw_row(paired_ok, nb, n):
    npair = (nb // 2) * 32 if paired_ok else 0
    if n < npair:
        return 2 * ((n >> 3) & 3) + ((n >> 1) & 1)
    return (n >> 1) & 7


def check_conflicts(paired_ok, nb):
    groups = [[0, 1, 2, 3, 12, 13, 14, 15] + list(range(20, 28)),
              list(range(4, 12)) + [16, 17, 18, 19, 28, 29, 30, 31]]
    groups += [[x + 32 for x in g] for g in groups]
    for b in range(nb):
        for j in range(2):
            for g in groups:
                qs = set()
                for l in g:
                    n = rowmap(paired_ok, nb, b, l & 15)
                    assert fsw_row(paired_ok, nb, n) == ((l & 15) >> 1)
                    addr = n * 128 + ((4 * j) ^ (l >> 4) ^ fsw_row(paired_ok, nb, n)) * 16
                    qs.add((addr // 16) % 16)
                assert len(qs) == 16, (paired_ok, nb, b, j)


def gemm_kernel(a, L, K, BS, BV, BK, ndimS, ksplit, nslot, setup, epilogue, pre_epi=None, nwg=256, stage_hook=None):
    nsb = BS // 16
    check_conflicts(ndimS, nsb)
    check_conflicts(not ndimS, 2)
    kernel_header(a, L)
    a(f"s_cmp_ge_u32 s2, {nwg}")
    a(f"s_cbranch_scc1 {L}_end")
    if STAMP:
        a("s_memtime s[96:97]")
    a("v_lshrrev_b32 v1, 6, v0")
    a("s_nop 0")
    a("v_readfirstlane_b32 s40, v1")
    a("v_and_b32 v1, 63, v0")
    a("v_and_b32 v2, 15, v1")
    a("v_lshrrev_b32 v3, 4, v1")
    ldS, ldV = setup(a)
    nsub = BK // 64
    nst = K // BK
    subS, subV = BS * 128, BV * 128
    slotsz = nsub * (subS + subV)
    NS = min(nslot, nst)
    chunks = [("S", u, r) for u in range(nsub) for r in range(BS // 8)] + \
             [("V", u, r) for u in range(nsub) for r in range(BV // 8)]
    nS = nsub * BS // 8
    assert nS % 4 == 0 and len(chunks) % 4 == 0
    nt = len(chunks) // 4

    def lds_off(op, u, r):
        return (u * subS + r * 1024) if op == "S" else (nsub * subS + u * subV + r * 1024)

    steps = [(u, j) for u in range(nsub) for j in range(2)] if ksplit == 1 else [(u, None) for u in range(nsub)]
    spw = len(steps)
    vDMA = 8
    nj = 2 if ksplit == 1 else 1
    nSA = 2 if (ndimS and nsb % 2 == 1) else 1
    vSA = 8
    vVA = vSA + NS * nSA * nj
    vT = max(vVA + NS * nj, vDMA + nt)
    vF = (vT + 4 + 3) // 4 * 4
    nfr = nsb + 2
    vR = vF + 2 * nfr * 4
    vE = vR + nsb * 8
    vTot = vE + (32 if pre_epi else 0) + (1 if STAMP else 0)
    accum = (vTot + 3) // 4 * 4
    nacc = nsb * 2 * 4
    assert accum + nacc <= 256
    sLO = 64
    a("s_cmp_lt_u32 s40, 4")
    a(f"s_cbranch_scc1 {L}_comp")
    a("s_sub_u32 s40, s40, 4")
    a("v_lshrrev_b32 v4, 3, v1")
    a("v_and_b32 v5, 7, v1")
    a("v_and_b32 v6, 1, v3")
    a("v_xor_b32 v6, v6, v5")
    a("v_xor_b32 v7, v3, v5")
    a(f"s_movk_i32 s46, {ldS}")
    a(f"v_mul_lo_u32 v{vT}, v4, s46")
    a(f"s_movk_i32 s46, {ldV}")
    a(f"v_mul_lo_u32 v{vT+1}, v4, s46")
    q = []

    def vm_wait_for(tag):
        last = -1
        for idx, t in enumerate(q):
            if t == tag:
                last = idx
        return min(len(q) - 1 - last, 63)

    def issue_one(s, t):
        op = chunks[4 * t][0]
        a(f"s_add_u32 m0, s{sLO+t}, {(s % NS)*slotsz}")
        a(f"s_movk_i32 s46, {s*BK*2}")
        sr = "s[8:11]" if op == "S" else "s[12:15]"
        a(f"buffer_load_dwordx4 v{vDMA+t}, {sr}, s46 offen lds")
        q.append(s)

    def issue(s):
        for t in range(nt):
            issue_one(s, t)

    def sel(dst, vals):
        if all(v == vals[0] + (vals[1] - vals[0]) * k for k, v in enumerate(vals)):
            if vals[1] == vals[0]:
                a(f"s_mov_b32 s{dst}, {vals[0]}")
            else:
                a(f"s_mul_i32 s{dst}, s40, {vals[1]-vals[0]}")
                if vals[0]:
                    a(f"s_add_u32 s{dst}, s{dst}, {vals[0]}")
        else:
            a(f"s_mov_b32 s{dst}, {vals[0]}")
            for w in range(1, 4):
                a(f"s_cmp_eq_u32 s40, {w}")
                a(f"s_cselect_b32 s{dst}, {vals[w]}, s{dst}")

    for t in range(nt):
        ops = [chunks[4 * t + w] for w in range(4)]
        op = ops[0][0]
        assert all(o[0] == op for o in ops)
        ld = ldS if op == "S" else ldV
        paired_ok = ndimS if op == "S" else (not ndimS)
        nb = nsb if op == "S" else 2
        npair = (nb // 2) * 32 if paired_ok else 0
        def is_paired(o):
            n = o[2] * 8
            if op == "V":
                n &= 31
            return n < npair
        pk = [is_paired(o) for o in ops]
        sx = [(2 * (o[2] & 3) if p else 4 * (o[2] & 1)) for o, p in zip(ops, pk)]
        for o, p, x in zip(ops, pk, sx):
            for lane in range(64):
                n = o[2] * 8 + (lane >> 3)
                nn = n & 31 if op == "V" else n
                f = fsw_row(paired_ok, nb, nn)
                lx = ((lane >> 4) & 1) if p else ((lane >> 4) & 3)
                assert f == (x ^ lx), (op, o, lane)
        sel(44, sx)
        sel(45, [o[2] * 8 * ld + o[1] * 128 for o in ops])
        sel(sLO + t, [lds_off(*o) for o in ops])
        if all(pk) or not any(pk):
            a(f"v_xor_b32 v{vT+2}, s44, v{6 if pk[0] else 7}")
        else:
            sel(47, [1 if p else 0 for p in pk])
            a("s_cmp_eq_u32 s47, 1")
            a("s_cselect_b64 vcc, -1, 0")
            a(f"v_cndmask_b32 v{vT+2}, v7, v6, vcc")
            a(f"v_xor_b32 v{vT+2}, s44, v{vT+2}")
        a(f"v_lshl_add_u32 v{vT+2}, v{vT+2}, 4, v{vT if op == 'S' else vT+1}")
        a(f"v_add_u32 v{vDMA+t}, s45, v{vT+2}")
        issue_one(0, t)
    if NS > 1:
        issue(1)
    a(f"s_waitcnt vmcnt({vm_wait_for(0)})")
    a("s_barrier")
    nxt = 2
    for s in range(nst - 1):
        cnt = 0
        while nxt < nst and nxt <= s + NS - 1 and cnt < 2:
            issue(nxt)
            nxt += 1
            cnt += 1
        a(f"s_waitcnt vmcnt({vm_wait_for(s+1)})")
        a("s_barrier")
    a("s_endpgm")
    a.label(f"{L}_comp")
    if ksplit == 2:
        a("s_and_b32 s42, s40, 1")
        a("s_lshr_b32 s43, s40, 1")
    else:
        a("s_mov_b32 s42, s40")
        a("s_mov_b32 s43, 0")
    a("v_lshrrev_b32 v4, 1, v2")
    a("v_xor_b32 v4, v4, v3")
    if ksplit == 2:
        a("s_lshl_b32 s46, s43, 2")
        a("v_xor_b32 v4, s46, v4")
    a("v_and_b32 v5, 12, v2")
    a("v_lshlrev_b32 v5, 1, v5")
    a("v_and_b32 v6, 3, v2")
    a("v_or_b32 v5, v5, v6")
    def addr_regs(dst_fn, rowreg, extra_sgpr=None):
        for j in range(nj):
            a(f"v_xor_b32 v6, {4*j}, v4")
            a(f"v_lshlrev_b32 v6, 4, v6")
            a(f"v_lshl_add_u32 v6, v{rowreg}, 7, v6")
            if extra_sgpr is not None:
                a(f"v_add_u32 v6, s{extra_sgpr}, v6")
            for sl in range(NS):
                a(f"v_add_u32 v{dst_fn(sl, j)}, {sl*slotsz}, v6")
    saddr = lambda kind, sl, j: vSA + (sl * nSA + kind) * nj + j
    vaddr = lambda sl, j: vVA + sl * nj + j
    addr_regs(lambda sl, j: saddr(0, sl, j), 5 if ndimS else 2)
    if nSA == 2:
        addr_regs(lambda sl, j: saddr(1, sl, j), 2)
    a(f"s_lshl_b32 s46, s42, 12")
    a(f"s_add_u32 s46, s46, {nsub*subS}")
    addr_regs(vaddr, 2 if ndimS else 5, 46)
    if pre_epi:
        pre_epi(a, vE)

    def frag_reads(s, k, buf):
        slot = s % NS
        u, j = steps[k]
        jj = j if j is not None else 0
        for vb in range(2):
            r = vF + (buf * nfr + nsb + vb) * 4
            off = u * subV + (rowmap(not ndimS, 2, vb, 0)) * 128
            a(f"ds_read_b128 v[{r}:{r+3}], v{vaddr(slot, jj)} offset:{off}")
        for b in range(nsb):
            r = vF + (buf * nfr + b) * 4
            left = ndimS and nsb % 2 == 1 and b == nsb - 1
            off = u * subS + rowmap(ndimS, nsb, b, 0) * 128
            a(f"ds_read_b128 v[{r}:{r+3}], v{saddr(1 if left else 0, slot, jj)} offset:{off}")

    def mfmas(buf, first):
        for b in range(nsb):
            for vb in range(2):
                ar = (b * 2 + vb) * 4
                sf = vF + (buf * nfr + b) * 4
                vf = vF + (buf * nfr + nsb + vb) * 4
                A, B = (sf, vf) if ndimS else (vf, sf)
                c = "0" if first else f"a[{ar}:{ar+3}]"
                a(f"v_mfma_f32_16x16x32_bf16 a[{ar}:{ar+3}], v[{A}:{A+3}], v[{B}:{B+3}], {c}")

    nstamp = [0]
    def stamp():
        if STAMP:
            a(f"s_memtime s[{100-2}:{100-1}]")
            a("s_waitcnt lgkmcnt(0)")
            a(f"v_writelane_b32 v{vST}, s98, {nstamp[0]}")
            nstamp[0] += 1
    vST = accum - 1
    step = 0
    if STAMP:
        a(f"v_writelane_b32 v{vST}, s96, 63")
    stamp()
    a("s_barrier")
    stamp()
    frag_reads(0, 0, 0)
    for s in range(nst):
        if stage_hook:
            stage_hook(a, s, vE)
        for k in range(spw):
            buf = step & 1
            last = k == spw - 1
            if not last:
                frag_reads(s, k + 1, buf ^ 1)
                a(f"s_waitcnt lgkmcnt({nfr})")
            else:
                a("s_waitcnt lgkmcnt(0)")
                if s + 1 < nst:
                    a("s_barrier")
                    stamp()
                    frag_reads(s + 1, 0, buf ^ 1)
            mfmas(buf, step == 0)
            step += 1
    a("s_nop 7")
    a("s_nop 7")
    stamp()
    if ksplit == 2:
        a("s_barrier")
        a("v_lshlrev_b32 v4, 4, v1")
        a(f"s_mul_i32 s46, s40, {nsb*1024}")
        a("v_add_u32 v5, s46, v4")
        a("s_xor_b32 s47, s40, 2")
        a(f"s_mul_i32 s46, s47, {nsb*1024}")
        a("v_add_u32 v4, s46, v4")
        a("s_cmp_eq_u32 s43, 0")
        a(f"s_cbranch_scc1 {L}_k0")
        for b in range(nsb):
            k = b * 2
            a(f"ds_write_b128 v5, a[{4*k}:{4*k+3}] offset:{b*1024}")
        for b in range(nsb):
            for r in range(4):
                a(f"v_accvgpr_read_b32 v{vR+b*4+r}, a{(b*2+1)*4+r}")
        a(f"s_branch {L}_k1")
        a.label(f"{L}_k0")
        for b in range(nsb):
            k = b * 2 + 1
            a(f"ds_write_b128 v5, a[{4*k}:{4*k+3}] offset:{b*1024}")
        for b in range(nsb):
            for r in range(4):
                a(f"v_accvgpr_read_b32 v{vR+b*4+r}, a{(b*2)*4+r}")
        a.label(f"{L}_k1")
        a("s_waitcnt lgkmcnt(0)")
        a("s_barrier")
        for b in range(nsb):
            a(f"ds_read_b128 v[{vF+4*b}:{vF+4*b+3}], v4 offset:{b*1024}")
        a("s_waitcnt lgkmcnt(0)")
        for k in range(nsb * 4):
            a(f"v_add_f32 v{vR+k}, v{vR+k}, v{vF+k}")
    else:
        for k in range(nsb * 2 * 4):
            a(f"v_accvgpr_read_b32 v{vR+k}, a{k}")
    a("s_waitcnt vmcnt(0)")
    epilogue(a, vR, vF, vE, nsb)
    if STAMP:
        stamp()
        a("s_waitcnt vmcnt(0)")
        stamp()
        srd(a, 92, 48, 49, 1 << 20, (200 << 20) + STAMPK[0] * (1 << 20))
        STAMPK[0] += 1
        a("s_lshl_b32 s46, s2, 10")
        a("s_lshl_b32 s47, s40, 8")
        a("s_add_u32 s46, s46, s47")
        a("v_lshlrev_b32 v4, 2, v1")
        a(f"buffer_store_dword v{vST}, v4, s[92:95], s46 offen")
    a.label(f"{L}_end")
    a("s_endpgm")
    lds = max(NS * slotsz, (4 * nsb * 1024) if ksplit == 2 else 0)
    assert lds <= 163840, lds
    return kernel_desc(L, accum + nacc, 102, accum), lds


def gemma2_kernel(a):
    L = "gemma_kernel"
    K, NS = 640, 4
    nst = 10
    VB = 0
    SB = 81920
    slotsz = 160 * 128
    kernel_header(a, L)
    a("s_cmp_ge_u32 s2, 256")
    a(f"s_cbranch_scc1 {L}_end")
    a(f"s_load_dwordx2 s[48:49], s[0:1], {KA['ws']}")
    a(f"s_load_dwordx4 s[52:55], s[0:1], {KA['hid_re']}")
    a("v_lshrrev_b32 v1, 6, v0")
    a("s_nop 0")
    a("v_readfirstlane_b32 s40, v1")
    a("v_and_b32 v1, 63, v0")
    a("v_and_b32 v2, 15, v1")
    a("v_lshrrev_b32 v3, 4, v1")
    a("s_and_b32 s3, s2, 7")
    a("s_lshr_b32 s4, s2, 3")
    a("s_and_b32 s5, s3, 1")
    a("s_lshl_b32 s5, s5, 2")
    a("s_and_b32 s6, s4, 3")
    a("s_add_u32 s5, s5, s6")
    a("s_lshr_b32 s6, s3, 1")
    a("s_lshl_b32 s6, s6, 3")
    a("s_lshr_b32 s7, s4, 2")
    a("s_add_u32 s6, s6, s7")
    a("s_lshl_b32 s44, s40, 3")
    a("v_add_u32 v4, s44, v3")
    a("s_movk_i32 s45, 1280")
    a("v_mul_lo_u32 v5, v4, s45")
    a("v_lshl_add_u32 v5, v2, 4, v5")
    a("v_lshlrev_b32 v6, 4, v2")
    a("s_waitcnt lgkmcnt(0)")
    a("s_cmp_ge_u32 s5, 4")
    a("s_cselect_b32 s8, s54, s52")
    a("s_cselect_b32 s9, s55, s53")
    a(f"s_mov_b32 s10, {160*1280}")
    a("s_mov_b32 s11, 0x00020000")
    a("s_and_b32 s7, s5, 3")
    a(f"s_mul_i32 s7, s7, {160*1280}")
    srd_add(a, 8, 7)
    srd(a, 12, 48, 49, 64 * 1280, WS["h"][0])
    a(f"s_mul_i32 s7, s6, {64*1280}")
    srd_add(a, 12, 7)
    srd(a, 20, 48, 49, WS["mod"][1], WS["mod"][0])
    a("s_movk_i32 s45, 5120")
    for rp in range(2):
        for k in range(5):
            r = 16 + (rp * 5 + k) * 4
            so = "s45" if rp else "0"
            a(f"buffer_load_dwordx4 v[{r}:{r+3}], v5, s[12:15], {so} offen offset:{k*256}")
    for k in range(5):
        a(f"buffer_load_dwordx4 v[{56+4*k}:{59+4*k}], v6, s[20:23], 0 offen offset:{1280+k*256}")
    for k in range(5):
        a(f"buffer_load_dwordx4 v[{76+4*k}:{79+4*k}], v6, s[20:23], 0 offen offset:{k*256}")
    if TLBWARM:
        a(f"s_load_dwordx4 s[56:59], s[0:1], {KA['seq_re']}")
        a("s_lshr_b32 s36, s3, 1")
        a("s_lshl_b32 s36, s36, 9")
        a("s_lshl_b32 s37, s4, 4")
        a("s_add_u32 s36, s36, s37")
        a("v_add_u32 v12, s36, v2")
        a("v_lshlrev_b32 v12, 12, v12")
        a("s_waitcnt lgkmcnt(0)")
        a("s_and_b32 s37, s3, 1")
        a("s_cmp_eq_u32 s37, 1")
        a("s_cselect_b32 s60, s58, s56")
        a("s_cselect_b32 s61, s59, s57")
        a(f"s_mov_b32 s62, {2048*2048*2}")
        a("s_mov_b32 s63, 0x00020000")
        a("buffer_load_dword v13, v12, s[60:63], 0 offen")
    srd(a, 16, 48, 49, 160 * 4096, WS["abt"][0])
    a(f"s_mul_i32 s7, s5, {160*4096}")
    srd_add(a, 16, 7)
    a("s_lshl_b32 s7, s6, 7")
    srd_add(a, 16, 7)
    a("s_and_b32 s41, s40, 3")
    a("v_lshrrev_b32 v8, 3, v1")
    a("v_and_b32 v9, 7, v1")
    a("v_xor_b32 v9, v9, v3")
    a("s_and_b32 s44, s41, 1")
    a("s_lshl_b32 s44, s44, 2")
    a("v_xor_b32 v9, s44, v9")
    a("s_lshl_b32 s44, s41, 3")
    a("v_add_u32 v8, s44, v8")
    a("s_movk_i32 s45, 1280")
    a("v_mul_lo_u32 v8, v8, s45")
    a("v_lshl_add_u32 v8, v9, 4, v8")
    a("s_lshl_b32 s42, s41, 10")
    a(f"s_add_u32 s42, s42, {SB}")
    a("s_cmp_lt_u32 s40, 4")
    a(f"s_cbranch_scc1 {L}_p0")

    def issue(s):
        for t in range(5):
            a(f"s_add_u32 m0, s42, {(s % NS)*slotsz + t*4096}")
            a(f"s_mov_b32 s46, {s*128 + t*32*1280}")
            a("buffer_load_dwordx4 v8, s[8:11], s46 offen lds")
    for s in range(NS):
        issue(s)
    a("s_waitcnt vmcnt(20)")
    a(f"s_branch {L}_p0b")
    a.label(f"{L}_p0")
    a("s_waitcnt vmcnt(0)")
    a.label(f"{L}_p0b")
    a("v_lshrrev_b32 v10, 1, v3")
    a("s_and_b32 s44, s40, 3")
    a("s_lshl_b32 s44, s44, 1")
    a("v_or_b32 v10, s44, v10")
    a("v_and_b32 v11, 7, v2")
    a("v_xor_b32 v10, v10, v11")
    a("v_lshlrev_b32 v10, 4, v10")
    a("v_lshl_add_u32 v10, v4, 7, v10")
    a("v_lshrrev_b32 v11, 3, v2")
    a("v_lshl_add_u32 v10, v11, 13, v10")
    a("v_add_u32 v11, 0x8000, v10")
    T = 96
    for k in range(5):
        for q in range(4):
            unpack(a, T, T + 1, 56 + 4 * k + q)
            a(f"v_add_f32 v{T}, 1.0, v{T}")
            a(f"v_add_f32 v{T+1}, 1.0, v{T+1}")
            a(f"v_cvt_pk_bf16_f32 v{T+6}, v{T}, v{T+1}")
            unpack(a, T, T + 1, T + 6)
            unpack(a, T + 2, T + 3, 76 + 4 * k + q)
            for rp in range(2):
                r = 16 + (rp * 5 + k) * 4 + q
                unpack(a, T + 4, T + 5, r)
                a(f"v_mul_f32 v{T+4}, v{T+4}, v{T}")
                a(f"v_mul_f32 v{T+5}, v{T+5}, v{T+1}")
                a(f"v_cvt_pk_bf16_f32 v{T+6}, v{T+4}, v{T+5}")
                unpack(a, T + 4, T + 5, T + 6)
                a(f"v_add_f32 v{T+4}, v{T+4}, v{T+2}")
                a(f"v_add_f32 v{T+5}, v{T+5}, v{T+3}")
                a(f"v_cvt_pk_bf16_f32 v{r}, v{T+4}, v{T+5}")
        for rp in range(2):
            r = 16 + (rp * 5 + k) * 4
            off = k * 16384 + rp * 512
            areg = 10
            if off >= 32768:
                off -= 32768
                areg = 11
            a(f"ds_write_b128 v{areg}, v[{r}:{r+3}] offset:{off}")
    a("s_cmp_lt_u32 s40, 4")
    a(f"s_cbranch_scc1 {L}_comp")
    a("s_waitcnt vmcnt(15) lgkmcnt(0)")
    a("s_barrier")
    for s in range(nst - 1):
        out = min(NS - 1, nst - 2 - s) - 0
        issued = min(nst, NS + s)
        a(f"s_waitcnt vmcnt({(issued - (s + 2)) * 5})")
        a("s_barrier")
        if s + NS < nst:
            issue(s + NS)
    a("s_endpgm")
    a.label(f"{L}_comp")
    a("s_and_b32 s42, s40, 1")
    a("s_lshr_b32 s43, s40, 1")
    a("v_lshrrev_b32 v4, 1, v2")
    a("v_xor_b32 v4, v4, v3")
    a("v_and_b32 v5, 12, v2")
    a("v_lshlrev_b32 v5, 1, v5")
    a("v_and_b32 v6, 3, v2")
    a("v_or_b32 v5, v5, v6")
    vSA, vVA = 8, 16
    a(f"s_mul_i32 s44, s42, {80*128}")
    a(f"s_add_u32 s44, s44, {SB}")
    a(f"s_lshl_b32 s45, s43, 12")
    for j in range(2):
        a(f"v_xor_b32 v6, {4*j}, v4")
        a("v_lshlrev_b32 v6, 4, v6")
        a("v_lshl_add_u32 v7, v2, 7, v6")
        a("v_add_u32 v7, s44, v7")
        for sl in range(NS):
            a(f"v_add_u32 v{vSA+sl*2+j}, {sl*slotsz}, v7")
        a("v_lshl_add_u32 v7, v5, 7, v6")
        a(f"v_add_u32 v{vVA+j}, s45, v7")
        a(f"v_add_u32 v{vVA+2+j}, 0xa000, v{vVA+j}")
    vF = 24
    nfr = 7
    vR = vF + 2 * nfr * 4

    def frag_reads(s, j, buf):
        for vb in range(2):
            r = vF + (buf * nfr + 5 + vb) * 4
            hi = s >= 5
            off = (s - 5 * hi) * 8192 + vb * 512
            a(f"ds_read_b128 v[{r}:{r+3}], v{vVA+2*hi+j} offset:{off}")
        for b in range(5):
            r = vF + (buf * nfr + b) * 4
            a(f"ds_read_b128 v[{r}:{r+3}], v{vSA+(s%NS)*2+j} offset:{b*2048}")

    def mfmas(buf, first):
        for b in range(5):
            for vb in range(2):
                ar = (b * 2 + vb) * 4
                sf = vF + (buf * nfr + b) * 4
                vf = vF + (buf * nfr + 5 + vb) * 4
                c = "0" if first else f"a[{ar}:{ar+3}]"
                a(f"v_mfma_f32_16x16x32_bf16 a[{ar}:{ar+3}], v[{vf}:{vf+3}], v[{sf}:{sf+3}], {c}")

    a("s_waitcnt lgkmcnt(0)")
    a("s_barrier")
    frag_reads(0, 0, 0)
    step = 0
    for s in range(nst):
        for j in range(2):
            buf = step & 1
            if j == 0:
                frag_reads(s, 1, buf ^ 1)
                a(f"s_waitcnt lgkmcnt({nfr})")
            else:
                a("s_waitcnt lgkmcnt(0)")
                if s + 1 < nst:
                    a("s_barrier")
                    frag_reads(s + 1, 0, buf ^ 1)
            mfmas(buf, step == 0)
            step += 1
    a("s_nop 7")
    a("s_nop 7")
    a("s_mul_i32 s44, s42, 80")
    a("v_add_u32 v4, s44, v2")
    a("v_lshlrev_b32 v4, 12, v4")
    a("v_lshl_add_u32 v4, v3, 4, v4")
    a("s_lshl_b32 s46, s43, 6")
    a("v_add_u32 v4, s46, v4")
    for b in range(5):
        o = vR + b * 4
        for k in range(4):
            a(f"v_accvgpr_read_b32 v{vF}, a{b*8+2*k}")
            a(f"v_accvgpr_read_b32 v{vF+1}, a{b*8+2*k+1}")
            a(f"v_cvt_pk_bf16_f32 v{o+k}, v{vF}, v{vF+1}")
        a(f"s_mov_b32 s46, {b*16*4096}")
        a(f"buffer_store_dwordx4 v[{o}:{o+3}], v4, s[16:19], s46 offen")
    a.label(f"{L}_end")
    a("s_endpgm")
    return kernel_desc(L, 120 + 40, 64, 120), 163840


def fa_kernel(a):
    L = "gemma_kernel"
    NS = 4
    nst = 10
    SB = 81920
    slotsz = 160 * 128
    kernel_header(a, L)
    a("s_cmp_ge_u32 s2, 256")
    a(f"s_cbranch_scc1 {L}_end")
    a(f"s_load_dwordx4 s[48:51], s[0:1], {KA['dbg']}")
    a(f"s_load_dwordx4 s[52:55], s[0:1], {KA['hid_re']}")
    a(f"s_load_dwordx4 s[56:59], s[0:1], {KA['c']}")
    a(f"s_load_dwordx2 s[60:61], s[0:1], {KA['x']}")
    a("v_lshrrev_b32 v1, 6, v0")
    a("s_nop 0")
    a("v_readfirstlane_b32 s40, v1")
    a("v_and_b32 v1, 63, v0")
    a("v_and_b32 v2, 15, v1")
    a("v_lshrrev_b32 v3, 4, v1")
    a("s_and_b32 s3, s2, 7")
    a("s_lshr_b32 s4, s2, 3")
    a("s_and_b32 s5, s3, 1")
    a("s_lshl_b32 s5, s5, 2")
    a("s_and_b32 s6, s4, 3")
    a("s_add_u32 s5, s5, s6")
    a("s_lshr_b32 s6, s3, 1")
    a("s_lshl_b32 s6, s6, 3")
    a("s_lshr_b32 s7, s4, 2")
    a("s_add_u32 s6, s6, s7")
    a("s_mul_i32 s33, s3, 15")
    a("s_add_u32 s33, s33, s4")
    a("s_lshl_b32 s44, s40, 3")
    a("v_add_u32 v4, s44, v3")
    a("s_movk_i32 s45, 1280")
    a("v_mul_lo_u32 v5, v4, s45")
    a("v_lshl_add_u32 v5, v2, 4, v5")
    a("v_lshrrev_b32 v12, 2, v0")
    a("v_and_b32 v13, 3, v0")
    a("s_movk_i32 s45, 7680")
    a("v_mul_lo_u32 v14, v12, s45")
    a("v_lshl_add_u32 v14, v13, 4, v14")
    a("s_lshl_b32 s34, s33, 6")
    a("v_add_u32 v14, s34, v14")
    a("v_lshlrev_b32 v15, 1, v12")
    a("s_and_b32 s41, s40, 3")
    a("v_lshrrev_b32 v8, 3, v1")
    a("v_and_b32 v9, 7, v1")
    a("v_xor_b32 v9, v9, v3")
    a("s_and_b32 s44, s41, 1")
    a("s_lshl_b32 s44, s44, 2")
    a("v_xor_b32 v9, s44, v9")
    a("s_lshl_b32 s44, s41, 3")
    a("v_add_u32 v8, s44, v8")
    a("s_movk_i32 s45, 1280")
    a("v_mul_lo_u32 v8, v8, s45")
    a("v_lshl_add_u32 v8, v9, 4, v8")
    a("s_lshl_b32 s42, s41, 10")
    a(f"s_add_u32 s42, s42, {SB}")
    a("s_waitcnt lgkmcnt(0)")
    a("s_cmp_ge_u32 s5, 4")
    a("s_cselect_b32 s8, s54, s52")
    a("s_cselect_b32 s9, s55, s53")
    a(f"s_mov_b32 s10, {160*1280}")
    a("s_mov_b32 s11, 0x00020000")
    a("s_and_b32 s7, s5, 3")
    a(f"s_mul_i32 s7, s7, {160*1280}")
    srd_add(a, 8, 7)
    srd(a, 12, 60, 61, 64 * 1280)
    a(f"s_mul_i32 s7, s6, {64*1280}")
    srd_add(a, 12, 7)
    srd(a, 20, 50, 51, WS["modf"][1], WS["modf"][0])
    srd(a, 24, 58, 59, 640 * 3840 * 2)
    srd(a, 28, 56, 57, 640 * 2)
    srd(a, 64, 48, 49, 256)
    srd(a, 68, 50, 51, WS["mod"][1], WS["mod"][0])
    srd(a, 16, 50, 51, 160 * 4096, WS["abt"][0])
    a(f"s_mul_i32 s7, s5, {160*4096}")
    srd_add(a, 16, 7)
    a("s_lshl_b32 s7, s6, 7")
    srd_add(a, 16, 7)
    a("s_cmp_ge_u32 s2, 120")
    a(f"s_cbranch_scc1 {L}_nog1")
    for p in range(5):
        a(f"buffer_load_ushort v{76+p}, v15, s[28:31], 0 offen offset:{p*256}")
    for p in range(5):
        a(f"s_mov_b32 s45, {p*128*7680}")
        a(f"buffer_load_dwordx4 v[{56+4*p}:{59+4*p}], v14, s[24:27], s45 offen")
    a.label(f"{L}_nog1")
    a("s_movk_i32 s45, 5120")
    for rp in range(2):
        for k in range(5):
            r = 16 + (rp * 5 + k) * 4
            so = "s45" if rp else "0"
            a(f"buffer_load_dwordx4 v[{r}:{r+3}], v5, s[12:15], {so} offen offset:{k*256}")

    def issue(s):
        for t in range(5):
            a(f"s_add_u32 m0, s42, {(s % NS)*slotsz + t*4096}")
            a(f"s_mov_b32 s46, {s*128 + t*32*1280}")
            a("buffer_load_dwordx4 v8, s[8:11], s46 offen lds")
    a("s_cmp_lt_u32 s40, 4")
    a(f"s_cbranch_scc1 {L}_nold")
    for s in range(NS):
        issue(s)
    a.label(f"{L}_nold")

    def rolewait(nc, tag):
        a("s_cmp_lt_u32 s40, 4")
        a(f"s_cbranch_scc1 {L}_w{tag}a")
        a(f"s_waitcnt vmcnt({nc+20})")
        a(f"s_branch {L}_w{tag}b")
        a.label(f"{L}_w{tag}a")
        a(f"s_waitcnt vmcnt({nc})")
        a.label(f"{L}_w{tag}b")
    a("s_cmp_ge_u32 s2, 120")
    a(f"s_cbranch_scc1 {L}_nog2")
    rolewait(10, "g")
    A0 = 96
    for k in range(8):
        a(f"v_mov_b32 v{A0+k}, 0")
    a("s_mov_b32 s45, 0xbfb8aa3b")
    for p in range(5):
        a(f"v_lshlrev_b32 v{76+p}, 16, v{76+p}")
        a(f"v_mul_f32 v104, s45, v{76+p}")
        a("v_exp_f32 v104, v104")
        a("s_nop 0")
        a("v_add_f32 v104, 1.0, v104")
        a("v_rcp_f32 v104, v104")
        a("s_nop 0")
        a(f"v_mul_f32 v104, v{76+p}, v104")
        a("v_cvt_pk_bf16_f32 v104, v104, v104")
        a(f"v_lshlrev_b32 v{76+p}, 16, v104")
        for q in range(4):
            unpack(a, 104, 105, 56 + 4 * p + q)
            a(f"v_fmac_f32 v{A0+2*q}, v{76+p}, v104")
            a(f"v_fmac_f32 v{A0+1+2*q}, v{76+p}, v105")
    a("v_lshlrev_b32 v104, 7, v12")
    a("v_lshl_add_u32 v104, v13, 5, v104")
    a(f"ds_write_b128 v104, v[{A0}:{A0+3}]")
    a(f"ds_write_b128 v104, v[{A0+4}:{A0+7}] offset:16")
    a("s_waitcnt lgkmcnt(0)")
    a("s_barrier")
    a("v_and_b32 v105, 31, v0")
    a("v_lshrrev_b32 v106, 5, v0")
    a("v_lshlrev_b32 v104, 10, v106")
    a("v_lshl_add_u32 v104, v105, 2, v104")
    for i in range(8):
        a(f"ds_read_b32 v{A0+i}, v104 offset:{i*128}")
    a("s_waitcnt lgkmcnt(0)")
    for (x, y) in [(0, 1), (2, 3), (4, 5), (6, 7), (0, 2), (4, 6), (0, 4)]:
        a(f"v_add_f32 v{A0+x}, v{A0+x}, v{A0+y}")
    a("v_lshlrev_b32 v104, 2, v0")
    a(f"ds_write_b32 v104, v{A0} offset:16384")
    a("s_waitcnt lgkmcnt(0)")
    a("s_barrier")
    a("s_cmp_lg_u32 s40, 0")
    a(f"s_cbranch_scc1 {L}_nog2")
    a("v_lshrrev_b32 v106, 5, v1")
    a("v_lshlrev_b32 v104, 10, v106")
    a("v_lshl_add_u32 v104, v105, 2, v104")
    for i in range(8):
        a(f"ds_read_b32 v{A0+i}, v104 offset:{16384+i*128}")
    a("s_waitcnt lgkmcnt(0)")
    for (x, y) in [(0, 1), (2, 3), (4, 5), (6, 7), (0, 2), (4, 6), (0, 4)]:
        a(f"v_add_f32 v{A0+x}, v{A0+x}, v{A0+y}")
    a(f"v_mov_b32 v{A0+1}, v{A0}")
    a("s_nop 1")
    a(f"v_permlane32_swap_b32 v{A0}, v{A0+1}")
    a("s_nop 1")
    a(f"v_add_f32 v{A0}, v{A0}, v{A0+1}")
    a(f"v_cvt_pk_bf16_f32 v{A0+1}, v{A0}, v{A0}")
    a(f"v_lshlrev_b32 v{A0+2}, 16, v{A0+1}")
    a(f"v_add_f32 v{A0+3}, 1.0, v{A0+2}")
    a(f"v_cvt_pk_bf16_f32 v{A0+3}, v{A0+3}, v{A0+3}")
    a(f"v_lshlrev_b32 v{A0+3}, 16, v{A0+3}")
    a("s_mul_i32 s44, s33, 3277")
    a("s_lshr_b32 s44, s44, 16")
    a("s_cmp_eq_u32 s44, 1")
    a("s_cselect_b32 s45, 1, 0")
    a("s_cmp_eq_u32 s44, 4")
    a("s_cselect_b32 s45, 1, s45")
    a("s_cmp_eq_u32 s45, 1")
    a(f"s_cbranch_scc0 {L}_gnc")
    a(f"v_mov_b32 v{A0+2}, v{A0+3}")
    a.label(f"{L}_gnc")
    a("v_lshlrev_b32 v104, 1, v105")
    a("v_add_u32 v104, s34, v104")
    a("v_lshlrev_b32 v106, 1, v104")
    a("v_mov_b32 v107, 0")
    a("v_mov_b32 v108, 1")
    a("v_cmp_gt_u32 vcc, 32, v1")
    a("s_and_saveexec_b64 s[36:37], vcc")
    a(f"buffer_store_short v{A0+1}, v104, s[68:71], 0 offen")
    a(f"buffer_store_dword v{A0+2}, v106, s[20:23], 0 offen sc0 sc1")
    a("s_waitcnt vmcnt(0)")
    a("s_cmp_ge_u32 s33, 40")
    a(f"s_cbranch_scc1 {L}_gna")
    a("v_cmp_gt_u32 vcc, 1, v1")
    a("s_and_b64 exec, exec, vcc")
    a("buffer_atomic_add v108, v107, s[64:67], 0 offen")
    a.label(f"{L}_gna")
    a("s_mov_b64 exec, s[36:37]")
    a.label(f"{L}_nog2")
    rolewait(0, "x")
    X, T = 96, 136

    def red16(v, t):
        for mod_ in ["quad_perm:[1,0,3,2]", "quad_perm:[2,3,0,1]", "row_half_mirror", "row_mirror"]:
            a("s_nop 1")
            a(f"v_add_f32_dpp v{t}, v{v}, v{v} {mod_} row_mask:0xf bank_mask:0xf")
            v, t = t, v
    for rp in range(2):
        R = 16 + rp * 20
        for k in range(20):
            unpack(a, X + 2 * k, X + 2 * k + 1, R + k)
        s_, t_, m_, r_, u_, w_ = T, T + 1, T + 2, T + 3, T + 4, T + 5
        a(f"v_add_f32 v{s_}, v{X}, v{X+1}")
        a(f"v_add_f32 v{t_}, v{X+2}, v{X+3}")
        for k in range(4, 40, 2):
            a(f"v_add_f32 v{s_}, v{s_}, v{X+k}")
            a(f"v_add_f32 v{t_}, v{t_}, v{X+k+1}")
        a(f"v_add_f32 v{s_}, v{s_}, v{t_}")
        red16(s_, t_)
        a(f"v_mul_f32 v{m_}, 0x3acccccd, v{s_}")
        a(f"v_sub_f32 v{t_}, v{X}, v{m_}")
        a(f"v_mul_f32 v{s_}, v{t_}, v{t_}")
        a(f"v_sub_f32 v{t_}, v{X+1}, v{m_}")
        a(f"v_mul_f32 v{r_}, v{t_}, v{t_}")
        for k in range(2, 40, 2):
            a(f"v_sub_f32 v{t_}, v{X+k}, v{m_}")
            a(f"v_fmac_f32 v{s_}, v{t_}, v{t_}")
            a(f"v_sub_f32 v{u_}, v{X+k+1}, v{m_}")
            a(f"v_fmac_f32 v{r_}, v{u_}, v{u_}")
        a(f"v_add_f32 v{s_}, v{s_}, v{r_}")
        red16(s_, t_)
        a(f"v_mul_f32 v{s_}, 0x3acccccd, v{s_}")
        a(f"v_cvt_pk_bf16_f32 v{t_}, v{m_}, v{s_}")
        unpack(a, m_, s_, t_)
        a(f"v_add_f32 v{s_}, 0x3727c5ac, v{s_}")
        a(f"v_cvt_pk_bf16_f32 v{t_}, v{s_}, v{s_}")
        a(f"v_lshlrev_b32 v{s_}, 16, v{t_}")
        a(f"v_sqrt_f32 v{s_}, v{s_}")
        a("s_nop 0")
        a(f"v_cvt_pk_bf16_f32 v{t_}, v{s_}, v{s_}")
        a(f"v_lshlrev_b32 v{s_}, 16, v{t_}")
        a(f"v_rcp_f32 v{r_}, v{s_}")
        a("s_nop 0")
        for k in range(20):
            a(f"v_sub_f32 v{u_}, v{X+2*k}, v{m_}")
            a(f"v_sub_f32 v{w_}, v{X+2*k+1}, v{m_}")
            a(f"v_cvt_pk_bf16_f32 v{t_}, v{u_}, v{w_}")
            unpack(a, u_, w_, t_)
            a(f"v_mul_f32 v{u_}, v{u_}, v{r_}")
            a(f"v_mul_f32 v{w_}, v{w_}, v{r_}")
            a(f"v_cvt_pk_bf16_f32 v{R+k}, v{u_}, v{w_}")
    a("s_cmp_lg_u32 s40, 0")
    a(f"s_cbranch_scc1 {L}_nopoll")
    a("v_mov_b32 v107, 0")
    a("s_mov_b32 s44, 0")
    a.label(f"{L}_poll")
    a("buffer_load_dword v108, v107, s[64:67], 0 offen sc0 sc1")
    a("s_waitcnt vmcnt(0)")
    a("v_readfirstlane_b32 s45, v108")
    a("s_add_u32 s44, s44, 1")
    a("s_cmp_ge_u32 s45, 40")
    a(f"s_cbranch_scc1 {L}_polled")
    a("s_sleep 2")
    a("s_cmp_lt_u32 s44, 0x40000")
    a(f"s_cbranch_scc1 {L}_poll")
    a.label(f"{L}_polled")
    a("v_lshlrev_b32 v12, 4, v1")
    a("s_movk_i32 s45, 4096")
    for i in range(5):
        so = "s45" if i == 4 else "0"
        a(f"buffer_load_dwordx4 v[{X+4*i}:{X+4*i+3}], v12, s[20:23], {so} offen offset:{(i%4)*1024} sc0 sc1")
    a("s_waitcnt vmcnt(0)")
    for i in range(5):
        a(f"ds_write_b128 v12, v[{X+4*i}:{X+4*i+3}] offset:{i*1024}")
    a("s_waitcnt lgkmcnt(0)")
    a.label(f"{L}_nopoll")
    a("s_barrier")
    a("v_lshlrev_b32 v12, 5, v2")
    SA, C1 = 56, 96
    for k in range(5):
        for h in range(2):
            a(f"ds_read_b128 v[{SA+8*k+4*h}:{SA+8*k+4*h+3}], v12 offset:{k*512+h*16}")
            a(f"ds_read_b128 v[{C1+8*k+4*h}:{C1+8*k+4*h+3}], v12 offset:{2560+k*512+h*16}")
    a("v_lshrrev_b32 v10, 1, v3")
    a("s_and_b32 s44, s40, 3")
    a("s_lshl_b32 s44, s44, 1")
    a("v_or_b32 v10, s44, v10")
    a("v_and_b32 v11, 7, v2")
    a("v_xor_b32 v10, v10, v11")
    a("v_lshlrev_b32 v10, 4, v10")
    a("v_lshl_add_u32 v10, v4, 7, v10")
    a("v_lshrrev_b32 v11, 3, v2")
    a("v_lshl_add_u32 v10, v11, 13, v10")
    a("v_add_u32 v11, 0x8000, v10")
    a("s_waitcnt lgkmcnt(0)")
    a("s_barrier")
    for k in range(5):
        for rp in range(2):
            for q in range(4):
                r = 16 + (rp * 5 + k) * 4 + q
                c = 8 * k + 2 * q
                unpack(a, T, T + 1, r)
                a(f"v_mul_f32 v{T}, v{T}, v{C1+c}")
                a(f"v_mul_f32 v{T+1}, v{T+1}, v{C1+c+1}")
                a(f"v_cvt_pk_bf16_f32 v{T+2}, v{T}, v{T+1}")
                unpack(a, T, T + 1, T + 2)
                a(f"v_add_f32 v{T}, v{T}, v{SA+c}")
                a(f"v_add_f32 v{T+1}, v{T+1}, v{SA+c+1}")
                a(f"v_cvt_pk_bf16_f32 v{r}, v{T}, v{T+1}")
            r = 16 + (rp * 5 + k) * 4
            off = k * 16384 + rp * 512
            areg = 10
            if off >= 32768:
                off -= 32768
                areg = 11
            a(f"ds_write_b128 v{areg}, v[{r}:{r+3}] offset:{off}")
    a("s_cmp_lt_u32 s40, 4")
    a(f"s_cbranch_scc1 {L}_comp")
    a("s_waitcnt vmcnt(15) lgkmcnt(0)")
    a("s_barrier")
    for s in range(nst - 1):
        issued = min(nst, NS + s)
        a(f"s_waitcnt vmcnt({(issued - (s + 2)) * 5})")
        a("s_barrier")
        if s + NS < nst:
            issue(s + NS)
    a("s_endpgm")
    a.label(f"{L}_comp")
    a("s_and_b32 s42, s40, 1")
    a("s_lshr_b32 s43, s40, 1")
    a("v_lshrrev_b32 v4, 1, v2")
    a("v_xor_b32 v4, v4, v3")
    a("v_and_b32 v5, 12, v2")
    a("v_lshlrev_b32 v5, 1, v5")
    a("v_and_b32 v6, 3, v2")
    a("v_or_b32 v5, v5, v6")
    vSA, vVA = 60, 68
    a(f"s_mul_i32 s44, s42, {80*128}")
    a(f"s_add_u32 s44, s44, {SB}")
    a(f"s_lshl_b32 s45, s43, 12")
    for j in range(2):
        a(f"v_xor_b32 v6, {4*j}, v4")
        a("v_lshlrev_b32 v6, 4, v6")
        a("v_lshl_add_u32 v7, v2, 7, v6")
        a("v_add_u32 v7, s44, v7")
        for sl in range(NS):
            a(f"v_add_u32 v{vSA+sl*2+j}, {sl*slotsz}, v7")
        a("v_lshl_add_u32 v7, v5, 7, v6")
        a(f"v_add_u32 v{vVA+j}, s45, v7")
        a(f"v_add_u32 v{vVA+2+j}, 0xa000, v{vVA+j}")
    vF = 72
    nfr = 7
    vR = 16

    def frag_reads(s, j, buf):
        for vb in range(2):
            r = vF + (buf * nfr + 5 + vb) * 4
            hi = s >= 5
            off = (s - 5 * hi) * 8192 + vb * 512
            a(f"ds_read_b128 v[{r}:{r+3}], v{vVA+2*hi+j} offset:{off}")
        for b in range(5):
            r = vF + (buf * nfr + b) * 4
            a(f"ds_read_b128 v[{r}:{r+3}], v{vSA+(s%NS)*2+j} offset:{b*2048}")

    def mfmas(buf, first):
        for b in range(5):
            for vb in range(2):
                ar = (b * 2 + vb) * 4
                sf = vF + (buf * nfr + b) * 4
                vf = vF + (buf * nfr + 5 + vb) * 4
                c = "0" if first else f"a[{ar}:{ar+3}]"
                a(f"v_mfma_f32_16x16x32_bf16 a[{ar}:{ar+3}], v[{vf}:{vf+3}], v[{sf}:{sf+3}], {c}")

    a("s_waitcnt lgkmcnt(0)")
    a("s_barrier")
    frag_reads(0, 0, 0)
    step = 0
    for s in range(nst):
        for j in range(2):
            buf = step & 1
            if j == 0:
                frag_reads(s, 1, buf ^ 1)
                a(f"s_waitcnt lgkmcnt({nfr})")
            else:
                a("s_waitcnt lgkmcnt(0)")
                if s + 1 < nst:
                    a("s_barrier")
                    frag_reads(s + 1, 0, buf ^ 1)
            mfmas(buf, step == 0)
            step += 1
    a("s_nop 7")
    a("s_nop 7")
    a("s_mul_i32 s44, s42, 80")
    a("v_add_u32 v4, s44, v2")
    a("v_lshlrev_b32 v4, 12, v4")
    a("v_lshl_add_u32 v4, v3, 4, v4")
    a("s_lshl_b32 s46, s43, 6")
    a("v_add_u32 v4, s46, v4")
    for b in range(5):
        o = vR + b * 4
        for k in range(4):
            a(f"v_accvgpr_read_b32 v{vF}, a{b*8+2*k}")
            a(f"v_accvgpr_read_b32 v{vF+1}, a{b*8+2*k+1}")
            a(f"v_cvt_pk_bf16_f32 v{o+k}, v{vF}, v{vF+1}")
        a(f"s_mov_b32 s46, {b*16*4096}")
        a(f"buffer_store_dwordx4 v[{o}:{o+3}], v4, s[16:19], s46 offen")
    a.label(f"{L}_end")
    a("s_endpgm")
    return kernel_desc(L, 144 + 40, 80, 144), 163840


def load_ptrs(a, names):
    for k, nm in enumerate(names):
        a(f"s_load_dwordx2 s[{48+2*k}:{49+2*k}], s[0:1], {KA[nm]}")
    a("s_waitcnt lgkmcnt(0)")


def setup_A(a):
    load_ptrs(a, ["ws", "hid_re", "hid_im"])
    a("s_and_b32 s3, s2, 7")
    a("s_lshr_b32 s4, s2, 3")
    a("s_and_b32 s5, s3, 3")
    a("s_lshl_b32 s5, s5, 2")
    a("s_and_b32 s6, s4, 3")
    a("s_add_u32 s5, s5, s6")
    a("s_lshr_b32 s6, s3, 2")
    a("s_lshl_b32 s6, s6, 3")
    a("s_lshr_b32 s7, s4, 2")
    a("s_add_u32 s6, s6, s7")
    a("s_cmp_ge_u32 s5, 8")
    a("s_cselect_b32 s8, s52, s50")
    a("s_cselect_b32 s9, s53, s51")
    a(f"s_mov_b32 s10, {80*1280}")
    a("s_mov_b32 s11, 0x00020000")
    a("s_and_b32 s7, s5, 7")
    a(f"s_mul_i32 s7, s7, {80*1280}")
    srd_add(a, 8, 7)
    srd(a, 12, 48, 49, 128 * 1280, WS["h"][0])
    a(f"s_mul_i32 s7, s6, {128*1280}")
    srd_add(a, 12, 7)
    srd(a, 16, 48, 49, 80 * 4096, WS["abt"][0])
    a(f"s_mul_i32 s7, s5, {80*4096}")
    srd_add(a, 16, 7)
    a("s_lshl_b32 s7, s6, 8")
    srd_add(a, 16, 7)
    return 1280, 1280


def pre_A(a, vE):
    a(f"s_load_dwordx4 s[56:59], s[0:1], {KA['seq_re']}")
    a("s_and_b32 s36, s2, 127")
    a("s_lshl_b32 s36, s36, 16")
    a("s_lshl_b32 s37, s40, 14")
    a("s_add_u32 s36, s36, s37")
    a("v_lshlrev_b32 v4, 4, v1")
    a("v_add_u32 v4, s36, v4")
    a("s_waitcnt lgkmcnt(0)")
    a("s_cmp_ge_u32 s2, 128")
    a("s_cselect_b32 s60, s58, s56")
    a("s_cselect_b32 s61, s59, s57")
    a(f"s_mov_b32 s62, {2048*2048*2}")
    a("s_mov_b32 s63, 0x00020000")
    for i in range(16):
        a(f"s_mov_b32 s37, {(i//4)*4096}")
        a(f"buffer_load_dwordx4 v[{vE+4*(i&7)}:{vE+4*(i&7)+3}], v4, s[60:63], s37 offen offset:{(i%4)*1024}")
    return 16


def epi_A(a, vR, vF, vE, nsb):
    a("v_lshlrev_b32 v4, 12, v2")
    a("v_lshl_add_u32 v4, v3, 4, v4")
    a("s_lshl_b32 s46, s40, 6")
    a("v_add_u32 v4, s46, v4")
    for b in range(nsb):
        r = vR + b * 8
        o = vF + (b & 1) * 4
        for k in range(4):
            a(f"v_cvt_pk_bf16_f32 v{o+k}, v{r+2*k}, v{r+2*k+1}")
        a(f"s_mov_b32 s46, {b*16*4096}")
        a(f"buffer_store_dwordx4 v[{o}:{o+3}], v4, s[16:19], s46 offen")


def setup_B(a):
    load_ptrs(a, ["ws", "seq_re", "seq_im"])
    a("s_and_b32 s3, s2, 7")
    a("s_lshr_b32 s4, s2, 3")
    a("s_and_b32 s5, s3, 1")
    a("s_lshr_b32 s6, s3, 1")
    a("s_lshl_b32 s6, s6, 2")
    a("s_and_b32 s7, s4, 3")
    a("s_add_u32 s6, s6, s7")
    a("s_lshr_b32 s7, s4, 2")
    srd(a, 8, 48, 49, 80 * 4096, WS["abt"][0])
    a(f"s_mul_i32 s20, s5, {640*4096}")
    a(f"s_mul_i32 s21, s7, {80*4096}")
    a("s_add_u32 s20, s20, s21")
    srd_add(a, 8, 20)
    a("s_cmp_eq_u32 s5, 1")
    a("s_cselect_b32 s12, s52, s50")
    a("s_cselect_b32 s13, s53, s51")
    a(f"s_mov_b32 s14, {128*4096}")
    a("s_mov_b32 s15, 0x00020000")
    a(f"s_mul_i32 s20, s6, {128*4096}")
    srd_add(a, 12, 20)
    srd(a, 16, 48, 49, 128 * 1280, WS["y"][0])
    a(f"s_mul_i32 s20, s5, {2048*1280}")
    a(f"s_mul_i32 s21, s6, {128*1280}")
    a("s_add_u32 s20, s20, s21")
    a("s_mul_i32 s21, s7, 160")
    a("s_add_u32 s20, s20, s21")
    srd_add(a, 16, 20)
    return 4096, 4096


PFD = 13
RAMP1 = 1
STAMP = int(__import__('os').environ.get('STAMP', '0'))
STAMPK = [0]
TLBWARM = int(__import__('os').environ.get('TLBW', '0'))


PFMODE = int(__import__("os").environ.get("PFMODE", "1"))


def pre_B(a, vE):
    a("s_lshl_b32 s58, s7, 4")
    a("s_lshl_b32 s59, s40, 2")
    a("s_add_u32 s58, s58, s59")
    a("v_add_u32 v7, s58, v3")
    a("v_lshlrev_b32 v7, 12, v7")
    a("v_lshl_add_u32 v7, v2, 4, v7")
    if PFMODE == 1:
        for i in range(3, 16):
            a(f"buffer_load_dwordx4 v[{vE+4*(i&7)}:{vE+4*(i&7)+3}], v7, s[12:15], 0 offen offset:{i*256}")
    return 16


def stage_hook_B(a, s, vE):
    if PFMODE == 2 and s == 0:
        for i in range(3, 16):
            a(f"buffer_load_dwordx4 v[{vE+4*(i&7)}:{vE+4*(i&7)+3}], v7, s[12:15], 0 offen offset:{i*256}")
    if PFMODE == 3 and s < 4:
        for i in range(4 + 3 * s, min(16, 7 + 3 * s)):
            a(f"buffer_load_dwordx4 v[{vE+4*(i&7)}:{vE+4*(i&7)+3}], v7, s[12:15], 0 offen offset:{i*256}")


def make_epi_S(ldo, relu=False, resid=False):
    def epi(a, vR, vF, vE, nsb):
        a("s_lshl_b32 s46, s42, 5")
        a("v_add_u32 v4, s46, v2")
        a(f"s_movk_i32 s46, {ldo}")
        a("v_mul_lo_u32 v4, v4, s46")
        a("v_lshl_add_u32 v5, v3, 3, v4")
        a("v_lshl_add_u32 v4, v3, 4, v4")
        a(f"s_mov_b32 s47, {16*ldo}")
        if resid:
            pass
        cnt = 0
        for vb in range(2):
            so = "s47" if vb else "0"
            for p in range((nsb + 1) // 2):
                full = 2 * p + 1 < nsb
                nreg = 4 if full else 2
                o = vF + (cnt & 3) * 4
                cnt += 1
                xr = vE + 12 + vb * 10 + p * 4
                for k in range(nreg):
                    b = 2 * p + (k >> 1)
                    r = vR + (b * 2 + vb) * 4 + (k & 1) * 2
                    if relu:
                        a(f"v_max_f32 v{r}, 0, v{r}")
                        a(f"v_max_f32 v{r+1}, 0, v{r+1}")
                    a(f"v_cvt_pk_bf16_f32 v{o+k}, v{r}, v{r+1}")
                if resid:
                    t = vF + 24
                    for k in range(nreg):
                        unpack(a, t, t + 1, o + k)
                        unpack(a, t + 2, t + 3, vE + p * 4 + k)
                        a(f"v_mul_f32 v{t}, v{t}, v{t+2}")
                        a(f"v_mul_f32 v{t+1}, v{t+1}, v{t+3}")
                        a(f"v_cvt_pk_bf16_f32 v{t+4}, v{t}, v{t+1}")
                        unpack(a, t, t + 1, t + 4)
                        unpack(a, t + 2, t + 3, xr + k)
                        a(f"v_add_f32 v{t}, v{t}, v{t+2}")
                        a(f"v_add_f32 v{t+1}, v{t+1}, v{t+3}")
                        a(f"v_cvt_pk_bf16_f32 v{o+k}, v{t}, v{t+1}")
                a(f"buffer_store_dwordx{nreg} v[{o}:{o+nreg-1}], v{4 if full else 5}, s[16:19], {so} offen offset:{p*64}")
    return epi


def epi_D(a, vR, vF, vE, nsb):
    t = vF + 24
    for p in range(3):
        full = p < 2
        nreg = 4 if full else 2
        o = vF + p * 4
        for k in range(nreg):
            b = 2 * p + (k >> 1)
            r = vR + b * 4 + (k & 1) * 2
            a(f"v_cvt_pk_bf16_f32 v{o+k}, v{r}, v{r+1}")
            unpack(a, t, t + 1, o + k)
            unpack(a, t + 2, t + 3, vE + p * 4 + k)
            a(f"v_mul_f32 v{t}, v{t}, v{t+2}")
            a(f"v_mul_f32 v{t+1}, v{t+1}, v{t+3}")
            a(f"v_cvt_pk_bf16_f32 v{t+4}, v{t}, v{t+1}")
            unpack(a, t, t + 1, t + 4)
            unpack(a, t + 2, t + 3, vE + 12 + p * 4 + k)
            a(f"v_add_f32 v{t}, v{t}, v{t+2}")
            a(f"v_add_f32 v{t+1}, v{t+1}, v{t+3}")
            a(f"v_cvt_pk_bf16_f32 v{o+k}, v{t}, v{t+1}")
        a(f"buffer_store_dwordx{nreg} v[{o}:{o+nreg-1}], v{vE+24 if full else vE+25}, s[16:19], 0 offen offset:{p*64}")


def setup_C(a):
    load_ptrs(a, ["ws"])
    a("s_and_b32 s3, s2, 7")
    a("s_lshr_b32 s4, s2, 3")
    a("s_and_b32 s5, s3, 3")
    a("s_lshl_b32 s5, s5, 2")
    a("s_and_b32 s6, s4, 3")
    a("s_add_u32 s5, s5, s6")
    a("s_lshr_b32 s6, s3, 2")
    a("s_lshl_b32 s6, s6, 3")
    a("s_lshr_b32 s7, s4, 2")
    a("s_add_u32 s6, s6, s7")
    srd(a, 8, 48, 49, 96 * 1280, WS["w1t"][0])
    a(f"s_mul_i32 s20, s5, {96*1280}")
    srd_add(a, 8, 20)
    srd(a, 12, 48, 49, 128 * 1280, WS["h2"][0])
    a(f"s_mul_i32 s20, s6, {128*1280}")
    srd_add(a, 12, 20)
    srd(a, 16, 48, 49, 128 * 3072, WS["h1"][0])
    a(f"s_mul_i32 s20, s6, {128*3072}")
    a("s_mul_i32 s21, s5, 192")
    a("s_add_u32 s20, s20, s21")
    srd_add(a, 16, 20)
    return 1280, 1280


def setup_D(a):
    load_ptrs(a, ["ws", "out"])
    a("s_and_b32 s3, s2, 7")
    a("s_lshr_b32 s4, s2, 3")
    a("s_and_b32 s5, s3, 1")
    a("s_lshl_b32 s5, s5, 2")
    a("s_and_b32 s6, s4, 3")
    a("s_add_u32 s5, s5, s6")
    a("s_lshr_b32 s6, s3, 1")
    a("s_lshl_b32 s6, s6, 3")
    a("s_lshr_b32 s7, s4, 2")
    a("s_add_u32 s6, s6, s7")
    srd(a, 8, 48, 49, 80 * 3072, WS["w2t"][0])
    a(f"s_mul_i32 s20, s5, {80*3072}")
    srd_add(a, 8, 20)
    srd(a, 12, 48, 49, 64 * 3072, WS["h1"][0])
    a(f"s_mul_i32 s20, s6, {64*3072}")
    srd_add(a, 12, 20)
    a(f"s_mul_i32 s28, s6, {64*1280}")
    a("s_mul_i32 s29, s5, 160")
    a("s_add_u32 s30, s28, s29")
    srd(a, 16, 50, 51, 64 * 1280 - 0)
    srd_add(a, 16, 30)
    srd(a, 20, 48, 49, 64 * 1280, WS["x1"][0])
    srd_add(a, 20, 30)
    srd(a, 24, 48, 49, 160, WS["mod"][0] + 5 * 1280)
    srd_add(a, 24, 29)
    return 3072, 3072


def pre_epi_D(a, vE):
    a("v_lshlrev_b32 v4, 4, v3")
    a("v_lshlrev_b32 v5, 3, v3")
    a(f"buffer_load_dwordx4 v[{vE}:{vE+3}], v4, s[24:27], 0 offen")
    a(f"buffer_load_dwordx4 v[{vE+4}:{vE+7}], v4, s[24:27], 0 offen offset:64")
    a(f"buffer_load_dwordx2 v[{vE+8}:{vE+9}], v5, s[24:27], 0 offen offset:128")
    a("s_lshl_b32 s46, s42, 5")
    a("s_lshl_b32 s47, s43, 4")
    a("s_add_u32 s46, s46, s47")
    a("v_add_u32 v4, s46, v2")
    a("s_movk_i32 s46, 1280")
    a("v_mul_lo_u32 v4, v4, s46")
    a(f"v_lshl_add_u32 v{vE+25}, v3, 3, v4")
    a(f"v_lshl_add_u32 v{vE+24}, v3, 4, v4")
    r = vE + 12
    a(f"buffer_load_dwordx4 v[{r}:{r+3}], v{vE+24}, s[20:23], 0 offen")
    a(f"buffer_load_dwordx4 v[{r+4}:{r+7}], v{vE+24}, s[20:23], 0 offen offset:64")
    a(f"buffer_load_dwordx2 v[{r+8}:{r+9}], v{vE+25}, s[20:23], 0 offen offset:128")
    return 9


def main():
    a = Asm()
    descs = []
    launches = []
    FUSE = int(__import__("os").environ.get("FUSE", "0"))
    if not FUSE:
        descs.append(prep_kernel(a)); launches.append(("prep_kernel", PREP_WGS, 256, 10240))
    d, lds = fa_kernel(a) if FUSE else gemma2_kernel(a)
    descs.append(d); launches.append(("gemma_kernel", 256, 512, lds))
    d, lds = gemm_kernel(a, "gemmb_kernel", 2048, 80, 128, 128, True, 1, 3, setup_B, make_epi_S(1280), pre_epi=pre_B, stage_hook=stage_hook_B)
    descs.append(d); launches.append(("gemmb_kernel", 256, 512, lds))
    descs.append(ln_kernel(a, True)); launches.append(("ln2_kernel", LN2_WGS, 256, 10240))
    d, lds = gemm_kernel(a, "gemmc_kernel", 640, 96, 128, 64, True, 1, 5, setup_C, make_epi_S(3072, relu=True))
    descs.append(d); launches.append(("gemmc_kernel", 256, 512, lds))
    d, lds = gemm_kernel(a, "gemmd_kernel", 1536, 80, 64, 128, True, 2, 4, setup_D, epi_D,
                         pre_epi=pre_epi_D)
    descs.append(d); launches.append(("gemmd_kernel", 256, 512, lds))

    hdr = open(f"cdna_kernels/{NAME}.s.ref").read().split("\n")
    out = []
    for ln in hdr:
        if ln.startswith(";") and "@launch" not in ln and "Override" not in ln and "grid=ceil" not in ln:
            out.append(ln)
        elif not ln.startswith(";"):
            break
    for k, g, b, lds in launches:
        out.append(f"; @launch kernel={k} grid=({g},1,1) block=({b},1,1) lds={lds}")
    out.append('.amdgcn_target "amdgcn-amd-amdhsa--gfx950"')
    out.append(".text")
    txt = "\n".join(out) + "\n" + a.text()
    txt += '.section .rodata,"a"\n'
    for d in descs:
        txt += ".p2align 6\n" + d
    path = sys.argv[1] if len(sys.argv) > 1 else f"cdna_kernels/{NAME}.s"
    open(path, "w").write(txt)
    print("wrote", path, len(txt), "bytes")


if __name__ == "__main__":
    main()
```

```python
import sys

NAME = "adaLN_cond__spectral_fnet__dense_activation_relu__prompt"
S_LEN, D, DFF = 2048, 640, 1536

KA = dict(x=0, seq_re=8, seq_im=16, hid_re=24, hid_im=32, bx=40, w1=48, w2=56, c=64, wmod=72,
          out=80, dbg=88, ws=96)

def _al(x, a=0x10000):
    return (x + a - 1) // a * a
WS = {}
_o = 0
for nm, sz in [("mod", 3840 * 2), ("modf", 3840 * 4), ("w1t", DFF * D * 2), ("w2t", D * DFF * 2), ("h", S_LEN * D * 2),
               ("abt", 2 * D * S_LEN * 2), ("y", 2 * S_LEN * D * 2), ("x1", S_LEN * D * 2),
               ("h2", S_LEN * D * 2), ("h1", S_LEN * DFF * 2)]:
    WS[nm] = (_o, sz)
    _o = _al(_o + sz)


PREP_WGS = 152 + 256
LN2_WGS = 256 + 480
LN1_WGS = 256


class Asm:
    def __init__(self):
        self.lines = []

    def __call__(self, s):
        import re
        m = re.search(r"offset:(\d+)", s)
        if m and s.startswith("buffer_"):
            assert int(m.group(1)) <= 4095, s
        if m and s.startswith("ds_"):
            assert int(m.group(1)) <= 65535, s
        self.lines.append("    " + s)

    def label(self, s):
        self.lines.append(s + ":")

    def raw(self, s):
        self.lines.append(s)

    def text(self):
        return "\n".join(self.lines) + "\n"


def srd(a, sreg, base_lo, base_hi, nbytes, add=0):
    if add:
        a(f"s_add_u32 s{sreg}, s{base_lo}, {add}")
        a(f"s_addc_u32 s{sreg+1}, s{base_hi}, 0")
    else:
        a(f"s_mov_b32 s{sreg}, s{base_lo}")
        a(f"s_mov_b32 s{sreg+1}, s{base_hi}")
    a(f"s_mov_b32 s{sreg+2}, {nbytes}")
    a(f"s_mov_b32 s{sreg+3}, 0x00020000")


def srd_add(a, sreg, soff):
    a(f"s_add_u32 s{sreg}, s{sreg}, s{soff}")
    a(f"s_addc_u32 s{sreg+1}, s{sreg+1}, 0")


def kernel_header(a, label):
    a.raw(f".globl {label}")
    a.raw(".p2align 8")
    a.raw(f".type {label},@function")
    a.label(label)


def kernel_desc(label, nvgpr, nsgpr, accum):
    return f""".amdhsa_kernel {label}
  .amdhsa_next_free_vgpr {nvgpr}
  .amdhsa_next_free_sgpr {nsgpr}
  .amdhsa_accum_offset {accum}
  .amdhsa_group_segment_fixed_size 0
  .amdhsa_kernarg_size 104
  .amdhsa_user_sgpr_count 2
  .amdhsa_user_sgpr_kernarg_segment_ptr 1
  .amdhsa_system_sgpr_workgroup_id_x 1
  .amdhsa_float_denorm_mode_32 3
  .amdhsa_float_denorm_mode_16_64 3
.end_amdhsa_kernel
"""


def unpack(a, lo, hi, src):
    a(f"v_lshlrev_b32 v{lo}, 16, v{src}")
    a(f"v_and_b32 v{hi}, 0xffff0000, v{src}")


def transpose_body(a, L, base):
    a.label(f"{L}_tr")
    a(f"s_load_dwordx2 s[4:5], s[0:1], {KA['ws']}")
    a(f"s_load_dwordx4 s[28:31], s[0:1], {KA['w1']}")
    a(f"s_sub_u32 s6, s2, {base}")
    a("s_waitcnt lgkmcnt(0)")
    a("s_cmp_ge_u32 s6, 240")
    a(f"s_cbranch_scc1 {L}_tr2")
    a("s_mul_i32 s7, s6, 2731")
    a("s_lshr_b32 s7, s7, 16")
    a("s_mul_i32 s20, s7, 24")
    a("s_sub_u32 s20, s6, s20")
    srd(a, 8, 28, 29, 640 * 1536 * 2)
    srd(a, 12, 4, 5, WS["w1t"][1], WS["w1t"][0])
    a("s_movk_i32 s21, 3072")
    a("s_movk_i32 s22, 1280")
    a(f"s_branch {L}_trgo")
    a.label(f"{L}_tr2")
    a("s_sub_u32 s6, s6, 240")
    a("s_mul_i32 s7, s6, 6554")
    a("s_lshr_b32 s7, s7, 16")
    a("s_mul_i32 s20, s7, 10")
    a("s_sub_u32 s20, s6, s20")
    srd(a, 8, 30, 31, 640 * 1536 * 2)
    srd(a, 12, 4, 5, WS["w2t"][1], WS["w2t"][0])
    a("s_movk_i32 s21, 1280")
    a("s_movk_i32 s22, 3072")
    a.label(f"{L}_trgo")
    a("v_lshrrev_b32 v1, 3, v0")
    a("v_and_b32 v2, 7, v0")
    a("s_lshl_b32 s23, s7, 6")
    a("v_add_u32 v3, s23, v1")
    a("v_mul_lo_u32 v3, v3, s21")
    a("v_lshl_add_u32 v3, v2, 4, v3")
    a("s_lshl_b32 s24, s20, 7")
    a("v_add_u32 v3, s24, v3")
    a("s_lshl_b32 s25, s21, 5")
    a("buffer_load_dwordx4 v[8:11], v3, s[8:11], 0 offen")
    a("buffer_load_dwordx4 v[12:15], v3, s[8:11], s25 offen")
    a("s_movk_i32 s26, 1152")
    a("v_mul_lo_u32 v4, v2, s26")
    a("v_lshl_add_u32 v4, v1, 1, v4")
    a("s_waitcnt vmcnt(1)")
    for q in range(4):
        a(f"ds_write_b16 v4, v{8+q} offset:{(2*q)*144}")
        a(f"ds_write_b16_d16_hi v4, v{8+q} offset:{(2*q+1)*144}")
    a("s_waitcnt vmcnt(0)")
    for q in range(4):
        a(f"ds_write_b16 v4, v{12+q} offset:{(2*q)*144+64}")
        a(f"ds_write_b16_d16_hi v4, v{12+q} offset:{(2*q+1)*144+64}")
    a("s_waitcnt lgkmcnt(0)")
    a("s_barrier")
    a("s_movk_i32 s26, 144")
    a("v_mul_lo_u32 v5, v1, s26")
    a("v_lshl_add_u32 v5, v2, 4, v5")
    a("ds_read_b128 v[8:11], v5")
    a(f"ds_read_b128 v[12:15], v5 offset:{32*144}")
    a("s_lshl_b32 s23, s20, 6")
    a("v_add_u32 v6, s23, v1")
    a("v_mul_lo_u32 v6, v6, s22")
    a("v_lshl_add_u32 v6, v2, 4, v6")
    a("s_lshl_b32 s24, s7, 7")
    a("v_add_u32 v6, s24, v6")
    a("s_lshl_b32 s25, s22, 5")
    a("s_waitcnt lgkmcnt(1)")
    a("buffer_store_dwordx4 v[8:11], v6, s[12:15], 0 offen")
    a("s_waitcnt lgkmcnt(0)")
    a("buffer_store_dwordx4 v[12:15], v6, s[12:15], s25 offen")
    a(f"s_branch {L}_end")


def prep_kernel(a):
    L = "prep_kernel"
    kernel_header(a, L)
    a(f"s_cmp_ge_u32 s2, {PREP_WGS}")
    a(f"s_cbranch_scc1 {L}_end")
    a("s_cmp_ge_u32 s2, 152")
    a(f"s_cbranch_scc1 {L}_ln")
    a("s_cmp_ge_u32 s2, 146")
    a(f"s_cbranch_scc1 {L}_end")
    a("s_cmp_ge_u32 s2, 120")
    a(f"s_cbranch_scc1 {L}_pf")
    a(f"s_load_dwordx2 s[4:5], s[0:1], {KA['ws']}")
    a(f"s_load_dwordx4 s[32:35], s[0:1], {KA['c']}")
    a("s_waitcnt lgkmcnt(0)")
    a("s_and_b32 s6, s2, 7")
    a("s_mul_i32 s6, s6, 15")
    a("s_lshr_b32 s7, s2, 3")
    a("s_add_u32 s6, s6, s7")
    srd(a, 8, 34, 35, 640 * 3840 * 2)
    srd(a, 12, 32, 33, 640 * 2)
    srd(a, 16, 4, 5, WS["mod"][1], WS["mod"][0])
    a("v_lshrrev_b32 v1, 2, v0")
    a("v_and_b32 v2, 3, v0")
    a("s_movk_i32 s20, 7680")
    a("v_mul_lo_u32 v3, v1, s20")
    a("v_lshl_add_u32 v3, v2, 4, v3")
    a("s_lshl_b32 s21, s6, 6")
    a("v_add_u32 v3, s21, v3")
    a("v_lshlrev_b32 v4, 1, v1")
    for p in range(10):
        a(f"buffer_load_ushort v{10+p}, v4, s[12:15], 0 offen offset:{p*128}")
    for p in range(10):
        a(f"s_mov_b32 s22, {p*64*7680}")
        a(f"buffer_load_dwordx4 v[{20+4*p}:{23+4*p}], v3, s[8:11], s22 offen")
    for k in range(8):
        a(f"v_mov_b32 v{60+k}, 0")
    a("s_waitcnt vmcnt(10)")
    a("s_mov_b32 s23, 0xbfb8aa3b")
    for p in range(10):
        a(f"v_lshlrev_b32 v{10+p}, 16, v{10+p}")
        a(f"v_mul_f32 v70, s23, v{10+p}")
        a("v_exp_f32 v70, v70")
        a("s_nop 0")
        a("v_add_f32 v70, 1.0, v70")
        a("v_rcp_f32 v70, v70")
        a("s_nop 0")
        a(f"v_mul_f32 v70, v{10+p}, v70")
        a("v_cvt_pk_bf16_f32 v70, v70, v70")
        a(f"v_lshlrev_b32 v{10+p}, 16, v70")
    for p in range(10):
        a(f"s_waitcnt vmcnt({9-p})")
        for q in range(4):
            unpack(a, 70, 71, 20 + 4 * p + q)
            a(f"v_fmac_f32 v{60+2*q}, v{10+p}, v70")
            a(f"v_fmac_f32 v{61+2*q}, v{10+p}, v71")
    a("v_lshlrev_b32 v5, 7, v1")
    a("v_lshl_add_u32 v5, v2, 5, v5")
    a("ds_write_b128 v5, v[60:63]")
    a("ds_write_b128 v5, v[64:67] offset:16")
    a("s_waitcnt lgkmcnt(0)")
    a("s_barrier")
    a("v_and_b32 v6, 31, v0")
    a("v_lshrrev_b32 v7, 5, v0")
    a("v_lshlrev_b32 v8, 10, v7")
    a("v_lshl_add_u32 v8, v6, 2, v8")
    for i in range(8):
        a(f"ds_read_b32 v{20+i}, v8 offset:{i*128}")
    a("s_waitcnt lgkmcnt(0)")
    a("v_add_f32 v20, v20, v21")
    a("v_add_f32 v22, v22, v23")
    a("v_add_f32 v24, v24, v25")
    a("v_add_f32 v26, v26, v27")
    a("v_add_f32 v20, v20, v22")
    a("v_add_f32 v24, v24, v26")
    a("v_add_f32 v20, v20, v24")
    a("v_lshlrev_b32 v9, 2, v0")
    a("ds_write_b32 v9, v20 offset:8192")
    a("s_waitcnt lgkmcnt(0)")
    a("s_barrier")
    a("v_lshlrev_b32 v9, 2, v6")
    for i in range(8):
        a(f"ds_read_b32 v{20+i}, v9 offset:{8192+i*128}")
    a("s_waitcnt lgkmcnt(0)")
    a("v_add_f32 v20, v20, v21")
    a("v_add_f32 v22, v22, v23")
    a("v_add_f32 v24, v24, v25")
    a("v_add_f32 v26, v26, v27")
    a("v_add_f32 v20, v20, v22")
    a("v_add_f32 v24, v24, v26")
    a("v_add_f32 v20, v20, v24")
    a("v_cvt_pk_bf16_f32 v20, v20, v20")
    a("v_lshlrev_b32 v9, 1, v6")
    a("v_add_u32 v9, s21, v9")
    a("v_cmp_gt_u32 vcc, 32, v0")
    a("s_and_saveexec_b64 s[24:25], vcc")
    a(f"s_cbranch_execz {L}_end")
    a("buffer_store_short v20, v9, s[16:19], 0 offen")
    a(f"s_branch {L}_end")
    a.label(f"{L}_pf")
    a(f"s_load_dwordx8 s[28:35], s[0:1], {KA['seq_re']}")
    a("s_sub_u32 s6, s2, 120")
    a("s_waitcnt lgkmcnt(0)")
    a("s_mov_b32 s8, s32")
    a("s_mov_b32 s9, s33")
    a(f"s_mov_b32 s10, {640*640*2}")
    a("s_mov_b32 s11, 0x00020000")
    a("s_cmp_lt_u32 s6, 13")
    a(f"s_cbranch_scc1 {L}_pfgo")
    a("s_sub_u32 s6, s6, 13")
    a("s_mov_b32 s8, s34")
    a("s_mov_b32 s9, s35")
    a.label(f"{L}_pfgo")
    a("s_lshl_b32 s6, s6, 16")
    a("v_lshlrev_b32 v1, 4, v0")
    a("v_add_u32 v1, s6, v1")
    for i in range(16):
        a(f"s_mov_b32 s7, {i*4096}")
        a(f"buffer_load_dwordx4 v[{4+4*i}:{7+4*i}], v1, s[8:11], s7 offen")
    a(f"s_branch {L}_end")
    a.label(f"{L}_ln")
    a(f"s_load_dwordx2 s[4:5], s[0:1], {KA['ws']}")
    a(f"s_load_dwordx2 s[6:7], s[0:1], {KA['x']}")
    a("s_sub_u32 s3, s2, 152")
    if XL:
        a("s_and_b32 s20, s3, 7")
        a("s_lshl_b32 s20, s20, 5")
        a("s_lshr_b32 s3, s3, 3")
        a("s_add_u32 s3, s3, s20")
    a("v_lshrrev_b32 v1, 5, v0")
    a("s_lshl_b32 s3, s3, 3")
    a("v_add_u32 v1, s3, v1")
    a("v_and_b32 v2, 31, v0")
    a("v_lshlrev_b32 v2, 3, v2")
    a("s_movk_i32 s3, 1280")
    a("v_mul_lo_u32 v1, v1, s3")
    a("v_add_u32 v1, v1, v2")
    a("s_waitcnt lgkmcnt(0)")
    NB = S_LEN * D * 2
    srd(a, 8, 6, 7, NB)
    srd(a, 16, 4, 5, NB, WS["h"][0])
    for i in range(5):
        a(f"buffer_load_dwordx2 v[{10+2*i}:{11+2*i}], v1, s[8:11], 0 offen offset:{i*256}")
    a("s_waitcnt vmcnt(0)")
    for k in range(10):
        unpack(a, 20 + 2 * k, 21 + 2 * k, 10 + k)
    ln_core(a, 20, 0, 0, 40, 50, apply=False)
    for i in range(5):
        a(f"buffer_store_dwordx2 v[{40+2*i}:{41+2*i}], v1, s[16:19], 0 offen offset:{i*256}")
    a.label(f"{L}_end")
    a("s_endpgm")
    return kernel_desc(L, 72, 40, 72)


def reduce32(a, v, t):
    a("s_nop 1")
    a(f"v_add_f32_dpp v{t}, v{v}, v{v} quad_perm:[1,0,3,2] row_mask:0xf bank_mask:0xf")
    a("s_nop 1")
    a(f"v_add_f32_dpp v{v}, v{t}, v{t} quad_perm:[2,3,0,1] row_mask:0xf bank_mask:0xf")
    a("s_nop 1")
    a(f"v_add_f32_dpp v{t}, v{v}, v{v} row_half_mirror row_mask:0xf bank_mask:0xf")
    a("s_nop 1")
    a(f"v_add_f32_dpp v{v}, v{t}, v{t} row_mirror row_mask:0xf bank_mask:0xf")
    a(f"ds_swizzle_b32 v{t}, v{v} offset:0x401F")
    a("s_waitcnt lgkmcnt(0)")
    a(f"v_add_f32 v{v}, v{v}, v{t}")


def ln_core(a, X, C1, SH, OUT, T, apply=True):
    s, t, m, r = T, T + 1, T + 2, T + 3
    a(f"v_add_f32 v{s}, v{X}, v{X+1}")
    a(f"v_add_f32 v{t}, v{X+2}, v{X+3}")
    for k in range(4, 20, 2):
        a(f"v_add_f32 v{s}, v{s}, v{X+k}")
        a(f"v_add_f32 v{t}, v{t}, v{X+k+1}")
    a(f"v_add_f32 v{s}, v{s}, v{t}")
    reduce32(a, s, t)
    a(f"v_mul_f32 v{m}, 0x3acccccd, v{s}")
    a(f"v_sub_f32 v{t}, v{X}, v{m}")
    a(f"v_mul_f32 v{s}, v{t}, v{t}")
    a(f"v_sub_f32 v{t}, v{X+1}, v{m}")
    a(f"v_mul_f32 v{r}, v{t}, v{t}")
    for k in range(2, 20, 2):
        a(f"v_sub_f32 v{t}, v{X+k}, v{m}")
        a(f"v_fmac_f32 v{s}, v{t}, v{t}")
        a(f"v_sub_f32 v{t}, v{X+k+1}, v{m}")
        a(f"v_fmac_f32 v{r}, v{t}, v{t}")
    a(f"v_add_f32 v{s}, v{s}, v{r}")
    reduce32(a, s, t)
    a(f"v_mul_f32 v{s}, 0x3acccccd, v{s}")
    a(f"v_cvt_pk_bf16_f32 v{t}, v{m}, v{s}")
    unpack(a, m, s, t)
    a(f"v_add_f32 v{s}, 0x3727c5ac, v{s}")
    a(f"v_cvt_pk_bf16_f32 v{t}, v{s}, v{s}")
    a(f"v_lshlrev_b32 v{s}, 16, v{t}")
    a(f"v_sqrt_f32 v{s}, v{s}")
    a("s_nop 0")
    a(f"v_cvt_pk_bf16_f32 v{t}, v{s}, v{s}")
    a(f"v_lshlrev_b32 v{s}, 16, v{t}")
    a(f"v_rcp_f32 v{r}, v{s}")
    a("s_nop 0")
    u, w = T + 4, T + 5
    for k in range(0, 20, 2):
        a(f"v_sub_f32 v{u}, v{X+k}, v{m}")
        a(f"v_sub_f32 v{w}, v{X+k+1}, v{m}")
        a(f"v_cvt_pk_bf16_f32 v{t}, v{u}, v{w}")
        unpack(a, u, w, t)
        a(f"v_mul_f32 v{u}, v{u}, v{r}")
        a(f"v_mul_f32 v{w}, v{w}, v{r}")
        if not apply:
            a(f"v_cvt_pk_bf16_f32 v{OUT+k//2}, v{u}, v{w}")
            continue
        a(f"v_cvt_pk_bf16_f32 v{t}, v{u}, v{w}")
        unpack(a, u, w, t)
        a(f"v_mul_f32 v{u}, v{u}, v{C1+k}")
        a(f"v_mul_f32 v{w}, v{w}, v{C1+k+1}")
        a(f"v_cvt_pk_bf16_f32 v{t}, v{u}, v{w}")
        unpack(a, u, w, t)
        a(f"v_add_f32 v{u}, v{u}, v{SH+k}")
        a(f"v_add_f32 v{w}, v{w}, v{SH+k+1}")
        a(f"v_cvt_pk_bf16_f32 v{OUT+k//2}, v{u}, v{w}")


def ln_kernel(a, second):
    L = "ln2_kernel" if second else "ln1_kernel"
    kernel_header(a, L)
    if not second:
        a(f"s_cmp_ge_u32 s2, {LN1_WGS}")
        a(f"s_cbranch_scc1 {L}_end")
        a("s_cmp_lt_u32 s2, 256")
        a(f"s_cbranch_scc1 {L}_go")
        a(f"s_load_dwordx4 s[28:31], s[0:1], {KA['seq_re']}")
        a("s_sub_u32 s6, s2, 192")
        a("s_waitcnt lgkmcnt(0)")
        a("s_cmp_ge_u32 s6, 128")
        a("s_cselect_b32 s8, s30, s28")
        a("s_cselect_b32 s9, s31, s29")
        a(f"s_mov_b32 s10, {2048*2048*2}")
        a("s_mov_b32 s11, 0x00020000")
        a("s_and_b32 s6, s6, 127")
        a("s_lshl_b32 s6, s6, 16")
        a("v_lshlrev_b32 v1, 4, v0")
        a("v_add_u32 v1, s6, v1")
        for i in range(16):
            a(f"s_mov_b32 s7, {i*4096}")
            a(f"buffer_load_dwordx4 v[{4+4*i}:{7+4*i}], v1, s[8:11], s7 offen")
        a("s_endpgm")
        a.label(f"{L}_go")
    else:
        a(f"s_cmp_ge_u32 s2, {LN2_WGS}")
        a(f"s_cbranch_scc1 {L}_end")
        a("s_cmp_lt_u32 s2, 256")
        a(f"s_cbranch_scc1 {L}_go")
        transpose_body(a, L, 256)
        a.label(f"{L}_go")
    a(f"s_load_dwordx2 s[4:5], s[0:1], {KA['ws']}")
    a(f"s_load_dwordx2 s[6:7], s[0:1], {KA['x']}")
    a("s_waitcnt lgkmcnt(0)")
    NB = S_LEN * D * 2
    srd(a, 8, 6, 7, NB)
    srd(a, 12, 4, 5, WS["mod"][1], WS["mod"][0])
    srd(a, 16, 4, 5, NB, WS["h2" if second else "h"][0])
    if second:
        srd(a, 20, 4, 5, NB, WS["y"][0])
        srd(a, 24, 4, 5, NB, WS["y"][0] + NB)
        srd(a, 28, 4, 5, NB, WS["x1"][0])
    a("v_lshrrev_b32 v1, 5, v0")
    if XL:
        a("s_and_b32 s33, s2, 7")
        a("s_lshl_b32 s33, s33, 5")
        a("s_lshr_b32 s3, s2, 3")
        a("s_add_u32 s3, s3, s33")
        a("s_lshl_b32 s3, s3, 3")
    else:
        a("s_lshl_b32 s3, s2, 3")
    a("v_add_u32 v1, s3, v1")
    a("v_and_b32 v2, 31, v0")
    a("v_lshlrev_b32 v2, 3, v2")
    a("s_movk_i32 s3, 1280")
    a("v_mul_lo_u32 v1, v1, s3")
    a("v_add_u32 v1, v1, v2")
    for i in range(5):
        a(f"buffer_load_dwordx2 v[{10+2*i}:{11+2*i}], v1, s[8:11], 0 offen offset:{i*256}")
    if second:
        for i in range(5):
            a(f"buffer_load_dwordx2 v[{20+2*i}:{21+2*i}], v1, s[20:23], 0 offen offset:{i*256}")
        for i in range(5):
            a(f"buffer_load_dwordx2 v[{30+2*i}:{31+2*i}], v1, s[24:27], 0 offen offset:{i*256}")
        for i in range(5):
            a(f"buffer_load_dwordx2 v[{40+2*i}:{41+2*i}], v2, s[12:15], 0 offen offset:{2*1280+i*256}")
    coff = (4 if second else 1) * 1280
    soff = (3 if second else 0) * 1280
    a(f"s_movk_i32 s3, {coff}")
    for i in range(5):
        a(f"buffer_load_dwordx2 v[{50+2*i}:{51+2*i}], v2, s[12:15], s3 offen offset:{i*256}")
    a(f"s_movk_i32 s32, {soff}")
    for i in range(5):
        a(f"buffer_load_dwordx2 v[{60+2*i}:{61+2*i}], v2, s[12:15], s32 offen offset:{i*256}")
    X, C1, SH, OUT, T = 70, 90, 110, 130, 140
    if second:
        a("s_waitcnt vmcnt(10)")
        for k in range(10):
            unpack(a, T, T + 1, 20 + k)
            unpack(a, T + 2, T + 3, 30 + k)
            a(f"v_sub_f32 v{T}, v{T}, v{T+2}")
            a(f"v_sub_f32 v{T+1}, v{T+1}, v{T+3}")
            a(f"v_cvt_pk_bf16_f32 v{T+4}, v{T}, v{T+1}")
            unpack(a, T, T + 1, T + 4)
            unpack(a, T + 2, T + 3, 40 + k)
            a(f"v_mul_f32 v{T}, v{T}, v{T+2}")
            a(f"v_mul_f32 v{T+1}, v{T+1}, v{T+3}")
            a(f"v_cvt_pk_bf16_f32 v{T+4}, v{T}, v{T+1}")
            unpack(a, T, T + 1, T + 4)
            unpack(a, T + 2, T + 3, 10 + k)
            a(f"v_add_f32 v{T}, v{T}, v{T+2}")
            a(f"v_add_f32 v{T+1}, v{T+1}, v{T+3}")
            a(f"v_cvt_pk_bf16_f32 v{20+k}, v{T}, v{T+1}")
            unpack(a, X + 2 * k, X + 2 * k + 1, 20 + k)
        for i in range(5):
            a(f"buffer_store_dwordx2 v[{20+2*i}:{21+2*i}], v1, s[28:31], 0 offen offset:{i*256}")
        a("s_waitcnt vmcnt(5)")
    else:
        a("s_waitcnt vmcnt(10)")
        for k in range(10):
            unpack(a, X + 2 * k, X + 2 * k + 1, 10 + k)
        a("s_waitcnt vmcnt(0)")
    for k in range(10):
        unpack(a, T, T + 1, 50 + k)
        a(f"v_add_f32 v{T}, 1.0, v{T}")
        a(f"v_add_f32 v{T+1}, 1.0, v{T+1}")
        a(f"v_cvt_pk_bf16_f32 v{T+2}, v{T}, v{T+1}")
        unpack(a, C1 + 2 * k, C1 + 2 * k + 1, T + 2)
        unpack(a, SH + 2 * k, SH + 2 * k + 1, 60 + k)
    ln_core(a, X, C1, SH, OUT, T)
    for i in range(5):
        a(f"buffer_store_dwordx2 v[{OUT+2*i}:{OUT+1+2*i}], v1, s[16:19], 0 offen offset:{i*256}")
    a.label(f"{L}_end")
    a("s_endpgm")
    return kernel_desc(L, 152, 40, 152)


def rowmap(paired_ok, nb, b, i):
    if paired_ok and not (b == nb - 1 and nb % 2 == 1):
        return 32 * (b >> 1) + 8 * (i >> 2) + 4 * (b & 1) + (i & 3)
    return 16 * b + i


def fsw_row(paired_ok, nb, n):
    npair = (nb // 2) * 32 if paired_ok else 0
    if n < npair:
        return 2 * ((n >> 3) & 3) + ((n >> 1) & 1)
    return (n >> 1) & 7


def check_conflicts(paired_ok, nb):
    groups = [[0, 1, 2, 3, 12, 13, 14, 15] + list(range(20, 28)),
              list(range(4, 12)) + [16, 17, 18, 19, 28, 29, 30, 31]]
    groups += [[x + 32 for x in g] for g in groups]
    for b in range(nb):
        for j in range(2):
            for g in groups:
                qs = set()
                for l in g:
                    n = rowmap(paired_ok, nb, b, l & 15)
                    assert fsw_row(paired_ok, nb, n) == ((l & 15) >> 1)
                    addr = n * 128 + ((4 * j) ^ (l >> 4) ^ fsw_row(paired_ok, nb, n)) * 16
                    qs.add((addr // 16) % 16)
                assert len(qs) == 16, (paired_ok, nb, b, j)


def gemm_kernel(a, L, K, BS, BV, BK, ndimS, ksplit, nslot, setup, epilogue, pre_epi=None, nwg=256, stage_hook=None):
    nsb = BS // 16
    check_conflicts(ndimS, nsb)
    check_conflicts(not ndimS, 2)
    kernel_header(a, L)
    a(f"s_cmp_ge_u32 s2, {nwg}")
    a(f"s_cbranch_scc1 {L}_end")
    if STAMP:
        a("s_memtime s[96:97]")
    a("v_lshrrev_b32 v1, 6, v0")
    a("s_nop 0")
    a("v_readfirstlane_b32 s40, v1")
    a("v_and_b32 v1, 63, v0")
    a("v_and_b32 v2, 15, v1")
    a("v_lshrrev_b32 v3, 4, v1")
    ldS, ldV = setup(a)
    nsub = BK // 64
    nst = K // BK
    subS, subV = BS * 128, BV * 128
    slotsz = nsub * (subS + subV)
    NS = min(nslot, nst)
    chunks = [("S", u, r) for u in range(nsub) for r in range(BS // 8)] + \
             [("V", u, r) for u in range(nsub) for r in range(BV // 8)]
    nS = nsub * BS // 8
    assert nS % 4 == 0 and len(chunks) % 4 == 0
    nt = len(chunks) // 4

    def lds_off(op, u, r):
        return (u * subS + r * 1024) if op == "S" else (nsub * subS + u * subV + r * 1024)

    steps = [(u, j) for u in range(nsub) for j in range(2)] if ksplit == 1 else [(u, None) for u in range(nsub)]
    spw = len(steps)
    vDMA = 8
    nj = 2 if ksplit == 1 else 1
    nSA = 2 if (ndimS and nsb % 2 == 1) else 1
    vSA = 8
    vVA = vSA + NS * nSA * nj
    vT = max(vVA + NS * nj, vDMA + nt)
    vF = (vT + 4 + 3) // 4 * 4
    nfr = nsb + 2
    vR = vF + 2 * nfr * 4
    vE = vR + nsb * 8
    vTot = vE + (32 if pre_epi else 0) + (1 if STAMP else 0)
    accum = (vTot + 3) // 4 * 4
    nacc = nsb * 2 * 4
    assert accum + nacc <= 256
    sLO = 64
    a("s_cmp_lt_u32 s40, 4")
    a(f"s_cbranch_scc1 {L}_comp")
    a("s_sub_u32 s40, s40, 4")
    a("v_lshrrev_b32 v4, 3, v1")
    a("v_and_b32 v5, 7, v1")
    a("v_and_b32 v6, 1, v3")
    a("v_xor_b32 v6, v6, v5")
    a("v_xor_b32 v7, v3, v5")
    a(f"s_movk_i32 s46, {ldS}")
    a(f"v_mul_lo_u32 v{vT}, v4, s46")
    a(f"s_movk_i32 s46, {ldV}")
    a(f"v_mul_lo_u32 v{vT+1}, v4, s46")
    q = []

    def vm_wait_for(tag):
        last = -1
        for idx, t in enumerate(q):
            if t == tag:
                last = idx
        return min(len(q) - 1 - last, 63)

    def issue_one(s, t):
        op = chunks[4 * t][0]
        a(f"s_add_u32 m0, s{sLO+t}, {(s % NS)*slotsz}")
        a(f"s_movk_i32 s46, {s*BK*2}")
        sr = "s[8:11]" if op == "S" else "s[12:15]"
        a(f"buffer_load_dwordx4 v{vDMA+t}, {sr}, s46 offen lds")
        q.append(s)

    def issue(s):
        for t in range(nt):
            issue_one(s, t)

    def sel(dst, vals):
        if all(v == vals[0] + (vals[1] - vals[0]) * k for k, v in enumerate(vals)):
            if vals[1] == vals[0]:
                a(f"s_mov_b32 s{dst}, {vals[0]}")
            else:
                a(f"s_mul_i32 s{dst}, s40, {vals[1]-vals[0]}")
                if vals[0]:
                    a(f"s_add_u32 s{dst}, s{dst}, {vals[0]}")
        else:
            a(f"s_mov_b32 s{dst}, {vals[0]}")
            for w in range(1, 4):
                a(f"s_cmp_eq_u32 s40, {w}")
                a(f"s_cselect_b32 s{dst}, {vals[w]}, s{dst}")

    for t in range(nt):
        ops = [chunks[4 * t + w] for w in range(4)]
        op = ops[0][0]
        assert all(o[0] == op for o in ops)
        ld = ldS if op == "S" else ldV
        paired_ok = ndimS if op == "S" else (not ndimS)
        nb = nsb if op == "S" else 2
        npair = (nb // 2) * 32 if paired_ok else 0
        def is_paired(o):
            n = o[2] * 8
            if op == "V":
                n &= 31
            return n < npair
        pk = [is_paired(o) for o in ops]
        sx = [(2 * (o[2] & 3) if p else 4 * (o[2] & 1)) for o, p in zip(ops, pk)]
        for o, p, x in zip(ops, pk, sx):
            for lane in range(64):
                n = o[2] * 8 + (lane >> 3)
                nn = n & 31 if op == "V" else n
                f = fsw_row(paired_ok, nb, nn)
                lx = ((lane >> 4) & 1) if p else ((lane >> 4) & 3)
                assert f == (x ^ lx), (op, o, lane)
        sel(44, sx)
        sel(45, [o[2] * 8 * ld + o[1] * 128 for o in ops])
        sel(sLO + t, [lds_off(*o) for o in ops])
        if all(pk) or not any(pk):
            a(f"v_xor_b32 v{vT+2}, s44, v{6 if pk[0] else 7}")
        else:
            sel(47, [1 if p else 0 for p in pk])
            a("s_cmp_eq_u32 s47, 1")
            a("s_cselect_b64 vcc, -1, 0")
            a(f"v_cndmask_b32 v{vT+2}, v7, v6, vcc")
            a(f"v_xor_b32 v{vT+2}, s44, v{vT+2}")
        a(f"v_lshl_add_u32 v{vT+2}, v{vT+2}, 4, v{vT if op == 'S' else vT+1}")
        a(f"v_add_u32 v{vDMA+t}, s45, v{vT+2}")
        issue_one(0, t)
    if NS > 1:
        issue(1)
    a(f"s_waitcnt vmcnt({vm_wait_for(0)})")
    a("s_barrier")
    nxt = 2
    for s in range(nst - 1):
        cnt = 0
        while nxt < nst and nxt <= s + NS - 1 and cnt < 2:
            issue(nxt)
            nxt += 1
            cnt += 1
        a(f"s_waitcnt vmcnt({vm_wait_for(s+1)})")
        a("s_barrier")
    a("s_endpgm")
    a.label(f"{L}_comp")
    if ksplit == 2:
        a("s_and_b32 s42, s40, 1")
        a("s_lshr_b32 s43, s40, 1")
    else:
        a("s_mov_b32 s42, s40")
        a("s_mov_b32 s43, 0")
    a("v_lshrrev_b32 v4, 1, v2")
    a("v_xor_b32 v4, v4, v3")
    if ksplit == 2:
        a("s_lshl_b32 s46, s43, 2")
        a("v_xor_b32 v4, s46, v4")
    a("v_and_b32 v5, 12, v2")
    a("v_lshlrev_b32 v5, 1, v5")
    a("v_and_b32 v6, 3, v2")
    a("v_or_b32 v5, v5, v6")
    def addr_regs(dst_fn, rowreg, extra_sgpr=None):
        for j in range(nj):
            a(f"v_xor_b32 v6, {4*j}, v4")
            a(f"v_lshlrev_b32 v6, 4, v6")
            a(f"v_lshl_add_u32 v6, v{rowreg}, 7, v6")
            if extra_sgpr is not None:
                a(f"v_add_u32 v6, s{extra_sgpr}, v6")
            for sl in range(NS):
                a(f"v_add_u32 v{dst_fn(sl, j)}, {sl*slotsz}, v6")
    saddr = lambda kind, sl, j: vSA + (sl * nSA + kind) * nj + j
    vaddr = lambda sl, j: vVA + sl * nj + j
    addr_regs(lambda sl, j: saddr(0, sl, j), 5 if ndimS else 2)
    if nSA == 2:
        addr_regs(lambda sl, j: saddr(1, sl, j), 2)
    a(f"s_lshl_b32 s46, s42, 12")
    a(f"s_add_u32 s46, s46, {nsub*subS}")
    addr_regs(vaddr, 2 if ndimS else 5, 46)
    if pre_epi:
        pre_epi(a, vE)

    def frag_reads(s, k, buf):
        slot = s % NS
        u, j = steps[k]
        jj = j if j is not None else 0
        for vb in range(2):
            r = vF + (buf * nfr + nsb + vb) * 4
            off = u * subV + (rowmap(not ndimS, 2, vb, 0)) * 128
            a(f"ds_read_b128 v[{r}:{r+3}], v{vaddr(slot, jj)} offset:{off}")
        for b in range(nsb):
            r = vF + (buf * nfr + b) * 4
            left = ndimS and nsb % 2 == 1 and b == nsb - 1
            off = u * subS + rowmap(ndimS, nsb, b, 0) * 128
            a(f"ds_read_b128 v[{r}:{r+3}], v{saddr(1 if left else 0, slot, jj)} offset:{off}")

    def mfmas(buf, first):
        for b in range(nsb):
            for vb in range(2):
                ar = (b * 2 + vb) * 4
                sf = vF + (buf * nfr + b) * 4
                vf = vF + (buf * nfr + nsb + vb) * 4
                A, B = (sf, vf) if ndimS else (vf, sf)
                c = "0" if first else f"a[{ar}:{ar+3}]"
                a(f"v_mfma_f32_16x16x32_bf16 a[{ar}:{ar+3}], v[{A}:{A+3}], v[{B}:{B+3}], {c}")

    nstamp = [0]
    def stamp():
        if STAMP:
            a(f"s_memtime s[{100-2}:{100-1}]")
            a("s_waitcnt lgkmcnt(0)")
            a(f"v_writelane_b32 v{vST}, s98, {nstamp[0]}")
            nstamp[0] += 1
    vST = accum - 1
    step = 0
    if STAMP:
        a(f"v_writelane_b32 v{vST}, s96, 63")
    stamp()
    a("s_barrier")
    stamp()
    frag_reads(0, 0, 0)
    for s in range(nst):
        if stage_hook:
            stage_hook(a, s, vE)
        for k in range(spw):
            buf = step & 1
            last = k == spw - 1
            if not last:
                frag_reads(s, k + 1, buf ^ 1)
                a(f"s_waitcnt lgkmcnt({nfr})")
            else:
                a("s_waitcnt lgkmcnt(0)")
                if s + 1 < nst:
                    a("s_barrier")
                    stamp()
                    frag_reads(s + 1, 0, buf ^ 1)
            mfmas(buf, step == 0)
            step += 1
    a("s_nop 7")
    a("s_nop 7")
    stamp()
    if ksplit == 2:
        a("s_barrier")
        a("v_lshlrev_b32 v4, 4, v1")
        a(f"s_mul_i32 s46, s40, {nsb*1024}")
        a("v_add_u32 v5, s46, v4")
        a("s_xor_b32 s47, s40, 2")
        a(f"s_mul_i32 s46, s47, {nsb*1024}")
        a("v_add_u32 v4, s46, v4")
        a("s_cmp_eq_u32 s43, 0")
        a(f"s_cbranch_scc1 {L}_k0")
        for b in range(nsb):
            k = b * 2
            a(f"ds_write_b128 v5, a[{4*k}:{4*k+3}] offset:{b*1024}")
        for b in range(nsb):
            for r in range(4):
                a(f"v_accvgpr_read_b32 v{vR+b*4+r}, a{(b*2+1)*4+r}")
        a(f"s_branch {L}_k1")
        a.label(f"{L}_k0")
        for b in range(nsb):
            k = b * 2 + 1
            a(f"ds_write_b128 v5, a[{4*k}:{4*k+3}] offset:{b*1024}")
        for b in range(nsb):
            for r in range(4):
                a(f"v_accvgpr_read_b32 v{vR+b*4+r}, a{(b*2)*4+r}")
        a.label(f"{L}_k1")
        a("s_waitcnt lgkmcnt(0)")
        a("s_barrier")
        for b in range(nsb):
            a(f"ds_read_b128 v[{vF+4*b}:{vF+4*b+3}], v4 offset:{b*1024}")
        a("s_waitcnt lgkmcnt(0)")
        for k in range(nsb * 4):
            a(f"v_add_f32 v{vR+k}, v{vR+k}, v{vF+k}")
    else:
        for k in range(nsb * 2 * 4):
            a(f"v_accvgpr_read_b32 v{vR+k}, a{k}")
    a("s_waitcnt vmcnt(0)")
    epilogue(a, vR, vF, vE, nsb)
    if STAMP:
        stamp()
        a("s_waitcnt vmcnt(0)")
        stamp()
        srd(a, 92, 48, 49, 1 << 20, (200 << 20) + STAMPK[0] * (1 << 20))
        STAMPK[0] += 1
        a("s_lshl_b32 s46, s2, 10")
        a("s_lshl_b32 s47, s40, 8")
        a("s_add_u32 s46, s46, s47")
        a("v_lshlrev_b32 v4, 2, v1")
        a(f"buffer_store_dword v{vST}, v4, s[92:95], s46 offen")
    a.label(f"{L}_end")
    a("s_endpgm")
    lds = max(NS * slotsz, (4 * nsb * 1024) if ksplit == 2 else 0)
    assert lds <= 163840, lds
    return kernel_desc(L, accum + nacc, 102, accum), lds


def gemma2_kernel(a):
    L = "gemma_kernel"
    K, NS = 640, 4
    nst = 10
    VB = 0
    SB = 81920
    slotsz = 160 * 128
    kernel_header(a, L)
    a("s_cmp_ge_u32 s2, 256")
    a(f"s_cbranch_scc1 {L}_end")
    a(f"s_load_dwordx2 s[48:49], s[0:1], {KA['ws']}")
    a(f"s_load_dwordx4 s[52:55], s[0:1], {KA['hid_re']}")
    a("v_lshrrev_b32 v1, 6, v0")
    a("s_nop 0")
    a("v_readfirstlane_b32 s40, v1")
    a("v_and_b32 v1, 63, v0")
    a("v_and_b32 v2, 15, v1")
    a("v_lshrrev_b32 v3, 4, v1")
    a("s_and_b32 s3, s2, 7")
    a("s_lshr_b32 s4, s2, 3")
    if XL:
        a("s_lshr_b32 s5, s4, 2")
        a("s_lshl_b32 s6, s3, 2")
        a("s_and_b32 s7, s4, 3")
        a("s_add_u32 s6, s6, s7")
    else:
        a("s_and_b32 s5, s3, 1")
        a("s_lshl_b32 s5, s5, 2")
        a("s_and_b32 s6, s4, 3")
        a("s_add_u32 s5, s5, s6")
        a("s_lshr_b32 s6, s3, 1")
        a("s_lshl_b32 s6, s6, 3")
        a("s_lshr_b32 s7, s4, 2")
        a("s_add_u32 s6, s6, s7")
    a("s_lshl_b32 s44, s40, 3")
    a("v_add_u32 v4, s44, v3")
    a("s_movk_i32 s45, 1280")
    a("v_mul_lo_u32 v5, v4, s45")
    a("v_lshl_add_u32 v5, v2, 4, v5")
    a("v_lshlrev_b32 v6, 4, v2")
    a("s_waitcnt lgkmcnt(0)")
    a("s_cmp_ge_u32 s5, 4")
    a("s_cselect_b32 s8, s54, s52")
    a("s_cselect_b32 s9, s55, s53")
    a(f"s_mov_b32 s10, {160*1280}")
    a("s_mov_b32 s11, 0x00020000")
    a("s_and_b32 s7, s5, 3")
    a(f"s_mul_i32 s7, s7, {160*1280}")
    srd_add(a, 8, 7)
    srd(a, 12, 48, 49, 64 * 1280, WS["h"][0])
    a(f"s_mul_i32 s7, s6, {64*1280}")
    srd_add(a, 12, 7)
    srd(a, 20, 48, 49, WS["mod"][1], WS["mod"][0])
    a("s_movk_i32 s45, 5120")
    for rp in range(2):
        for k in range(5):
            r = 16 + (rp * 5 + k) * 4
            so = "s45" if rp else "0"
            a(f"buffer_load_dwordx4 v[{r}:{r+3}], v5, s[12:15], {so} offen offset:{k*256}")
    for k in range(5):
        a(f"buffer_load_dwordx4 v[{56+4*k}:{59+4*k}], v6, s[20:23], 0 offen offset:{1280+k*256}")
    for k in range(5):
        a(f"buffer_load_dwordx4 v[{76+4*k}:{79+4*k}], v6, s[20:23], 0 offen offset:{k*256}")
    if TLBWARM:
        a(f"s_load_dwordx4 s[56:59], s[0:1], {KA['seq_re']}")
        a("s_lshr_b32 s36, s3, 1")
        a("s_lshl_b32 s36, s36, 9")
        a("s_lshl_b32 s37, s4, 4")
        a("s_add_u32 s36, s36, s37")
        a("v_add_u32 v12, s36, v2")
        a("v_lshlrev_b32 v12, 12, v12")
        a("s_waitcnt lgkmcnt(0)")
        a("s_and_b32 s37, s3, 1")
        a("s_cmp_eq_u32 s37, 1")
        a("s_cselect_b32 s60, s58, s56")
        a("s_cselect_b32 s61, s59, s57")
        a(f"s_mov_b32 s62, {2048*2048*2}")
        a("s_mov_b32 s63, 0x00020000")
        a("buffer_load_dword v13, v12, s[60:63], 0 offen")
    srd(a, 16, 48, 49, 160 * 4096, WS["abt"][0])
    a(f"s_mul_i32 s7, s5, {160*4096}")
    srd_add(a, 16, 7)
    a("s_lshl_b32 s7, s6, 7")
    srd_add(a, 16, 7)
    a("s_and_b32 s41, s40, 3")
    a("v_lshrrev_b32 v8, 3, v1")
    a("v_and_b32 v9, 7, v1")
    a("v_xor_b32 v9, v9, v3")
    a("s_and_b32 s44, s41, 1")
    a("s_lshl_b32 s44, s44, 2")
    a("v_xor_b32 v9, s44, v9")
    a("s_lshl_b32 s44, s41, 3")
    a("v_add_u32 v8, s44, v8")
    a("s_movk_i32 s45, 1280")
    a("v_mul_lo_u32 v8, v8, s45")
    a("v_lshl_add_u32 v8, v9, 4, v8")
    a("s_lshl_b32 s42, s41, 10")
    a(f"s_add_u32 s42, s42, {SB}")
    a("s_cmp_lt_u32 s40, 4")
    a(f"s_cbranch_scc1 {L}_p0")

    def issue(s):
        for t in range(5):
            a(f"s_add_u32 m0, s42, {(s % NS)*slotsz + t*4096}")
            a(f"s_mov_b32 s46, {s*128 + t*32*1280}")
            a("buffer_load_dwordx4 v8, s[8:11], s46 offen lds")
    for s in range(NS):
        issue(s)
    a("s_waitcnt vmcnt(20)")
    a(f"s_branch {L}_p0b")
    a.label(f"{L}_p0")
    a("s_waitcnt vmcnt(0)")
    a.label(f"{L}_p0b")
    a("v_lshrrev_b32 v10, 1, v3")
    a("s_and_b32 s44, s40, 3")
    a("s_lshl_b32 s44, s44, 1")
    a("v_or_b32 v10, s44, v10")
    a("v_and_b32 v11, 7, v2")
    a("v_xor_b32 v10, v10, v11")
    a("v_lshlrev_b32 v10, 4, v10")
    a("v_lshl_add_u32 v10, v4, 7, v10")
    a("v_lshrrev_b32 v11, 3, v2")
    a("v_lshl_add_u32 v10, v11, 13, v10")
    a("v_add_u32 v11, 0x8000, v10")
    T = 96
    for k in range(5):
        for q in range(4):
            unpack(a, T, T + 1, 56 + 4 * k + q)
            a(f"v_add_f32 v{T}, 1.0, v{T}")
            a(f"v_add_f32 v{T+1}, 1.0, v{T+1}")
            a(f"v_cvt_pk_bf16_f32 v{T+6}, v{T}, v{T+1}")
            unpack(a, T, T + 1, T + 6)
            unpack(a, T + 2, T + 3, 76 + 4 * k + q)
            for rp in range(2):
                r = 16 + (rp * 5 + k) * 4 + q
                unpack(a, T + 4, T + 5, r)
                a(f"v_mul_f32 v{T+4}, v{T+4}, v{T}")
                a(f"v_mul_f32 v{T+5}, v{T+5}, v{T+1}")
                a(f"v_cvt_pk_bf16_f32 v{T+6}, v{T+4}, v{T+5}")
                unpack(a, T + 4, T + 5, T + 6)
                a(f"v_add_f32 v{T+4}, v{T+4}, v{T+2}")
                a(f"v_add_f32 v{T+5}, v{T+5}, v{T+3}")
                a(f"v_cvt_pk_bf16_f32 v{r}, v{T+4}, v{T+5}")
        for rp in range(2):
            r = 16 + (rp * 5 + k) * 4
            off = k * 16384 + rp * 512
            areg = 10
            if off >= 32768:
                off -= 32768
                areg = 11
            a(f"ds_write_b128 v{areg}, v[{r}:{r+3}] offset:{off}")
    a("s_cmp_lt_u32 s40, 4")
    a(f"s_cbranch_scc1 {L}_comp")
    a("s_waitcnt vmcnt(15) lgkmcnt(0)")
    a("s_barrier")
    for s in range(nst - 1):
        out = min(NS - 1, nst - 2 - s) - 0
        issued = min(nst, NS + s)
        a(f"s_waitcnt vmcnt({(issued - (s + 2)) * 5})")
        a("s_barrier")
        if s + NS < nst:
            issue(s + NS)
    a("s_endpgm")
    a.label(f"{L}_comp")
    a("s_and_b32 s42, s40, 1")
    a("s_lshr_b32 s43, s40, 1")
    a("v_lshrrev_b32 v4, 1, v2")
    a("v_xor_b32 v4, v4, v3")
    a("v_and_b32 v5, 12, v2")
    a("v_lshlrev_b32 v5, 1, v5")
    a("v_and_b32 v6, 3, v2")
    a("v_or_b32 v5, v5, v6")
    vSA, vVA = 8, 16
    a(f"s_mul_i32 s44, s42, {80*128}")
    a(f"s_add_u32 s44, s44, {SB}")
    a(f"s_lshl_b32 s45, s43, 12")
    for j in range(2):
        a(f"v_xor_b32 v6, {4*j}, v4")
        a("v_lshlrev_b32 v6, 4, v6")
        a("v_lshl_add_u32 v7, v2, 7, v6")
        a("v_add_u32 v7, s44, v7")
        for sl in range(NS):
            a(f"v_add_u32 v{vSA+sl*2+j}, {sl*slotsz}, v7")
        a("v_lshl_add_u32 v7, v5, 7, v6")
        a(f"v_add_u32 v{vVA+j}, s45, v7")
        a(f"v_add_u32 v{vVA+2+j}, 0xa000, v{vVA+j}")
    vF = 24
    nfr = 7
    vR = vF + 2 * nfr * 4

    def frag_reads(s, j, buf):
        for vb in range(2):
            r = vF + (buf * nfr + 5 + vb) * 4
            hi = s >= 5
            off = (s - 5 * hi) * 8192 + vb * 512
            a(f"ds_read_b128 v[{r}:{r+3}], v{vVA+2*hi+j} offset:{off}")
        for b in range(5):
            r = vF + (buf * nfr + b) * 4
            a(f"ds_read_b128 v[{r}:{r+3}], v{vSA+(s%NS)*2+j} offset:{b*2048}")

    def mfmas(buf, first):
        for b in range(5):
            for vb in range(2):
                ar = (b * 2 + vb) * 4
                sf = vF + (buf * nfr + b) * 4
                vf = vF + (buf * nfr + 5 + vb) * 4
                c = "0" if first else f"a[{ar}:{ar+3}]"
                a(f"v_mfma_f32_16x16x32_bf16 a[{ar}:{ar+3}], v[{vf}:{vf+3}], v[{sf}:{sf+3}], {c}")

    a("s_waitcnt lgkmcnt(0)")
    a("s_barrier")
    frag_reads(0, 0, 0)
    step = 0
    for s in range(nst):
        for j in range(2):
            buf = step & 1
            if j == 0:
                frag_reads(s, 1, buf ^ 1)
                a(f"s_waitcnt lgkmcnt({nfr})")
            else:
                a("s_waitcnt lgkmcnt(0)")
                if s + 1 < nst:
                    a("s_barrier")
                    frag_reads(s + 1, 0, buf ^ 1)
            mfmas(buf, step == 0)
            step += 1
    a("s_nop 7")
    a("s_nop 7")
    a("s_mul_i32 s44, s42, 80")
    a("v_add_u32 v4, s44, v2")
    a("v_lshlrev_b32 v4, 12, v4")
    a("v_lshl_add_u32 v4, v3, 4, v4")
    a("s_lshl_b32 s46, s43, 6")
    a("v_add_u32 v4, s46, v4")
    for b in range(5):
        o = vR + b * 4
        for k in range(4):
            a(f"v_accvgpr_read_b32 v{vF}, a{b*8+2*k}")
            a(f"v_accvgpr_read_b32 v{vF+1}, a{b*8+2*k+1}")
            a(f"v_cvt_pk_bf16_f32 v{o+k}, v{vF}, v{vF+1}")
        a(f"s_mov_b32 s46, {b*16*4096}")
        a(f"buffer_store_dwordx4 v[{o}:{o+3}], v4, s[16:19], s46 offen")
    a.label(f"{L}_end")
    a("s_endpgm")
    return kernel_desc(L, 120 + 40, 64, 120), 163840


def fa_kernel(a):
    L = "gemma_kernel"
    NS = 4
    nst = 10
    SB = 81920
    slotsz = 160 * 128
    kernel_header(a, L)
    a("s_cmp_ge_u32 s2, 256")
    a(f"s_cbranch_scc1 {L}_end")
    a(f"s_load_dwordx4 s[48:51], s[0:1], {KA['dbg']}")
    a(f"s_load_dwordx4 s[52:55], s[0:1], {KA['hid_re']}")
    a(f"s_load_dwordx4 s[56:59], s[0:1], {KA['c']}")
    a(f"s_load_dwordx2 s[60:61], s[0:1], {KA['x']}")
    a("v_lshrrev_b32 v1, 6, v0")
    a("s_nop 0")
    a("v_readfirstlane_b32 s40, v1")
    a("v_and_b32 v1, 63, v0")
    a("v_and_b32 v2, 15, v1")
    a("v_lshrrev_b32 v3, 4, v1")
    a("s_and_b32 s3, s2, 7")
    a("s_lshr_b32 s4, s2, 3")
    a("s_and_b32 s5, s3, 1")
    a("s_lshl_b32 s5, s5, 2")
    a("s_and_b32 s6, s4, 3")
    a("s_add_u32 s5, s5, s6")
    a("s_lshr_b32 s6, s3, 1")
    a("s_lshl_b32 s6, s6, 3")
    a("s_lshr_b32 s7, s4, 2")
    a("s_add_u32 s6, s6, s7")
    a("s_mul_i32 s33, s3, 15")
    a("s_add_u32 s33, s33, s4")
    a("s_lshl_b32 s44, s40, 3")
    a("v_add_u32 v4, s44, v3")
    a("s_movk_i32 s45, 1280")
    a("v_mul_lo_u32 v5, v4, s45")
    a("v_lshl_add_u32 v5, v2, 4, v5")
    a("v_lshrrev_b32 v12, 2, v0")
    a("v_and_b32 v13, 3, v0")
    a("s_movk_i32 s45, 7680")
    a("v_mul_lo_u32 v14, v12, s45")
    a("v_lshl_add_u32 v14, v13, 4, v14")
    a("s_lshl_b32 s34, s33, 6")
    a("v_add_u32 v14, s34, v14")
    a("v_lshlrev_b32 v15, 1, v12")
    a("s_and_b32 s41, s40, 3")
    a("v_lshrrev_b32 v8, 3, v1")
    a("v_and_b32 v9, 7, v1")
    a("v_xor_b32 v9, v9, v3")
    a("s_and_b32 s44, s41, 1")
    a("s_lshl_b32 s44, s44, 2")
    a("v_xor_b32 v9, s44, v9")
    a("s_lshl_b32 s44, s41, 3")
    a("v_add_u32 v8, s44, v8")
    a("s_movk_i32 s45, 1280")
    a("v_mul_lo_u32 v8, v8, s45")
    a("v_lshl_add_u32 v8, v9, 4, v8")
    a("s_lshl_b32 s42, s41, 10")
    a(f"s_add_u32 s42, s42, {SB}")
    a("s_waitcnt lgkmcnt(0)")
    a("s_cmp_ge_u32 s5, 4")
    a("s_cselect_b32 s8, s54, s52")
    a("s_cselect_b32 s9, s55, s53")
    a(f"s_mov_b32 s10, {160*1280}")
    a("s_mov_b32 s11, 0x00020000")
    a("s_and_b32 s7, s5, 3")
    a(f"s_mul_i32 s7, s7, {160*1280}")
    srd_add(a, 8, 7)
    srd(a, 12, 60, 61, 64 * 1280)
    a(f"s_mul_i32 s7, s6, {64*1280}")
    srd_add(a, 12, 7)
    srd(a, 20, 50, 51, WS["modf"][1], WS["modf"][0])
    srd(a, 24, 58, 59, 640 * 3840 * 2)
    srd(a, 28, 56, 57, 640 * 2)
    srd(a, 64, 48, 49, 256)
    srd(a, 68, 50, 51, WS["mod"][1], WS["mod"][0])
    srd(a, 16, 50, 51, 160 * 4096, WS["abt"][0])
    a(f"s_mul_i32 s7, s5, {160*4096}")
    srd_add(a, 16, 7)
    a("s_lshl_b32 s7, s6, 7")
    srd_add(a, 16, 7)
    a("s_cmp_ge_u32 s2, 120")
    a(f"s_cbranch_scc1 {L}_nog1")
    for p in range(5):
        a(f"buffer_load_ushort v{76+p}, v15, s[28:31], 0 offen offset:{p*256}")
    for p in range(5):
        a(f"s_mov_b32 s45, {p*128*7680}")
        a(f"buffer_load_dwordx4 v[{56+4*p}:{59+4*p}], v14, s[24:27], s45 offen")
    a.label(f"{L}_nog1")
    a("s_movk_i32 s45, 5120")
    for rp in range(2):
        for k in range(5):
            r = 16 + (rp * 5 + k) * 4
            so = "s45" if rp else "0"
            a(f"buffer_load_dwordx4 v[{r}:{r+3}], v5, s[12:15], {so} offen offset:{k*256}")

    def issue(s):
        for t in range(5):
            a(f"s_add_u32 m0, s42, {(s % NS)*slotsz + t*4096}")
            a(f"s_mov_b32 s46, {s*128 + t*32*1280}")
            a("buffer_load_dwordx4 v8, s[8:11], s46 offen lds")
    a("s_cmp_lt_u32 s40, 4")
    a(f"s_cbranch_scc1 {L}_nold")
    for s in range(NS):
        issue(s)
    a.label(f"{L}_nold")

    def rolewait(nc, tag):
        a("s_cmp_lt_u32 s40, 4")
        a(f"s_cbranch_scc1 {L}_w{tag}a")
        a(f"s_waitcnt vmcnt({nc+20})")
        a(f"s_branch {L}_w{tag}b")
        a.label(f"{L}_w{tag}a")
        a(f"s_waitcnt vmcnt({nc})")
        a.label(f"{L}_w{tag}b")
    a("s_cmp_ge_u32 s2, 120")
    a(f"s_cbranch_scc1 {L}_nog2")
    rolewait(10, "g")
    A0 = 96
    for k in range(8):
        a(f"v_mov_b32 v{A0+k}, 0")
    a("s_mov_b32 s45, 0xbfb8aa3b")
    for p in range(5):
        a(f"v_lshlrev_b32 v{76+p}, 16, v{76+p}")
        a(f"v_mul_f32 v104, s45, v{76+p}")
        a("v_exp_f32 v104, v104")
        a("s_nop 0")
        a("v_add_f32 v104, 1.0, v104")
        a("v_rcp_f32 v104, v104")
        a("s_nop 0")
        a(f"v_mul_f32 v104, v{76+p}, v104")
        a("v_cvt_pk_bf16_f32 v104, v104, v104")
        a(f"v_lshlrev_b32 v{76+p}, 16, v104")
        for q in range(4):
            unpack(a, 104, 105, 56 + 4 * p + q)
            a(f"v_fmac_f32 v{A0+2*q}, v{76+p}, v104")
            a(f"v_fmac_f32 v{A0+1+2*q}, v{76+p}, v105")
    a("v_lshlrev_b32 v104, 7, v12")
    a("v_lshl_add_u32 v104, v13, 5, v104")
    a(f"ds_write_b128 v104, v[{A0}:{A0+3}]")
    a(f"ds_write_b128 v104, v[{A0+4}:{A0+7}] offset:16")
    a("s_waitcnt lgkmcnt(0)")
    a("s_barrier")
    a("v_and_b32 v105, 31, v0")
    a("v_lshrrev_b32 v106, 5, v0")
    a("v_lshlrev_b32 v104, 10, v106")
    a("v_lshl_add_u32 v104, v105, 2, v104")
    for i in range(8):
        a(f"ds_read_b32 v{A0+i}, v104 offset:{i*128}")
    a("s_waitcnt lgkmcnt(0)")
    for (x, y) in [(0, 1), (2, 3), (4, 5), (6, 7), (0, 2), (4, 6), (0, 4)]:
        a(f"v_add_f32 v{A0+x}, v{A0+x}, v{A0+y}")
    a("v_lshlrev_b32 v104, 2, v0")
    a(f"ds_write_b32 v104, v{A0} offset:16384")
    a("s_waitcnt lgkmcnt(0)")
    a("s_barrier")
    a("s_cmp_lg_u32 s40, 0")
    a(f"s_cbranch_scc1 {L}_nog2")
    a("v_lshrrev_b32 v106, 5, v1")
    a("v_lshlrev_b32 v104, 10, v106")
    a("v_lshl_add_u32 v104, v105, 2, v104")
    for i in range(8):
        a(f"ds_read_b32 v{A0+i}, v104 offset:{16384+i*128}")
    a("s_waitcnt lgkmcnt(0)")
    for (x, y) in [(0, 1), (2, 3), (4, 5), (6, 7), (0, 2), (4, 6), (0, 4)]:
        a(f"v_add_f32 v{A0+x}, v{A0+x}, v{A0+y}")
    a(f"v_mov_b32 v{A0+1}, v{A0}")
    a("s_nop 1")
    a(f"v_permlane32_swap_b32 v{A0}, v{A0+1}")
    a("s_nop 1")
    a(f"v_add_f32 v{A0}, v{A0}, v{A0+1}")
    a(f"v_cvt_pk_bf16_f32 v{A0+1}, v{A0}, v{A0}")
    a(f"v_lshlrev_b32 v{A0+2}, 16, v{A0+1}")
    a(f"v_add_f32 v{A0+3}, 1.0, v{A0+2}")
    a(f"v_cvt_pk_bf16_f32 v{A0+3}, v{A0+3}, v{A0+3}")
    a(f"v_lshlrev_b32 v{A0+3}, 16, v{A0+3}")
    a("s_mul_i32 s44, s33, 3277")
    a("s_lshr_b32 s44, s44, 16")
    a("s_cmp_eq_u32 s44, 1")
    a("s_cselect_b32 s45, 1, 0")
    a("s_cmp_eq_u32 s44, 4")
    a("s_cselect_b32 s45, 1, s45")
    a("s_cmp_eq_u32 s45, 1")
    a(f"s_cbranch_scc0 {L}_gnc")
    a(f"v_mov_b32 v{A0+2}, v{A0+3}")
    a.label(f"{L}_gnc")
    a("v_lshlrev_b32 v104, 1, v105")
    a("v_add_u32 v104, s34, v104")
    a("v_lshlrev_b32 v106, 1, v104")
    a("v_mov_b32 v107, 0")
    a("v_mov_b32 v108, 1")
    a("v_cmp_gt_u32 vcc, 32, v1")
    a("s_and_saveexec_b64 s[36:37], vcc")
    a(f"buffer_store_short v{A0+1}, v104, s[68:71], 0 offen")
    a(f"buffer_store_dword v{A0+2}, v106, s[20:23], 0 offen sc0 sc1")
    a("s_waitcnt vmcnt(0)")
    a("s_cmp_ge_u32 s33, 40")
    a(f"s_cbranch_scc1 {L}_gna")
    a("v_cmp_gt_u32 vcc, 1, v1")
    a("s_and_b64 exec, exec, vcc")
    a("buffer_atomic_add v108, v107, s[64:67], 0 offen")
    a.label(f"{L}_gna")
    a("s_mov_b64 exec, s[36:37]")
    a.label(f"{L}_nog2")
    rolewait(0, "x")
    X, T = 96, 136

    def red16(v, t):
        for mod_ in ["quad_perm:[1,0,3,2]", "quad_perm:[2,3,0,1]", "row_half_mirror", "row_mirror"]:
            a("s_nop 1")
            a(f"v_add_f32_dpp v{t}, v{v}, v{v} {mod_} row_mask:0xf bank_mask:0xf")
            v, t = t, v
    for rp in range(2):
        R = 16 + rp * 20
        for k in range(20):
            unpack(a, X + 2 * k, X + 2 * k + 1, R + k)
        s_, t_, m_, r_, u_, w_ = T, T + 1, T + 2, T + 3, T + 4, T + 5
        a(f"v_add_f32 v{s_}, v{X}, v{X+1}")
        a(f"v_add_f32 v{t_}, v{X+2}, v{X+3}")
        for k in range(4, 40, 2):
            a(f"v_add_f32 v{s_}, v{s_}, v{X+k}")
            a(f"v_add_f32 v{t_}, v{t_}, v{X+k+1}")
        a(f"v_add_f32 v{s_}, v{s_}, v{t_}")
        red16(s_, t_)
        a(f"v_mul_f32 v{m_}, 0x3acccccd, v{s_}")
        a(f"v_sub_f32 v{t_}, v{X}, v{m_}")
        a(f"v_mul_f32 v{s_}, v{t_}, v{t_}")
        a(f"v_sub_f32 v{t_}, v{X+1}, v{m_}")
        a(f"v_mul_f32 v{r_}, v{t_}, v{t_}")
        for k in range(2, 40, 2):
            a(f"v_sub_f32 v{t_}, v{X+k}, v{m_}")
            a(f"v_fmac_f32 v{s_}, v{t_}, v{t_}")
            a(f"v_sub_f32 v{u_}, v{X+k+1}, v{m_}")
            a(f"v_fmac_f32 v{r_}, v{u_}, v{u_}")
        a(f"v_add_f32 v{s_}, v{s_}, v{r_}")
        red16(s_, t_)
        a(f"v_mul_f32 v{s_}, 0x3acccccd, v{s_}")
        a(f"v_cvt_pk_bf16_f32 v{t_}, v{m_}, v{s_}")
        unpack(a, m_, s_, t_)
        a(f"v_add_f32 v{s_}, 0x3727c5ac, v{s_}")
        a(f"v_cvt_pk_bf16_f32 v{t_}, v{s_}, v{s_}")
        a(f"v_lshlrev_b32 v{s_}, 16, v{t_}")
        a(f"v_sqrt_f32 v{s_}, v{s_}")
        a("s_nop 0")
        a(f"v_cvt_pk_bf16_f32 v{t_}, v{s_}, v{s_}")
        a(f"v_lshlrev_b32 v{s_}, 16, v{t_}")
        a(f"v_rcp_f32 v{r_}, v{s_}")
        a("s_nop 0")
        for k in range(20):
            a(f"v_sub_f32 v{u_}, v{X+2*k}, v{m_}")
            a(f"v_sub_f32 v{w_}, v{X+2*k+1}, v{m_}")
            a(f"v_cvt_pk_bf16_f32 v{t_}, v{u_}, v{w_}")
            unpack(a, u_, w_, t_)
            a(f"v_mul_f32 v{u_}, v{u_}, v{r_}")
            a(f"v_mul_f32 v{w_}, v{w_}, v{r_}")
            a(f"v_cvt_pk_bf16_f32 v{R+k}, v{u_}, v{w_}")
    a("s_cmp_lg_u32 s40, 0")
    a(f"s_cbranch_scc1 {L}_nopoll")
    a("v_mov_b32 v107, 0")
    a("s_mov_b32 s44, 0")
    a.label(f"{L}_poll")
    a("buffer_load_dword v108, v107, s[64:67], 0 offen sc0 sc1")
    a("s_waitcnt vmcnt(0)")
    a("v_readfirstlane_b32 s45, v108")
    a("s_add_u32 s44, s44, 1")
    a("s_cmp_ge_u32 s45, 40")
    a(f"s_cbranch_scc1 {L}_polled")
    a("s_sleep 2")
    a("s_cmp_lt_u32 s44, 0x40000")
    a(f"s_cbranch_scc1 {L}_poll")
    a.label(f"{L}_polled")
    a("v_lshlrev_b32 v12, 4, v1")
    a("s_movk_i32 s45, 4096")
    for i in range(5):
        so = "s45" if i == 4 else "0"
        a(f"buffer_load_dwordx4 v[{X+4*i}:{X+4*i+3}], v12, s[20:23], {so} offen offset:{(i%4)*1024} sc0 sc1")
    a("s_waitcnt vmcnt(0)")
    for i in range(5):
        a(f"ds_write_b128 v12, v[{X+4*i}:{X+4*i+3}] offset:{i*1024}")
    a("s_waitcnt lgkmcnt(0)")
    a.label(f"{L}_nopoll")
    a("s_barrier")
    a("v_lshlrev_b32 v12, 5, v2")
    SA, C1 = 56, 96
    for k in range(5):
        for h in range(2):
            a(f"ds_read_b128 v[{SA+8*k+4*h}:{SA+8*k+4*h+3}], v12 offset:{k*512+h*16}")
            a(f"ds_read_b128 v[{C1+8*k+4*h}:{C1+8*k+4*h+3}], v12 offset:{2560+k*512+h*16}")
    a("v_lshrrev_b32 v10, 1, v3")
    a("s_and_b32 s44, s40, 3")
    a("s_lshl_b32 s44, s44, 1")
    a("v_or_b32 v10, s44, v10")
    a("v_and_b32 v11, 7, v2")
    a("v_xor_b32 v10, v10, v11")
    a("v_lshlrev_b32 v10, 4, v10")
    a("v_lshl_add_u32 v10, v4, 7, v10")
    a("v_lshrrev_b32 v11, 3, v2")
    a("v_lshl_add_u32 v10, v11, 13, v10")
    a("v_add_u32 v11, 0x8000, v10")
    a("s_waitcnt lgkmcnt(0)")
    a("s_barrier")
    for k in range(5):
        for rp in range(2):
            for q in range(4):
                r = 16 + (rp * 5 + k) * 4 + q
                c = 8 * k + 2 * q
                unpack(a, T, T + 1, r)
                a(f"v_mul_f32 v{T}, v{T}, v{C1+c}")
                a(f"v_mul_f32 v{T+1}, v{T+1}, v{C1+c+1}")
                a(f"v_cvt_pk_bf16_f32 v{T+2}, v{T}, v{T+1}")
                unpack(a, T, T + 1, T + 2)
                a(f"v_add_f32 v{T}, v{T}, v{SA+c}")
                a(f"v_add_f32 v{T+1}, v{T+1}, v{SA+c+1}")
                a(f"v_cvt_pk_bf16_f32 v{r}, v{T}, v{T+1}")
            r = 16 + (rp * 5 + k) * 4
            off = k * 16384 + rp * 512
            areg = 10
            if off >= 32768:
                off -= 32768
                areg = 11
            a(f"ds_write_b128 v{areg}, v[{r}:{r+3}] offset:{off}")
    a("s_cmp_lt_u32 s40, 4")
    a(f"s_cbranch_scc1 {L}_comp")
    a("s_waitcnt vmcnt(15) lgkmcnt(0)")
    a("s_barrier")
    for s in range(nst - 1):
        issued = min(nst, NS + s)
        a(f"s_waitcnt vmcnt({(issued - (s + 2)) * 5})")
        a("s_barrier")
        if s + NS < nst:
            issue(s + NS)
    a("s_endpgm")
    a.label(f"{L}_comp")
    a("s_and_b32 s42, s40, 1")
    a("s_lshr_b32 s43, s40, 1")
    a("v_lshrrev_b32 v4, 1, v2")
    a("v_xor_b32 v4, v4, v3")
    a("v_and_b32 v5, 12, v2")
    a("v_lshlrev_b32 v5, 1, v5")
    a("v_and_b32 v6, 3, v2")
    a("v_or_b32 v5, v5, v6")
    vSA, vVA = 60, 68
    a(f"s_mul_i32 s44, s42, {80*128}")
    a(f"s_add_u32 s44, s44, {SB}")
    a(f"s_lshl_b32 s45, s43, 12")
    for j in range(2):
        a(f"v_xor_b32 v6, {4*j}, v4")
        a("v_lshlrev_b32 v6, 4, v6")
        a("v_lshl_add_u32 v7, v2, 7, v6")
        a("v_add_u32 v7, s44, v7")
        for sl in range(NS):
            a(f"v_add_u32 v{vSA+sl*2+j}, {sl*slotsz}, v7")
        a("v_lshl_add_u32 v7, v5, 7, v6")
        a(f"v_add_u32 v{vVA+j}, s45, v7")
        a(f"v_add_u32 v{vVA+2+j}, 0xa000, v{vVA+j}")
    vF = 72
    nfr = 7
    vR = 16

    def frag_reads(s, j, buf):
        for vb in range(2):
            r = vF + (buf * nfr + 5 + vb) * 4
            hi = s >= 5
            off = (s - 5 * hi) * 8192 + vb * 512
            a(f"ds_read_b128 v[{r}:{r+3}], v{vVA+2*hi+j} offset:{off}")
        for b in range(5):
            r = vF + (buf * nfr + b) * 4
            a(f"ds_read_b128 v[{r}:{r+3}], v{vSA+(s%NS)*2+j} offset:{b*2048}")

    def mfmas(buf, first):
        for b in range(5):
            for vb in range(2):
                ar = (b * 2 + vb) * 4
                sf = vF + (buf * nfr + b) * 4
                vf = vF + (buf * nfr + 5 + vb) * 4
                c = "0" if first else f"a[{ar}:{ar+3}]"
                a(f"v_mfma_f32_16x16x32_bf16 a[{ar}:{ar+3}], v[{vf}:{vf+3}], v[{sf}:{sf+3}], {c}")

    a("s_waitcnt lgkmcnt(0)")
    a("s_barrier")
    frag_reads(0, 0, 0)
    step = 0
    for s in range(nst):
        for j in range(2):
            buf = step & 1
            if j == 0:
                frag_reads(s, 1, buf ^ 1)
                a(f"s_waitcnt lgkmcnt({nfr})")
            else:
                a("s_waitcnt lgkmcnt(0)")
                if s + 1 < nst:
                    a("s_barrier")
                    frag_reads(s + 1, 0, buf ^ 1)
            mfmas(buf, step == 0)
            step += 1
    a("s_nop 7")
    a("s_nop 7")
    a("s_mul_i32 s44, s42, 80")
    a("v_add_u32 v4, s44, v2")
    a("v_lshlrev_b32 v4, 12, v4")
    a("v_lshl_add_u32 v4, v3, 4, v4")
    a("s_lshl_b32 s46, s43, 6")
    a("v_add_u32 v4, s46, v4")
    for b in range(5):
        o = vR + b * 4
        for k in range(4):
            a(f"v_accvgpr_read_b32 v{vF}, a{b*8+2*k}")
            a(f"v_accvgpr_read_b32 v{vF+1}, a{b*8+2*k+1}")
            a(f"v_cvt_pk_bf16_f32 v{o+k}, v{vF}, v{vF+1}")
        a(f"s_mov_b32 s46, {b*16*4096}")
        a(f"buffer_store_dwordx4 v[{o}:{o+3}], v4, s[16:19], s46 offen")
    a.label(f"{L}_end")
    a("s_endpgm")
    return kernel_desc(L, 144 + 40, 80, 144), 163840


def load_ptrs(a, names):
    for k, nm in enumerate(names):
        a(f"s_load_dwordx2 s[{48+2*k}:{49+2*k}], s[0:1], {KA[nm]}")
    a("s_waitcnt lgkmcnt(0)")


def setup_A(a):
    load_ptrs(a, ["ws", "hid_re", "hid_im"])
    a("s_and_b32 s3, s2, 7")
    a("s_lshr_b32 s4, s2, 3")
    a("s_and_b32 s5, s3, 3")
    a("s_lshl_b32 s5, s5, 2")
    a("s_and_b32 s6, s4, 3")
    a("s_add_u32 s5, s5, s6")
    a("s_lshr_b32 s6, s3, 2")
    a("s_lshl_b32 s6, s6, 3")
    a("s_lshr_b32 s7, s4, 2")
    a("s_add_u32 s6, s6, s7")
    a("s_cmp_ge_u32 s5, 8")
    a("s_cselect_b32 s8, s52, s50")
    a("s_cselect_b32 s9, s53, s51")
    a(f"s_mov_b32 s10, {80*1280}")
    a("s_mov_b32 s11, 0x00020000")
    a("s_and_b32 s7, s5, 7")
    a(f"s_mul_i32 s7, s7, {80*1280}")
    srd_add(a, 8, 7)
    srd(a, 12, 48, 49, 128 * 1280, WS["h"][0])
    a(f"s_mul_i32 s7, s6, {128*1280}")
    srd_add(a, 12, 7)
    srd(a, 16, 48, 49, 80 * 4096, WS["abt"][0])
    a(f"s_mul_i32 s7, s5, {80*4096}")
    srd_add(a, 16, 7)
    a("s_lshl_b32 s7, s6, 8")
    srd_add(a, 16, 7)
    return 1280, 1280


def pre_A(a, vE):
    a(f"s_load_dwordx4 s[56:59], s[0:1], {KA['seq_re']}")
    a("s_and_b32 s36, s2, 127")
    a("s_lshl_b32 s36, s36, 16")
    a("s_lshl_b32 s37, s40, 14")
    a("s_add_u32 s36, s36, s37")
    a("v_lshlrev_b32 v4, 4, v1")
    a("v_add_u32 v4, s36, v4")
    a("s_waitcnt lgkmcnt(0)")
    a("s_cmp_ge_u32 s2, 128")
    a("s_cselect_b32 s60, s58, s56")
    a("s_cselect_b32 s61, s59, s57")
    a(f"s_mov_b32 s62, {2048*2048*2}")
    a("s_mov_b32 s63, 0x00020000")
    for i in range(16):
        a(f"s_mov_b32 s37, {(i//4)*4096}")
        a(f"buffer_load_dwordx4 v[{vE+4*(i&7)}:{vE+4*(i&7)+3}], v4, s[60:63], s37 offen offset:{(i%4)*1024}")
    return 16


def epi_A(a, vR, vF, vE, nsb):
    a("v_lshlrev_b32 v4, 12, v2")
    a("v_lshl_add_u32 v4, v3, 4, v4")
    a("s_lshl_b32 s46, s40, 6")
    a("v_add_u32 v4, s46, v4")
    for b in range(nsb):
        r = vR + b * 8
        o = vF + (b & 1) * 4
        for k in range(4):
            a(f"v_cvt_pk_bf16_f32 v{o+k}, v{r+2*k}, v{r+2*k+1}")
        a(f"s_mov_b32 s46, {b*16*4096}")
        a(f"buffer_store_dwordx4 v[{o}:{o+3}], v4, s[16:19], s46 offen")


def setup_B(a):
    load_ptrs(a, ["ws", "seq_re", "seq_im"])
    a("s_and_b32 s3, s2, 7")
    a("s_lshr_b32 s4, s2, 3")
    a("s_and_b32 s5, s3, 1")
    a("s_lshr_b32 s6, s3, 1")
    a("s_lshl_b32 s6, s6, 2")
    a("s_and_b32 s7, s4, 3")
    a("s_add_u32 s6, s6, s7")
    a("s_lshr_b32 s7, s4, 2")
    srd(a, 8, 48, 49, 80 * 4096, WS["abt"][0])
    a(f"s_mul_i32 s20, s5, {640*4096}")
    a(f"s_mul_i32 s21, s7, {80*4096}")
    a("s_add_u32 s20, s20, s21")
    srd_add(a, 8, 20)
    a("s_cmp_eq_u32 s5, 1")
    a("s_cselect_b32 s12, s52, s50")
    a("s_cselect_b32 s13, s53, s51")
    a(f"s_mov_b32 s14, {128*4096}")
    a("s_mov_b32 s15, 0x00020000")
    a(f"s_mul_i32 s20, s6, {128*4096}")
    srd_add(a, 12, 20)
    srd(a, 16, 48, 49, 128 * 1280, WS["y"][0])
    a(f"s_mul_i32 s20, s5, {2048*1280}")
    a(f"s_mul_i32 s21, s6, {128*1280}")
    a("s_add_u32 s20, s20, s21")
    a("s_mul_i32 s21, s7, 160")
    a("s_add_u32 s20, s20, s21")
    srd_add(a, 16, 20)
    return 4096, 4096


PFD = 13
XL = int(__import__('os').environ.get('XL', '1'))
RAMP1 = 1
STAMP = int(__import__('os').environ.get('STAMP', '0'))
STAMPK = [0]
TLBWARM = int(__import__('os').environ.get('TLBW', '0'))


PFMODE = int(__import__("os").environ.get("PFMODE", "3"))


def pre_B(a, vE):
    a("s_lshl_b32 s58, s7, 4")
    a("s_lshl_b32 s59, s40, 2")
    a("s_add_u32 s58, s58, s59")
    a("v_add_u32 v7, s58, v3")
    a("v_lshlrev_b32 v7, 12, v7")
    a("v_lshl_add_u32 v7, v2, 4, v7")
    if PFMODE == 1:
        for i in range(3, 16):
            a(f"buffer_load_dwordx4 v[{vE+4*(i&7)}:{vE+4*(i&7)+3}], v7, s[12:15], 0 offen offset:{i*256}")
    return 16


def stage_hook_B(a, s, vE):
    if PFMODE == 2 and s == 0:
        for i in range(3, 16):
            a(f"buffer_load_dwordx4 v[{vE+4*(i&7)}:{vE+4*(i&7)+3}], v7, s[12:15], 0 offen offset:{i*256}")
    if PFMODE == 3 and s < 4:
        for i in range(4 + 3 * s, min(16, 7 + 3 * s)):
            a(f"buffer_load_dwordx4 v[{vE+4*(i&7)}:{vE+4*(i&7)+3}], v7, s[12:15], 0 offen offset:{i*256}")


def make_epi_S(ldo, relu=False, resid=False):
    def epi(a, vR, vF, vE, nsb):
        a("s_lshl_b32 s46, s42, 5")
        a("v_add_u32 v4, s46, v2")
        a(f"s_movk_i32 s46, {ldo}")
        a("v_mul_lo_u32 v4, v4, s46")
        a("v_lshl_add_u32 v5, v3, 3, v4")
        a("v_lshl_add_u32 v4, v3, 4, v4")
        a(f"s_mov_b32 s47, {16*ldo}")
        if resid:
            pass
        cnt = 0
        for vb in range(2):
            so = "s47" if vb else "0"
            for p in range((nsb + 1) // 2):
                full = 2 * p + 1 < nsb
                nreg = 4 if full else 2
                o = vF + (cnt & 3) * 4
                cnt += 1
                xr = vE + 12 + vb * 10 + p * 4
                for k in range(nreg):
                    b = 2 * p + (k >> 1)
                    r = vR + (b * 2 + vb) * 4 + (k & 1) * 2
                    if relu:
                        a(f"v_max_f32 v{r}, 0, v{r}")
                        a(f"v_max_f32 v{r+1}, 0, v{r+1}")
                    a(f"v_cvt_pk_bf16_f32 v{o+k}, v{r}, v{r+1}")
                if resid:
                    t = vF + 24
                    for k in range(nreg):
                        unpack(a, t, t + 1, o + k)
                        unpack(a, t + 2, t + 3, vE + p * 4 + k)
                        a(f"v_mul_f32 v{t}, v{t}, v{t+2}")
                        a(f"v_mul_f32 v{t+1}, v{t+1}, v{t+3}")
                        a(f"v_cvt_pk_bf16_f32 v{t+4}, v{t}, v{t+1}")
                        unpack(a, t, t + 1, t + 4)
                        unpack(a, t + 2, t + 3, xr + k)
                        a(f"v_add_f32 v{t}, v{t}, v{t+2}")
                        a(f"v_add_f32 v{t+1}, v{t+1}, v{t+3}")
                        a(f"v_cvt_pk_bf16_f32 v{o+k}, v{t}, v{t+1}")
                a(f"buffer_store_dwordx{nreg} v[{o}:{o+nreg-1}], v{4 if full else 5}, s[16:19], {so} offen offset:{p*64}")
    return epi


def epi_D(a, vR, vF, vE, nsb):
    t = vF + 24
    for p in range(3):
        full = p < 2
        nreg = 4 if full else 2
        o = vF + p * 4
        for k in range(nreg):
            b = 2 * p + (k >> 1)
            r = vR + b * 4 + (k & 1) * 2
            a(f"v_cvt_pk_bf16_f32 v{o+k}, v{r}, v{r+1}")
            unpack(a, t, t + 1, o + k)
            unpack(a, t + 2, t + 3, vE + p * 4 + k)
            a(f"v_mul_f32 v{t}, v{t}, v{t+2}")
            a(f"v_mul_f32 v{t+1}, v{t+1}, v{t+3}")
            a(f"v_cvt_pk_bf16_f32 v{t+4}, v{t}, v{t+1}")
            unpack(a, t, t + 1, t + 4)
            unpack(a, t + 2, t + 3, vE + 12 + p * 4 + k)
            a(f"v_add_f32 v{t}, v{t}, v{t+2}")
            a(f"v_add_f32 v{t+1}, v{t+1}, v{t+3}")
            a(f"v_cvt_pk_bf16_f32 v{o+k}, v{t}, v{t+1}")
        a(f"buffer_store_dwordx{nreg} v[{o}:{o+nreg-1}], v{vE+24 if full else vE+25}, s[16:19], 0 offen offset:{p*64}")


def setup_C(a):
    load_ptrs(a, ["ws"])
    a("s_and_b32 s3, s2, 7")
    a("s_lshr_b32 s4, s2, 3")
    if XL:
        a("s_lshr_b32 s5, s4, 1")
        a("s_lshl_b32 s6, s3, 1")
        a("s_and_b32 s7, s4, 1")
        a("s_add_u32 s6, s6, s7")
    else:
        a("s_and_b32 s5, s3, 3")
        a("s_lshl_b32 s5, s5, 2")
        a("s_and_b32 s6, s4, 3")
        a("s_add_u32 s5, s5, s6")
        a("s_lshr_b32 s6, s3, 2")
        a("s_lshl_b32 s6, s6, 3")
        a("s_lshr_b32 s7, s4, 2")
        a("s_add_u32 s6, s6, s7")
    srd(a, 8, 48, 49, 96 * 1280, WS["w1t"][0])
    a(f"s_mul_i32 s20, s5, {96*1280}")
    srd_add(a, 8, 20)
    srd(a, 12, 48, 49, 128 * 1280, WS["h2"][0])
    a(f"s_mul_i32 s20, s6, {128*1280}")
    srd_add(a, 12, 20)
    srd(a, 16, 48, 49, 128 * 3072, WS["h1"][0])
    a(f"s_mul_i32 s20, s6, {128*3072}")
    a("s_mul_i32 s21, s5, 192")
    a("s_add_u32 s20, s20, s21")
    srd_add(a, 16, 20)
    return 1280, 1280


def setup_D(a):
    load_ptrs(a, ["ws", "out"])
    a("s_and_b32 s3, s2, 7")
    a("s_lshr_b32 s4, s2, 3")
    if XL:
        a("s_lshr_b32 s5, s4, 2")
        a("s_lshl_b32 s6, s3, 2")
        a("s_and_b32 s7, s4, 3")
        a("s_add_u32 s6, s6, s7")
    else:
        a("s_and_b32 s5, s3, 1")
        a("s_lshl_b32 s5, s5, 2")
        a("s_and_b32 s6, s4, 3")
        a("s_add_u32 s5, s5, s6")
        a("s_lshr_b32 s6, s3, 1")
        a("s_lshl_b32 s6, s6, 3")
        a("s_lshr_b32 s7, s4, 2")
        a("s_add_u32 s6, s6, s7")
    srd(a, 8, 48, 49, 80 * 3072, WS["w2t"][0])
    a(f"s_mul_i32 s20, s5, {80*3072}")
    srd_add(a, 8, 20)
    srd(a, 12, 48, 49, 64 * 3072, WS["h1"][0])
    a(f"s_mul_i32 s20, s6, {64*3072}")
    srd_add(a, 12, 20)
    a(f"s_mul_i32 s28, s6, {64*1280}")
    a("s_mul_i32 s29, s5, 160")
    a("s_add_u32 s30, s28, s29")
    srd(a, 16, 50, 51, 64 * 1280 - 0)
    srd_add(a, 16, 30)
    srd(a, 20, 48, 49, 64 * 1280, WS["x1"][0])
    srd_add(a, 20, 30)
    srd(a, 24, 48, 49, 160, WS["mod"][0] + 5 * 1280)
    srd_add(a, 24, 29)
    return 3072, 3072


def pre_epi_D(a, vE):
    a("v_lshlrev_b32 v4, 4, v3")
    a("v_lshlrev_b32 v5, 3, v3")
    a(f"buffer_load_dwordx4 v[{vE}:{vE+3}], v4, s[24:27], 0 offen")
    a(f"buffer_load_dwordx4 v[{vE+4}:{vE+7}], v4, s[24:27], 0 offen offset:64")
    a(f"buffer_load_dwordx2 v[{vE+8}:{vE+9}], v5, s[24:27], 0 offen offset:128")
    a("s_lshl_b32 s46, s42, 5")
    a("s_lshl_b32 s47, s43, 4")
    a("s_add_u32 s46, s46, s47")
    a("v_add_u32 v4, s46, v2")
    a("s_movk_i32 s46, 1280")
    a("v_mul_lo_u32 v4, v4, s46")
    a(f"v_lshl_add_u32 v{vE+25}, v3, 3, v4")
    a(f"v_lshl_add_u32 v{vE+24}, v3, 4, v4")
    r = vE + 12
    a(f"buffer_load_dwordx4 v[{r}:{r+3}], v{vE+24}, s[20:23], 0 offen")
    a(f"buffer_load_dwordx4 v[{r+4}:{r+7}], v{vE+24}, s[20:23], 0 offen offset:64")
    a(f"buffer_load_dwordx2 v[{r+8}:{r+9}], v{vE+25}, s[20:23], 0 offen offset:128")
    return 9


def main():
    a = Asm()
    descs = []
    launches = []
    FUSE = int(__import__("os").environ.get("FUSE", "0"))
    if not FUSE:
        descs.append(prep_kernel(a)); launches.append(("prep_kernel", PREP_WGS, 256, 10240))
    d, lds = fa_kernel(a) if FUSE else gemma2_kernel(a)
    descs.append(d); launches.append(("gemma_kernel", 256, 512, lds))
    d, lds = gemm_kernel(a, "gemmb_kernel", 2048, 80, 128, 128, True, 1, 3, setup_B, make_epi_S(1280), pre_epi=pre_B, stage_hook=stage_hook_B)
    descs.append(d); launches.append(("gemmb_kernel", 256, 512, lds))
    descs.append(ln_kernel(a, True)); launches.append(("ln2_kernel", LN2_WGS, 256, 10240))
    d, lds = gemm_kernel(a, "gemmc_kernel", 640, 96, 128, 64, True, 1, 5, setup_C, make_epi_S(3072, relu=True))
    descs.append(d); launches.append(("gemmc_kernel", 256, 512, lds))
    d, lds = gemm_kernel(a, "gemmd_kernel", 1536, 80, 64, 128, True, 2, 4, setup_D, epi_D,
                         pre_epi=pre_epi_D)
    descs.append(d); launches.append(("gemmd_kernel", 256, 512, lds))

    hdr = open(f"cdna_kernels/{NAME}.s.ref").read().split("\n")
    out = []
    for ln in hdr:
        if ln.startswith(";") and "@launch" not in ln and "Override" not in ln and "grid=ceil" not in ln:
            out.append(ln)
        elif not ln.startswith(";"):
            break
    for k, g, b, lds in launches:
        out.append(f"; @launch kernel={k} grid=({g},1,1) block=({b},1,1) lds={lds}")
    out.append('.amdgcn_target "amdgcn-amd-amdhsa--gfx950"')
    out.append(".text")
    txt = "\n".join(out) + "\n" + a.text()
    txt += '.section .rodata,"a"\n'
    for d in descs:
        txt += ".p2align 6\n" + d
    path = sys.argv[1] if len(sys.argv) > 1 else f"cdna_kernels/{NAME}.s"
    open(path, "w").write(txt)
    print("wrote", path, len(txt), "bytes")


if __name__ == "__main__":
    main()
```

```python
import sys

NAME = "adaLN_cond__spectral_fnet__dense_activation_relu__prompt"
S_LEN, D, DFF = 2048, 640, 1536

KA = dict(x=0, seq_re=8, seq_im=16, hid_re=24, hid_im=32, bx=40, w1=48, w2=56, c=64, wmod=72,
          out=80, dbg=88, ws=96)

def _al(x, a=0x10000):
    return (x + a - 1) // a * a
WS = {}
_o = 0
for nm, sz in [("mod", 3840 * 2), ("modf", 3840 * 4), ("w1t", DFF * D * 2), ("w2t", D * DFF * 2), ("h", S_LEN * D * 2),
               ("abt", 2 * D * S_LEN * 2), ("y", 2 * S_LEN * D * 2), ("x1", S_LEN * D * 2),
               ("h2", S_LEN * D * 2), ("h1", S_LEN * DFF * 2)]:
    WS[nm] = (_o, sz)
    _o = _al(_o + sz)


PREP_WGS = 152 + 256
LN2_WGS = 256 + 480
LN1_WGS = 256


class Asm:
    def __init__(self):
        self.lines = []

    def __call__(self, s):
        import re
        m = re.search(r"offset:(\d+)", s)
        if m and s.startswith("buffer_"):
            assert int(m.group(1)) <= 4095, s
        if m and s.startswith("ds_"):
            assert int(m.group(1)) <= 65535, s
        self.lines.append("    " + s)

    def label(self, s):
        self.lines.append(s + ":")

    def raw(self, s):
        self.lines.append(s)

    def text(self):
        return "\n".join(self.lines) + "\n"


def srd(a, sreg, base_lo, base_hi, nbytes, add=0):
    if add:
        a(f"s_add_u32 s{sreg}, s{base_lo}, {add}")
        a(f"s_addc_u32 s{sreg+1}, s{base_hi}, 0")
    else:
        a(f"s_mov_b32 s{sreg}, s{base_lo}")
        a(f"s_mov_b32 s{sreg+1}, s{base_hi}")
    a(f"s_mov_b32 s{sreg+2}, {nbytes}")
    a(f"s_mov_b32 s{sreg+3}, 0x00020000")


def srd_add(a, sreg, soff):
    a(f"s_add_u32 s{sreg}, s{sreg}, s{soff}")
    a(f"s_addc_u32 s{sreg+1}, s{sreg+1}, 0")


def kernel_header(a, label):
    a.raw(f".globl {label}")
    a.raw(".p2align 8")
    a.raw(f".type {label},@function")
    a.label(label)


def kernel_desc(label, nvgpr, nsgpr, accum):
    return f""".amdhsa_kernel {label}
  .amdhsa_next_free_vgpr {nvgpr}
  .amdhsa_next_free_sgpr {nsgpr}
  .amdhsa_accum_offset {accum}
  .amdhsa_group_segment_fixed_size 0
  .amdhsa_kernarg_size 104
  .amdhsa_user_sgpr_count 2
  .amdhsa_user_sgpr_kernarg_segment_ptr 1
  .amdhsa_system_sgpr_workgroup_id_x 1
  .amdhsa_float_denorm_mode_32 3
  .amdhsa_float_denorm_mode_16_64 3
.end_amdhsa_kernel
"""


def unpack(a, lo, hi, src):
    a(f"v_lshlrev_b32 v{lo}, 16, v{src}")
    a(f"v_and_b32 v{hi}, 0xffff0000, v{src}")


def transpose_body(a, L, base):
    a.label(f"{L}_tr")
    a(f"s_load_dwordx2 s[4:5], s[0:1], {KA['ws']}")
    a(f"s_load_dwordx4 s[28:31], s[0:1], {KA['w1']}")
    a(f"s_sub_u32 s6, s2, {base}")
    a("s_waitcnt lgkmcnt(0)")
    a("s_cmp_ge_u32 s6, 240")
    a(f"s_cbranch_scc1 {L}_tr2")
    a("s_mul_i32 s7, s6, 2731")
    a("s_lshr_b32 s7, s7, 16")
    a("s_mul_i32 s20, s7, 24")
    a("s_sub_u32 s20, s6, s20")
    srd(a, 8, 28, 29, 640 * 1536 * 2)
    srd(a, 12, 4, 5, WS["w1t"][1], WS["w1t"][0])
    a("s_movk_i32 s21, 3072")
    a("s_movk_i32 s22, 1280")
    a(f"s_branch {L}_trgo")
    a.label(f"{L}_tr2")
    a("s_sub_u32 s6, s6, 240")
    a("s_mul_i32 s7, s6, 6554")
    a("s_lshr_b32 s7, s7, 16")
    a("s_mul_i32 s20, s7, 10")
    a("s_sub_u32 s20, s6, s20")
    srd(a, 8, 30, 31, 640 * 1536 * 2)
    srd(a, 12, 4, 5, WS["w2t"][1], WS["w2t"][0])
    a("s_movk_i32 s21, 1280")
    a("s_movk_i32 s22, 3072")
    a.label(f"{L}_trgo")
    a("v_lshrrev_b32 v1, 3, v0")
    a("v_and_b32 v2, 7, v0")
    a("s_lshl_b32 s23, s7, 6")
    a("v_add_u32 v3, s23, v1")
    a("v_mul_lo_u32 v3, v3, s21")
    a("v_lshl_add_u32 v3, v2, 4, v3")
    a("s_lshl_b32 s24, s20, 7")
    a("v_add_u32 v3, s24, v3")
    a("s_lshl_b32 s25, s21, 5")
    a("buffer_load_dwordx4 v[8:11], v3, s[8:11], 0 offen")
    a("buffer_load_dwordx4 v[12:15], v3, s[8:11], s25 offen")
    a("s_movk_i32 s26, 1152")
    a("v_mul_lo_u32 v4, v2, s26")
    a("v_lshl_add_u32 v4, v1, 1, v4")
    a("s_waitcnt vmcnt(1)")
    for q in range(4):
        a(f"ds_write_b16 v4, v{8+q} offset:{(2*q)*144}")
        a(f"ds_write_b16_d16_hi v4, v{8+q} offset:{(2*q+1)*144}")
    a("s_waitcnt vmcnt(0)")
    for q in range(4):
        a(f"ds_write_b16 v4, v{12+q} offset:{(2*q)*144+64}")
        a(f"ds_write_b16_d16_hi v4, v{12+q} offset:{(2*q+1)*144+64}")
    a("s_waitcnt lgkmcnt(0)")
    a("s_barrier")
    a("s_movk_i32 s26, 144")
    a("v_mul_lo_u32 v5, v1, s26")
    a("v_lshl_add_u32 v5, v2, 4, v5")
    a("ds_read_b128 v[8:11], v5")
    a(f"ds_read_b128 v[12:15], v5 offset:{32*144}")
    a("s_lshl_b32 s23, s20, 6")
    a("v_add_u32 v6, s23, v1")
    a("v_mul_lo_u32 v6, v6, s22")
    a("v_lshl_add_u32 v6, v2, 4, v6")
    a("s_lshl_b32 s24, s7, 7")
    a("v_add_u32 v6, s24, v6")
    a("s_lshl_b32 s25, s22, 5")
    a("s_waitcnt lgkmcnt(1)")
    a("buffer_store_dwordx4 v[8:11], v6, s[12:15], 0 offen")
    a("s_waitcnt lgkmcnt(0)")
    a("buffer_store_dwordx4 v[12:15], v6, s[12:15], s25 offen")
    a(f"s_branch {L}_end")


def prep_kernel(a):
    L = "prep_kernel"
    kernel_header(a, L)
    a(f"s_cmp_ge_u32 s2, {PREP_WGS}")
    a(f"s_cbranch_scc1 {L}_end")
    a("s_cmp_ge_u32 s2, 152")
    a(f"s_cbranch_scc1 {L}_ln")
    a("s_cmp_ge_u32 s2, 146")
    a(f"s_cbranch_scc1 {L}_end")
    a("s_cmp_ge_u32 s2, 120")
    a(f"s_cbranch_scc1 {L}_pf")
    a(f"s_load_dwordx2 s[4:5], s[0:1], {KA['ws']}")
    a(f"s_load_dwordx4 s[32:35], s[0:1], {KA['c']}")
    a("s_waitcnt lgkmcnt(0)")
    a("s_and_b32 s6, s2, 7")
    a("s_mul_i32 s6, s6, 15")
    a("s_lshr_b32 s7, s2, 3")
    a("s_add_u32 s6, s6, s7")
    srd(a, 8, 34, 35, 640 * 3840 * 2)
    srd(a, 12, 32, 33, 640 * 2)
    srd(a, 16, 4, 5, WS["mod"][1], WS["mod"][0])
    a("v_lshrrev_b32 v1, 2, v0")
    a("v_and_b32 v2, 3, v0")
    a("s_movk_i32 s20, 7680")
    a("v_mul_lo_u32 v3, v1, s20")
    a("v_lshl_add_u32 v3, v2, 4, v3")
    a("s_lshl_b32 s21, s6, 6")
    a("v_add_u32 v3, s21, v3")
    a("v_lshlrev_b32 v4, 1, v1")
    for p in range(10):
        a(f"buffer_load_ushort v{10+p}, v4, s[12:15], 0 offen offset:{p*128}")
    for p in range(10):
        a(f"s_mov_b32 s22, {p*64*7680}")
        a(f"buffer_load_dwordx4 v[{20+4*p}:{23+4*p}], v3, s[8:11], s22 offen")
    for k in range(8):
        a(f"v_mov_b32 v{60+k}, 0")
    a("s_waitcnt vmcnt(10)")
    a("s_mov_b32 s23, 0xbfb8aa3b")
    for p in range(10):
        a(f"v_lshlrev_b32 v{10+p}, 16, v{10+p}")
        a(f"v_mul_f32 v70, s23, v{10+p}")
        a("v_exp_f32 v70, v70")
        a("s_nop 0")
        a("v_add_f32 v70, 1.0, v70")
        a("v_rcp_f32 v70, v70")
        a("s_nop 0")
        a(f"v_mul_f32 v70, v{10+p}, v70")
        a("v_cvt_pk_bf16_f32 v70, v70, v70")
        a(f"v_lshlrev_b32 v{10+p}, 16, v70")
    for p in range(10):
        a(f"s_waitcnt vmcnt({9-p})")
        for q in range(4):
            unpack(a, 70, 71, 20 + 4 * p + q)
            a(f"v_fmac_f32 v{60+2*q}, v{10+p}, v70")
            a(f"v_fmac_f32 v{61+2*q}, v{10+p}, v71")
    a("v_lshlrev_b32 v5, 7, v1")
    a("v_lshl_add_u32 v5, v2, 5, v5")
    a("ds_write_b128 v5, v[60:63]")
    a("ds_write_b128 v5, v[64:67] offset:16")
    a("s_waitcnt lgkmcnt(0)")
    a("s_barrier")
    a("v_and_b32 v6, 31, v0")
    a("v_lshrrev_b32 v7, 5, v0")
    a("v_lshlrev_b32 v8, 10, v7")
    a("v_lshl_add_u32 v8, v6, 2, v8")
    for i in range(8):
        a(f"ds_read_b32 v{20+i}, v8 offset:{i*128}")
    a("s_waitcnt lgkmcnt(0)")
    a("v_add_f32 v20, v20, v21")
    a("v_add_f32 v22, v22, v23")
    a("v_add_f32 v24, v24, v25")
    a("v_add_f32 v26, v26, v27")
    a("v_add_f32 v20, v20, v22")
    a("v_add_f32 v24, v24, v26")
    a("v_add_f32 v20, v20, v24")
    a("v_lshlrev_b32 v9, 2, v0")
    a("ds_write_b32 v9, v20 offset:8192")
    a("s_waitcnt lgkmcnt(0)")
    a("s_barrier")
    a("v_lshlrev_b32 v9, 2, v6")
    for i in range(8):
        a(f"ds_read_b32 v{20+i}, v9 offset:{8192+i*128}")
    a("s_waitcnt lgkmcnt(0)")
    a("v_add_f32 v20, v20, v21")
    a("v_add_f32 v22, v22, v23")
    a("v_add_f32 v24, v24, v25")
    a("v_add_f32 v26, v26, v27")
    a("v_add_f32 v20, v20, v22")
    a("v_add_f32 v24, v24, v26")
    a("v_add_f32 v20, v20, v24")
    a("v_cvt_pk_bf16_f32 v20, v20, v20")
    a("v_lshlrev_b32 v9, 1, v6")
    a("v_add_u32 v9, s21, v9")
    a("v_cmp_gt_u32 vcc, 32, v0")
    a("s_and_saveexec_b64 s[24:25], vcc")
    a(f"s_cbranch_execz {L}_end")
    a("buffer_store_short v20, v9, s[16:19], 0 offen")
    a(f"s_branch {L}_end")
    a.label(f"{L}_pf")
    a(f"s_load_dwordx8 s[28:35], s[0:1], {KA['seq_re']}")
    a("s_sub_u32 s6, s2, 120")
    a("s_waitcnt lgkmcnt(0)")
    a("s_mov_b32 s8, s32")
    a("s_mov_b32 s9, s33")
    a(f"s_mov_b32 s10, {640*640*2}")
    a("s_mov_b32 s11, 0x00020000")
    a("s_cmp_lt_u32 s6, 13")
    a(f"s_cbranch_scc1 {L}_pfgo")
    a("s_sub_u32 s6, s6, 13")
    a("s_mov_b32 s8, s34")
    a("s_mov_b32 s9, s35")
    a.label(f"{L}_pfgo")
    a("s_lshl_b32 s6, s6, 16")
    a("v_lshlrev_b32 v1, 4, v0")
    a("v_add_u32 v1, s6, v1")
    for i in range(16):
        a(f"s_mov_b32 s7, {i*4096}")
        a(f"buffer_load_dwordx4 v[{4+4*i}:{7+4*i}], v1, s[8:11], s7 offen")
    a(f"s_branch {L}_end")
    a.label(f"{L}_ln")
    a(f"s_load_dwordx2 s[4:5], s[0:1], {KA['ws']}")
    a(f"s_load_dwordx2 s[6:7], s[0:1], {KA['x']}")
    a("s_sub_u32 s3, s2, 152")
    if XL:
        a("s_and_b32 s20, s3, 7")
        a("s_lshl_b32 s20, s20, 5")
        a("s_lshr_b32 s3, s3, 3")
        a("s_add_u32 s3, s3, s20")
    a("v_lshrrev_b32 v1, 5, v0")
    a("s_lshl_b32 s3, s3, 3")
    a("v_add_u32 v1, s3, v1")
    a("v_and_b32 v2, 31, v0")
    a("v_lshlrev_b32 v2, 3, v2")
    a("s_movk_i32 s3, 1280")
    a("v_mul_lo_u32 v1, v1, s3")
    a("v_add_u32 v1, v1, v2")
    a("s_waitcnt lgkmcnt(0)")
    NB = S_LEN * D * 2
    srd(a, 8, 6, 7, NB)
    srd(a, 16, 4, 5, NB, WS["h"][0])
    for i in range(5):
        a(f"buffer_load_dwordx2 v[{10+2*i}:{11+2*i}], v1, s[8:11], 0 offen offset:{i*256}")
    a("s_waitcnt vmcnt(0)")
    for k in range(10):
        unpack(a, 20 + 2 * k, 21 + 2 * k, 10 + k)
    ln_core(a, 20, 0, 0, 40, 50, apply=False)
    for i in range(5):
        a(f"buffer_store_dwordx2 v[{40+2*i}:{41+2*i}], v1, s[16:19], 0 offen offset:{i*256}")
    a.label(f"{L}_end")
    a("s_endpgm")
    return kernel_desc(L, 72, 40, 72)


def reduce32(a, v, t):
    a("s_nop 1")
    a(f"v_add_f32_dpp v{t}, v{v}, v{v} quad_perm:[1,0,3,2] row_mask:0xf bank_mask:0xf")
    a("s_nop 1")
    a(f"v_add_f32_dpp v{v}, v{t}, v{t} quad_perm:[2,3,0,1] row_mask:0xf bank_mask:0xf")
    a("s_nop 1")
    a(f"v_add_f32_dpp v{t}, v{v}, v{v} row_half_mirror row_mask:0xf bank_mask:0xf")
    a("s_nop 1")
    a(f"v_add_f32_dpp v{v}, v{t}, v{t} row_mirror row_mask:0xf bank_mask:0xf")
    a(f"ds_swizzle_b32 v{t}, v{v} offset:0x401F")
    a("s_waitcnt lgkmcnt(0)")
    a(f"v_add_f32 v{v}, v{v}, v{t}")


def ln_core(a, X, C1, SH, OUT, T, apply=True):
    s, t, m, r = T, T + 1, T + 2, T + 3
    a(f"v_add_f32 v{s}, v{X}, v{X+1}")
    a(f"v_add_f32 v{t}, v{X+2}, v{X+3}")
    for k in range(4, 20, 2):
        a(f"v_add_f32 v{s}, v{s}, v{X+k}")
        a(f"v_add_f32 v{t}, v{t}, v{X+k+1}")
    a(f"v_add_f32 v{s}, v{s}, v{t}")
    reduce32(a, s, t)
    a(f"v_mul_f32 v{m}, 0x3acccccd, v{s}")
    a(f"v_sub_f32 v{t}, v{X}, v{m}")
    a(f"v_mul_f32 v{s}, v{t}, v{t}")
    a(f"v_sub_f32 v{t}, v{X+1}, v{m}")
    a(f"v_mul_f32 v{r}, v{t}, v{t}")
    for k in range(2, 20, 2):
        a(f"v_sub_f32 v{t}, v{X+k}, v{m}")
        a(f"v_fmac_f32 v{s}, v{t}, v{t}")
        a(f"v_sub_f32 v{t}, v{X+k+1}, v{m}")
        a(f"v_fmac_f32 v{r}, v{t}, v{t}")
    a(f"v_add_f32 v{s}, v{s}, v{r}")
    reduce32(a, s, t)
    a(f"v_mul_f32 v{s}, 0x3acccccd, v{s}")
    a(f"v_cvt_pk_bf16_f32 v{t}, v{m}, v{s}")
    unpack(a, m, s, t)
    a(f"v_add_f32 v{s}, 0x3727c5ac, v{s}")
    a(f"v_cvt_pk_bf16_f32 v{t}, v{s}, v{s}")
    a(f"v_lshlrev_b32 v{s}, 16, v{t}")
    a(f"v_sqrt_f32 v{s}, v{s}")
    a("s_nop 0")
    a(f"v_cvt_pk_bf16_f32 v{t}, v{s}, v{s}")
    a(f"v_lshlrev_b32 v{s}, 16, v{t}")
    a(f"v_rcp_f32 v{r}, v{s}")
    a("s_nop 0")
    u, w = T + 4, T + 5
    for k in range(0, 20, 2):
        a(f"v_sub_f32 v{u}, v{X+k}, v{m}")
        a(f"v_sub_f32 v{w}, v{X+k+1}, v{m}")
        a(f"v_cvt_pk_bf16_f32 v{t}, v{u}, v{w}")
        unpack(a, u, w, t)
        a(f"v_mul_f32 v{u}, v{u}, v{r}")
        a(f"v_mul_f32 v{w}, v{w}, v{r}")
        if not apply:
            a(f"v_cvt_pk_bf16_f32 v{OUT+k//2}, v{u}, v{w}")
            continue
        a(f"v_cvt_pk_bf16_f32 v{t}, v{u}, v{w}")
        unpack(a, u, w, t)
        a(f"v_mul_f32 v{u}, v{u}, v{C1+k}")
        a(f"v_mul_f32 v{w}, v{w}, v{C1+k+1}")
        a(f"v_cvt_pk_bf16_f32 v{t}, v{u}, v{w}")
        unpack(a, u, w, t)
        a(f"v_add_f32 v{u}, v{u}, v{SH+k}")
        a(f"v_add_f32 v{w}, v{w}, v{SH+k+1}")
        a(f"v_cvt_pk_bf16_f32 v{OUT+k//2}, v{u}, v{w}")


def ln_kernel(a, second):
    L = "ln2_kernel" if second else "ln1_kernel"
    kernel_header(a, L)
    if not second:
        a(f"s_cmp_ge_u32 s2, {LN1_WGS}")
        a(f"s_cbranch_scc1 {L}_end")
        a("s_cmp_lt_u32 s2, 256")
        a(f"s_cbranch_scc1 {L}_go")
        a(f"s_load_dwordx4 s[28:31], s[0:1], {KA['seq_re']}")
        a("s_sub_u32 s6, s2, 192")
        a("s_waitcnt lgkmcnt(0)")
        a("s_cmp_ge_u32 s6, 128")
        a("s_cselect_b32 s8, s30, s28")
        a("s_cselect_b32 s9, s31, s29")
        a(f"s_mov_b32 s10, {2048*2048*2}")
        a("s_mov_b32 s11, 0x00020000")
        a("s_and_b32 s6, s6, 127")
        a("s_lshl_b32 s6, s6, 16")
        a("v_lshlrev_b32 v1, 4, v0")
        a("v_add_u32 v1, s6, v1")
        for i in range(16):
            a(f"s_mov_b32 s7, {i*4096}")
            a(f"buffer_load_dwordx4 v[{4+4*i}:{7+4*i}], v1, s[8:11], s7 offen")
        a("s_endpgm")
        a.label(f"{L}_go")
    else:
        a(f"s_cmp_ge_u32 s2, {LN2_WGS}")
        a(f"s_cbranch_scc1 {L}_end")
        a("s_cmp_lt_u32 s2, 256")
        a(f"s_cbranch_scc1 {L}_go")
        transpose_body(a, L, 256)
        a.label(f"{L}_go")
    a(f"s_load_dwordx2 s[4:5], s[0:1], {KA['ws']}")
    a(f"s_load_dwordx2 s[6:7], s[0:1], {KA['x']}")
    a("s_waitcnt lgkmcnt(0)")
    NB = S_LEN * D * 2
    srd(a, 8, 6, 7, NB)
    srd(a, 12, 4, 5, WS["mod"][1], WS["mod"][0])
    srd(a, 16, 4, 5, NB, WS["h2" if second else "h"][0])
    if second:
        srd(a, 20, 4, 5, NB, WS["y"][0])
        srd(a, 24, 4, 5, NB, WS["y"][0] + NB)
        srd(a, 28, 4, 5, NB, WS["x1"][0])
    a("v_lshrrev_b32 v1, 5, v0")
    if XL:
        a("s_and_b32 s33, s2, 7")
        a("s_lshl_b32 s33, s33, 5")
        a("s_lshr_b32 s3, s2, 3")
        a("s_add_u32 s3, s3, s33")
        a("s_lshl_b32 s3, s3, 3")
    else:
        a("s_lshl_b32 s3, s2, 3")
    a("v_add_u32 v1, s3, v1")
    a("v_and_b32 v2, 31, v0")
    a("v_lshlrev_b32 v2, 3, v2")
    a("s_movk_i32 s3, 1280")
    a("v_mul_lo_u32 v1, v1, s3")
    a("v_add_u32 v1, v1, v2")
    for i in range(5):
        a(f"buffer_load_dwordx2 v[{10+2*i}:{11+2*i}], v1, s[8:11], 0 offen offset:{i*256}")
    if second:
        for i in range(5):
            a(f"buffer_load_dwordx2 v[{20+2*i}:{21+2*i}], v1, s[20:23], 0 offen offset:{i*256}")
        for i in range(5):
            a(f"buffer_load_dwordx2 v[{30+2*i}:{31+2*i}], v1, s[24:27], 0 offen offset:{i*256}")
        for i in range(5):
            a(f"buffer_load_dwordx2 v[{40+2*i}:{41+2*i}], v2, s[12:15], 0 offen offset:{2*1280+i*256}")
    coff = (4 if second else 1) * 1280
    soff = (3 if second else 0) * 1280
    a(f"s_movk_i32 s3, {coff}")
    for i in range(5):
        a(f"buffer_load_dwordx2 v[{50+2*i}:{51+2*i}], v2, s[12:15], s3 offen offset:{i*256}")
    a(f"s_movk_i32 s32, {soff}")
    for i in range(5):
        a(f"buffer_load_dwordx2 v[{60+2*i}:{61+2*i}], v2, s[12:15], s32 offen offset:{i*256}")
    X, C1, SH, OUT, T = 70, 90, 110, 130, 140
    if second:
        a("s_waitcnt vmcnt(10)")
        for k in range(10):
            unpack(a, T, T + 1, 20 + k)
            unpack(a, T + 2, T + 3, 30 + k)
            a(f"v_sub_f32 v{T}, v{T}, v{T+2}")
            a(f"v_sub_f32 v{T+1}, v{T+1}, v{T+3}")
            a(f"v_cvt_pk_bf16_f32 v{T+4}, v{T}, v{T+1}")
            unpack(a, T, T + 1, T + 4)
            unpack(a, T + 2, T + 3, 40 + k)
            a(f"v_mul_f32 v{T}, v{T}, v{T+2}")
            a(f"v_mul_f32 v{T+1}, v{T+1}, v{T+3}")
            a(f"v_cvt_pk_bf16_f32 v{T+4}, v{T}, v{T+1}")
            unpack(a, T, T + 1, T + 4)
            unpack(a, T + 2, T + 3, 10 + k)
            a(f"v_add_f32 v{T}, v{T}, v{T+2}")
            a(f"v_add_f32 v{T+1}, v{T+1}, v{T+3}")
            a(f"v_cvt_pk_bf16_f32 v{20+k}, v{T}, v{T+1}")
            unpack(a, X + 2 * k, X + 2 * k + 1, 20 + k)
        for i in range(5):
            a(f"buffer_store_dwordx2 v[{20+2*i}:{21+2*i}], v1, s[28:31], 0 offen offset:{i*256}")
        a("s_waitcnt vmcnt(5)")
    else:
        a("s_waitcnt vmcnt(10)")
        for k in range(10):
            unpack(a, X + 2 * k, X + 2 * k + 1, 10 + k)
        a("s_waitcnt vmcnt(0)")
    for k in range(10):
        unpack(a, T, T + 1, 50 + k)
        a(f"v_add_f32 v{T}, 1.0, v{T}")
        a(f"v_add_f32 v{T+1}, 1.0, v{T+1}")
        a(f"v_cvt_pk_bf16_f32 v{T+2}, v{T}, v{T+1}")
        unpack(a, C1 + 2 * k, C1 + 2 * k + 1, T + 2)
        unpack(a, SH + 2 * k, SH + 2 * k + 1, 60 + k)
    ln_core(a, X, C1, SH, OUT, T)
    for i in range(5):
        a(f"buffer_store_dwordx2 v[{OUT+2*i}:{OUT+1+2*i}], v1, s[16:19], 0 offen offset:{i*256}")
    a.label(f"{L}_end")
    a("s_endpgm")
    return kernel_desc(L, 152, 40, 152)


def rowmap(paired_ok, nb, b, i):
    if paired_ok and not (b == nb - 1 and nb % 2 == 1):
        return 32 * (b >> 1) + 8 * (i >> 2) + 4 * (b & 1) + (i & 3)
    return 16 * b + i


def fsw_row(paired_ok, nb, n):
    npair = (nb // 2) * 32 if paired_ok else 0
    if n < npair:
        return 2 * ((n >> 3) & 3) + ((n >> 1) & 1)
    return (n >> 1) & 7


def check_conflicts(paired_ok, nb):
    groups = [[0, 1, 2, 3, 12, 13, 14, 15] + list(range(20, 28)),
              list(range(4, 12)) + [16, 17, 18, 19, 28, 29, 30, 31]]
    groups += [[x + 32 for x in g] for g in groups]
    for b in range(nb):
        for j in range(2):
            for g in groups:
                qs = set()
                for l in g:
                    n = rowmap(paired_ok, nb, b, l & 15)
                    assert fsw_row(paired_ok, nb, n) == ((l & 15) >> 1)
                    addr = n * 128 + ((4 * j) ^ (l >> 4) ^ fsw_row(paired_ok, nb, n)) * 16
                    qs.add((addr // 16) % 16)
                assert len(qs) == 16, (paired_ok, nb, b, j)


def gemm_kernel(a, L, K, BS, BV, BK, ndimS, ksplit, nslot, setup, epilogue, pre_epi=None, nwg=256, stage_hook=None):
    nsb = BS // 16
    check_conflicts(ndimS, nsb)
    check_conflicts(not ndimS, 2)
    kernel_header(a, L)
    a(f"s_cmp_ge_u32 s2, {nwg}")
    a(f"s_cbranch_scc1 {L}_end")
    if STAMP:
        a("s_memtime s[96:97]")
    a("v_lshrrev_b32 v1, 6, v0")
    a("s_nop 0")
    a("v_readfirstlane_b32 s40, v1")
    a("v_and_b32 v1, 63, v0")
    a("v_and_b32 v2, 15, v1")
    a("v_lshrrev_b32 v3, 4, v1")
    ldS, ldV = setup(a)
    nsub = BK // 64
    nst = K // BK
    subS, subV = BS * 128, BV * 128
    slotsz = nsub * (subS + subV)
    NS = min(nslot, nst)
    chunks = [("S", u, r) for u in range(nsub) for r in range(BS // 8)] + \
             [("V", u, r) for u in range(nsub) for r in range(BV // 8)]
    nS = nsub * BS // 8
    assert nS % 4 == 0 and len(chunks) % 4 == 0
    nt = len(chunks) // 4

    def lds_off(op, u, r):
        return (u * subS + r * 1024) if op == "S" else (nsub * subS + u * subV + r * 1024)

    steps = [(u, j) for u in range(nsub) for j in range(2)] if ksplit == 1 else [(u, None) for u in range(nsub)]
    spw = len(steps)
    vDMA = 8
    nj = 2 if ksplit == 1 else 1
    nSA = 2 if (ndimS and nsb % 2 == 1) else 1
    vSA = 8
    vVA = vSA + NS * nSA * nj
    vT = max(vVA + NS * nj, vDMA + nt)
    vF = (vT + 4 + 3) // 4 * 4
    nfr = nsb + 2
    vR = vF + 2 * nfr * 4
    vE = vR + nsb * 8
    vTot = vE + (32 if pre_epi else 0) + (1 if STAMP else 0)
    accum = (vTot + 3) // 4 * 4
    nacc = nsb * 2 * 4
    assert accum + nacc <= 256
    sLO = 64
    a("s_cmp_lt_u32 s40, 4")
    a(f"s_cbranch_scc1 {L}_comp")
    a("s_sub_u32 s40, s40, 4")
    a("v_lshrrev_b32 v4, 3, v1")
    a("v_and_b32 v5, 7, v1")
    a("v_and_b32 v6, 1, v3")
    a("v_xor_b32 v6, v6, v5")
    a("v_xor_b32 v7, v3, v5")
    a(f"s_movk_i32 s46, {ldS}")
    a(f"v_mul_lo_u32 v{vT}, v4, s46")
    a(f"s_movk_i32 s46, {ldV}")
    a(f"v_mul_lo_u32 v{vT+1}, v4, s46")
    q = []

    def vm_wait_for(tag):
        last = -1
        for idx, t in enumerate(q):
            if t == tag:
                last = idx
        return min(len(q) - 1 - last, 63)

    def issue_one(s, t):
        op = chunks[4 * t][0]
        a(f"s_add_u32 m0, s{sLO+t}, {(s % NS)*slotsz}")
        a(f"s_movk_i32 s46, {s*BK*2}")
        sr = "s[8:11]" if op == "S" else "s[12:15]"
        a(f"buffer_load_dwordx4 v{vDMA+t}, {sr}, s46 offen lds")
        q.append(s)

    def issue(s):
        for t in range(nt):
            issue_one(s, t)

    def sel(dst, vals):
        if all(v == vals[0] + (vals[1] - vals[0]) * k for k, v in enumerate(vals)):
            if vals[1] == vals[0]:
                a(f"s_mov_b32 s{dst}, {vals[0]}")
            else:
                a(f"s_mul_i32 s{dst}, s40, {vals[1]-vals[0]}")
                if vals[0]:
                    a(f"s_add_u32 s{dst}, s{dst}, {vals[0]}")
        else:
            a(f"s_mov_b32 s{dst}, {vals[0]}")
            for w in range(1, 4):
                a(f"s_cmp_eq_u32 s40, {w}")
                a(f"s_cselect_b32 s{dst}, {vals[w]}, s{dst}")

    for t in range(nt):
        ops = [chunks[4 * t + w] for w in range(4)]
        op = ops[0][0]
        assert all(o[0] == op for o in ops)
        ld = ldS if op == "S" else ldV
        paired_ok = ndimS if op == "S" else (not ndimS)
        nb = nsb if op == "S" else 2
        npair = (nb // 2) * 32 if paired_ok else 0
        def is_paired(o):
            n = o[2] * 8
            if op == "V":
                n &= 31
            return n < npair
        pk = [is_paired(o) for o in ops]
        sx = [(2 * (o[2] & 3) if p else 4 * (o[2] & 1)) for o, p in zip(ops, pk)]
        for o, p, x in zip(ops, pk, sx):
            for lane in range(64):
                n = o[2] * 8 + (lane >> 3)
                nn = n & 31 if op == "V" else n
                f = fsw_row(paired_ok, nb, nn)
                lx = ((lane >> 4) & 1) if p else ((lane >> 4) & 3)
                assert f == (x ^ lx), (op, o, lane)
        sel(44, sx)
        sel(45, [o[2] * 8 * ld + o[1] * 128 for o in ops])
        sel(sLO + t, [lds_off(*o) for o in ops])
        if all(pk) or not any(pk):
            a(f"v_xor_b32 v{vT+2}, s44, v{6 if pk[0] else 7}")
        else:
            sel(47, [1 if p else 0 for p in pk])
            a("s_cmp_eq_u32 s47, 1")
            a("s_cselect_b64 vcc, -1, 0")
            a(f"v_cndmask_b32 v{vT+2}, v7, v6, vcc")
            a(f"v_xor_b32 v{vT+2}, s44, v{vT+2}")
        a(f"v_lshl_add_u32 v{vT+2}, v{vT+2}, 4, v{vT if op == 'S' else vT+1}")
        a(f"v_add_u32 v{vDMA+t}, s45, v{vT+2}")
        issue_one(0, t)
    if NS > 1:
        issue(1)
    a(f"s_waitcnt vmcnt({vm_wait_for(0)})")
    a("s_barrier")
    nxt = 2
    for s in range(nst - 1):
        cnt = 0
        while nxt < nst and nxt <= s + NS - 1 and cnt < 2:
            issue(nxt)
            nxt += 1
            cnt += 1
        a(f"s_waitcnt vmcnt({vm_wait_for(s+1)})")
        a("s_barrier")
    a("s_endpgm")
    a.label(f"{L}_comp")
    if ksplit == 2:
        a("s_and_b32 s42, s40, 1")
        a("s_lshr_b32 s43, s40, 1")
    else:
        a("s_mov_b32 s42, s40")
        a("s_mov_b32 s43, 0")
    a("v_lshrrev_b32 v4, 1, v2")
    a("v_xor_b32 v4, v4, v3")
    if ksplit == 2:
        a("s_lshl_b32 s46, s43, 2")
        a("v_xor_b32 v4, s46, v4")
    a("v_and_b32 v5, 12, v2")
    a("v_lshlrev_b32 v5, 1, v5")
    a("v_and_b32 v6, 3, v2")
    a("v_or_b32 v5, v5, v6")
    def addr_regs(dst_fn, rowreg, extra_sgpr=None):
        for j in range(nj):
            a(f"v_xor_b32 v6, {4*j}, v4")
            a(f"v_lshlrev_b32 v6, 4, v6")
            a(f"v_lshl_add_u32 v6, v{rowreg}, 7, v6")
            if extra_sgpr is not None:
                a(f"v_add_u32 v6, s{extra_sgpr}, v6")
            for sl in range(NS):
                a(f"v_add_u32 v{dst_fn(sl, j)}, {sl*slotsz}, v6")
    saddr = lambda kind, sl, j: vSA + (sl * nSA + kind) * nj + j
    vaddr = lambda sl, j: vVA + sl * nj + j
    addr_regs(lambda sl, j: saddr(0, sl, j), 5 if ndimS else 2)
    if nSA == 2:
        addr_regs(lambda sl, j: saddr(1, sl, j), 2)
    a(f"s_lshl_b32 s46, s42, 12")
    a(f"s_add_u32 s46, s46, {nsub*subS}")
    addr_regs(vaddr, 2 if ndimS else 5, 46)
    if pre_epi:
        pre_epi(a, vE)

    def frag_reads(s, k, buf):
        slot = s % NS
        u, j = steps[k]
        jj = j if j is not None else 0
        for vb in range(2):
            r = vF + (buf * nfr + nsb + vb) * 4
            off = u * subV + (rowmap(not ndimS, 2, vb, 0)) * 128
            a(f"ds_read_b128 v[{r}:{r+3}], v{vaddr(slot, jj)} offset:{off}")
        for b in range(nsb):
            r = vF + (buf * nfr + b) * 4
            left = ndimS and nsb % 2 == 1 and b == nsb - 1
            off = u * subS + rowmap(ndimS, nsb, b, 0) * 128
            a(f"ds_read_b128 v[{r}:{r+3}], v{saddr(1 if left else 0, slot, jj)} offset:{off}")

    def mfmas(buf, first):
        for b in range(nsb):
            for vb in range(2):
                ar = (b * 2 + vb) * 4
                sf = vF + (buf * nfr + b) * 4
                vf = vF + (buf * nfr + nsb + vb) * 4
                A, B = (sf, vf) if ndimS else (vf, sf)
                c = "0" if first else f"a[{ar}:{ar+3}]"
                a(f"v_mfma_f32_16x16x32_bf16 a[{ar}:{ar+3}], v[{A}:{A+3}], v[{B}:{B+3}], {c}")

    nstamp = [0]
    def stamp():
        if STAMP:
            a(f"s_memtime s[{100-2}:{100-1}]")
            a("s_waitcnt lgkmcnt(0)")
            a(f"v_writelane_b32 v{vST}, s98, {nstamp[0]}")
            nstamp[0] += 1
    vST = accum - 1
    step = 0
    if STAMP:
        a(f"v_writelane_b32 v{vST}, s96, 63")
    stamp()
    a("s_barrier")
    stamp()
    frag_reads(0, 0, 0)
    for s in range(nst):
        if stage_hook:
            stage_hook(a, s, vE)
        for k in range(spw):
            buf = step & 1
            last = k == spw - 1
            if not last:
                frag_reads(s, k + 1, buf ^ 1)
                a(f"s_waitcnt lgkmcnt({nfr})")
            else:
                a("s_waitcnt lgkmcnt(0)")
                if s + 1 < nst:
                    a("s_barrier")
                    stamp()
                    frag_reads(s + 1, 0, buf ^ 1)
            mfmas(buf, step == 0)
            step += 1
    a("s_nop 7")
    a("s_nop 7")
    stamp()
    if ksplit == 2:
        a("s_barrier")
        a("v_lshlrev_b32 v4, 4, v1")
        a(f"s_mul_i32 s46, s40, {nsb*1024}")
        a("v_add_u32 v5, s46, v4")
        a("s_xor_b32 s47, s40, 2")
        a(f"s_mul_i32 s46, s47, {nsb*1024}")
        a("v_add_u32 v4, s46, v4")
        a("s_cmp_eq_u32 s43, 0")
        a(f"s_cbranch_scc1 {L}_k0")
        for b in range(nsb):
            k = b * 2
            a(f"ds_write_b128 v5, a[{4*k}:{4*k+3}] offset:{b*1024}")
        for b in range(nsb):
            for r in range(4):
                a(f"v_accvgpr_read_b32 v{vR+b*4+r}, a{(b*2+1)*4+r}")
        a(f"s_branch {L}_k1")
        a.label(f"{L}_k0")
        for b in range(nsb):
            k = b * 2 + 1
            a(f"ds_write_b128 v5, a[{4*k}:{4*k+3}] offset:{b*1024}")
        for b in range(nsb):
            for r in range(4):
                a(f"v_accvgpr_read_b32 v{vR+b*4+r}, a{(b*2)*4+r}")
        a.label(f"{L}_k1")
        a("s_waitcnt lgkmcnt(0)")
        a("s_barrier")
        for b in range(nsb):
            a(f"ds_read_b128 v[{vF+4*b}:{vF+4*b+3}], v4 offset:{b*1024}")
        a("s_waitcnt lgkmcnt(0)")
        for k in range(nsb * 4):
            a(f"v_add_f32 v{vR+k}, v{vR+k}, v{vF+k}")
    else:
        for k in range(nsb * 2 * 4):
            a(f"v_accvgpr_read_b32 v{vR+k}, a{k}")
    a("s_waitcnt vmcnt(0)")
    epilogue(a, vR, vF, vE, nsb)
    if STAMP:
        stamp()
        a("s_waitcnt vmcnt(0)")
        stamp()
        srd(a, 92, 48, 49, 1 << 20, (200 << 20) + STAMPK[0] * (1 << 20))
        STAMPK[0] += 1
        a("s_lshl_b32 s46, s2, 10")
        a("s_lshl_b32 s47, s40, 8")
        a("s_add_u32 s46, s46, s47")
        a("v_lshlrev_b32 v4, 2, v1")
        a(f"buffer_store_dword v{vST}, v4, s[92:95], s46 offen")
    a.label(f"{L}_end")
    a("s_endpgm")
    lds = max(NS * slotsz, (4 * nsb * 1024) if ksplit == 2 else 0)
    assert lds <= 163840, lds
    return kernel_desc(L, accum + nacc, 102, accum), lds


def gemma2_kernel(a):
    L = "gemma_kernel"
    K, NS = 640, 4
    nst = 10
    VB = 0
    SB = 81920
    slotsz = 160 * 128
    kernel_header(a, L)
    a("s_cmp_ge_u32 s2, 256")
    a(f"s_cbranch_scc1 {L}_end")
    a(f"s_load_dwordx2 s[48:49], s[0:1], {KA['ws']}")
    a(f"s_load_dwordx4 s[52:55], s[0:1], {KA['hid_re']}")
    a("v_lshrrev_b32 v1, 6, v0")
    a("s_nop 0")
    a("v_readfirstlane_b32 s40, v1")
    a("v_and_b32 v1, 63, v0")
    a("v_and_b32 v2, 15, v1")
    a("v_lshrrev_b32 v3, 4, v1")
    a("s_and_b32 s3, s2, 7")
    a("s_lshr_b32 s4, s2, 3")
    if XL and XA:
        a("s_lshr_b32 s5, s4, 2")
        a("s_lshl_b32 s6, s3, 2")
        a("s_and_b32 s7, s4, 3")
        a("s_add_u32 s6, s6, s7")
    else:
        a("s_and_b32 s5, s3, 1")
        a("s_lshl_b32 s5, s5, 2")
        a("s_and_b32 s6, s4, 3")
        a("s_add_u32 s5, s5, s6")
        a("s_lshr_b32 s6, s3, 1")
        a("s_lshl_b32 s6, s6, 3")
        a("s_lshr_b32 s7, s4, 2")
        a("s_add_u32 s6, s6, s7")
    a("s_lshl_b32 s44, s40, 3")
    a("v_add_u32 v4, s44, v3")
    a("s_movk_i32 s45, 1280")
    a("v_mul_lo_u32 v5, v4, s45")
    a("v_lshl_add_u32 v5, v2, 4, v5")
    a("v_lshlrev_b32 v6, 4, v2")
    a("s_waitcnt lgkmcnt(0)")
    a("s_cmp_ge_u32 s5, 4")
    a("s_cselect_b32 s8, s54, s52")
    a("s_cselect_b32 s9, s55, s53")
    a(f"s_mov_b32 s10, {160*1280}")
    a("s_mov_b32 s11, 0x00020000")
    a("s_and_b32 s7, s5, 3")
    a(f"s_mul_i32 s7, s7, {160*1280}")
    srd_add(a, 8, 7)
    srd(a, 12, 48, 49, 64 * 1280, WS["h"][0])
    a(f"s_mul_i32 s7, s6, {64*1280}")
    srd_add(a, 12, 7)
    srd(a, 20, 48, 49, WS["mod"][1], WS["mod"][0])
    a("s_movk_i32 s45, 5120")
    for rp in range(2):
        for k in range(5):
            r = 16 + (rp * 5 + k) * 4
            so = "s45" if rp else "0"
            a(f"buffer_load_dwordx4 v[{r}:{r+3}], v5, s[12:15], {so} offen offset:{k*256}")
    for k in range(5):
        a(f"buffer_load_dwordx4 v[{56+4*k}:{59+4*k}], v6, s[20:23], 0 offen offset:{1280+k*256}")
    for k in range(5):
        a(f"buffer_load_dwordx4 v[{76+4*k}:{79+4*k}], v6, s[20:23], 0 offen offset:{k*256}")
    if TLBWARM:
        a(f"s_load_dwordx4 s[56:59], s[0:1], {KA['seq_re']}")
        a("s_lshr_b32 s36, s3, 1")
        a("s_lshl_b32 s36, s36, 9")
        a("s_lshl_b32 s37, s4, 4")
        a("s_add_u32 s36, s36, s37")
        a("v_add_u32 v12, s36, v2")
        a("v_lshlrev_b32 v12, 12, v12")
        a("s_waitcnt lgkmcnt(0)")
        a("s_and_b32 s37, s3, 1")
        a("s_cmp_eq_u32 s37, 1")
        a("s_cselect_b32 s60, s58, s56")
        a("s_cselect_b32 s61, s59, s57")
        a(f"s_mov_b32 s62, {2048*2048*2}")
        a("s_mov_b32 s63, 0x00020000")
        a("buffer_load_dword v13, v12, s[60:63], 0 offen")
    srd(a, 16, 48, 49, 160 * 4096, WS["abt"][0])
    a(f"s_mul_i32 s7, s5, {160*4096}")
    srd_add(a, 16, 7)
    a("s_lshl_b32 s7, s6, 7")
    srd_add(a, 16, 7)
    a("s_and_b32 s41, s40, 3")
    a("v_lshrrev_b32 v8, 3, v1")
    a("v_and_b32 v9, 7, v1")
    a("v_xor_b32 v9, v9, v3")
    a("s_and_b32 s44, s41, 1")
    a("s_lshl_b32 s44, s44, 2")
    a("v_xor_b32 v9, s44, v9")
    a("s_lshl_b32 s44, s41, 3")
    a("v_add_u32 v8, s44, v8")
    a("s_movk_i32 s45, 1280")
    a("v_mul_lo_u32 v8, v8, s45")
    a("v_lshl_add_u32 v8, v9, 4, v8")
    a("s_lshl_b32 s42, s41, 10")
    a(f"s_add_u32 s42, s42, {SB}")
    a("s_cmp_lt_u32 s40, 4")
    a(f"s_cbranch_scc1 {L}_p0")

    def issue(s):
        for t in range(5):
            a(f"s_add_u32 m0, s42, {(s % NS)*slotsz + t*4096}")
            a(f"s_mov_b32 s46, {s*128 + t*32*1280}")
            a("buffer_load_dwordx4 v8, s[8:11], s46 offen lds")
    for s in range(NS):
        issue(s)
    a("s_waitcnt vmcnt(20)")
    a(f"s_branch {L}_p0b")
    a.label(f"{L}_p0")
    a("s_waitcnt vmcnt(0)")
    a.label(f"{L}_p0b")
    a("v_lshrrev_b32 v10, 1, v3")
    a("s_and_b32 s44, s40, 3")
    a("s_lshl_b32 s44, s44, 1")
    a("v_or_b32 v10, s44, v10")
    a("v_and_b32 v11, 7, v2")
    a("v_xor_b32 v10, v10, v11")
    a("v_lshlrev_b32 v10, 4, v10")
    a("v_lshl_add_u32 v10, v4, 7, v10")
    a("v_lshrrev_b32 v11, 3, v2")
    a("v_lshl_add_u32 v10, v11, 13, v10")
    a("v_add_u32 v11, 0x8000, v10")
    T = 96
    for k in range(5):
        for q in range(4):
            unpack(a, T, T + 1, 56 + 4 * k + q)
            a(f"v_add_f32 v{T}, 1.0, v{T}")
            a(f"v_add_f32 v{T+1}, 1.0, v{T+1}")
            a(f"v_cvt_pk_bf16_f32 v{T+6}, v{T}, v{T+1}")
            unpack(a, T, T + 1, T + 6)
            unpack(a, T + 2, T + 3, 76 + 4 * k + q)
            for rp in range(2):
                r = 16 + (rp * 5 + k) * 4 + q
                unpack(a, T + 4, T + 5, r)
                a(f"v_mul_f32 v{T+4}, v{T+4}, v{T}")
                a(f"v_mul_f32 v{T+5}, v{T+5}, v{T+1}")
                a(f"v_cvt_pk_bf16_f32 v{T+6}, v{T+4}, v{T+5}")
                unpack(a, T + 4, T + 5, T + 6)
                a(f"v_add_f32 v{T+4}, v{T+4}, v{T+2}")
                a(f"v_add_f32 v{T+5}, v{T+5}, v{T+3}")
                a(f"v_cvt_pk_bf16_f32 v{r}, v{T+4}, v{T+5}")
        for rp in range(2):
            r = 16 + (rp * 5 + k) * 4
            off = k * 16384 + rp * 512
            areg = 10
            if off >= 32768:
                off -= 32768
                areg = 11
            a(f"ds_write_b128 v{areg}, v[{r}:{r+3}] offset:{off}")
    a("s_cmp_lt_u32 s40, 4")
    a(f"s_cbranch_scc1 {L}_comp")
    a("s_waitcnt vmcnt(15) lgkmcnt(0)")
    a("s_barrier")
    for s in range(nst - 1):
        out = min(NS - 1, nst - 2 - s) - 0
        issued = min(nst, NS + s)
        a(f"s_waitcnt vmcnt({(issued - (s + 2)) * 5})")
        a("s_barrier")
        if s + NS < nst:
            issue(s + NS)
    a("s_endpgm")
    a.label(f"{L}_comp")
    a("s_and_b32 s42, s40, 1")
    a("s_lshr_b32 s43, s40, 1")
    a("v_lshrrev_b32 v4, 1, v2")
    a("v_xor_b32 v4, v4, v3")
    a("v_and_b32 v5, 12, v2")
    a("v_lshlrev_b32 v5, 1, v5")
    a("v_and_b32 v6, 3, v2")
    a("v_or_b32 v5, v5, v6")
    vSA, vVA = 8, 16
    a(f"s_mul_i32 s44, s42, {80*128}")
    a(f"s_add_u32 s44, s44, {SB}")
    a(f"s_lshl_b32 s45, s43, 12")
    for j in range(2):
        a(f"v_xor_b32 v6, {4*j}, v4")
        a("v_lshlrev_b32 v6, 4, v6")
        a("v_lshl_add_u32 v7, v2, 7, v6")
        a("v_add_u32 v7, s44, v7")
        for sl in range(NS):
            a(f"v_add_u32 v{vSA+sl*2+j}, {sl*slotsz}, v7")
        a("v_lshl_add_u32 v7, v5, 7, v6")
        a(f"v_add_u32 v{vVA+j}, s45, v7")
        a(f"v_add_u32 v{vVA+2+j}, 0xa000, v{vVA+j}")
    vF = 24
    nfr = 7
    vR = vF + 2 * nfr * 4

    def frag_reads(s, j, buf):
        for vb in range(2):
            r = vF + (buf * nfr + 5 + vb) * 4
            hi = s >= 5
            off = (s - 5 * hi) * 8192 + vb * 512
            a(f"ds_read_b128 v[{r}:{r+3}], v{vVA+2*hi+j} offset:{off}")
        for b in range(5):
            r = vF + (buf * nfr + b) * 4
            a(f"ds_read_b128 v[{r}:{r+3}], v{vSA+(s%NS)*2+j} offset:{b*2048}")

    def mfmas(buf, first):
        for b in range(5):
            for vb in range(2):
                ar = (b * 2 + vb) * 4
                sf = vF + (buf * nfr + b) * 4
                vf = vF + (buf * nfr + 5 + vb) * 4
                c = "0" if first else f"a[{ar}:{ar+3}]"
                a(f"v_mfma_f32_16x16x32_bf16 a[{ar}:{ar+3}], v[{vf}:{vf+3}], v[{sf}:{sf+3}], {c}")

    a("s_waitcnt lgkmcnt(0)")
    a("s_barrier")
    frag_reads(0, 0, 0)
    step = 0
    for s in range(nst):
        for j in range(2):
            buf = step & 1
            if j == 0:
                frag_reads(s, 1, buf ^ 1)
                a(f"s_waitcnt lgkmcnt({nfr})")
            else:
                a("s_waitcnt lgkmcnt(0)")
                if s + 1 < nst:
                    a("s_barrier")
                    frag_reads(s + 1, 0, buf ^ 1)
            mfmas(buf, step == 0)
            step += 1
    a("s_nop 7")
    a("s_nop 7")
    a("s_mul_i32 s44, s42, 80")
    a("v_add_u32 v4, s44, v2")
    a("v_lshlrev_b32 v4, 12, v4")
    a("v_lshl_add_u32 v4, v3, 4, v4")
    a("s_lshl_b32 s46, s43, 6")
    a("v_add_u32 v4, s46, v4")
    for b in range(5):
        o = vR + b * 4
        for k in range(4):
            a(f"v_accvgpr_read_b32 v{vF}, a{b*8+2*k}")
            a(f"v_accvgpr_read_b32 v{vF+1}, a{b*8+2*k+1}")
            a(f"v_cvt_pk_bf16_f32 v{o+k}, v{vF}, v{vF+1}")
        a(f"s_mov_b32 s46, {b*16*4096}")
        a(f"buffer_store_dwordx4 v[{o}:{o+3}], v4, s[16:19], s46 offen")
    a.label(f"{L}_end")
    a("s_endpgm")
    return kernel_desc(L, 120 + 40, 64, 120), 163840


def fa_kernel(a):
    L = "gemma_kernel"
    NS = 4
    nst = 10
    SB = 81920
    slotsz = 160 * 128
    kernel_header(a, L)
    a("s_cmp_ge_u32 s2, 256")
    a(f"s_cbranch_scc1 {L}_end")
    a(f"s_load_dwordx4 s[48:51], s[0:1], {KA['dbg']}")
    a(f"s_load_dwordx4 s[52:55], s[0:1], {KA['hid_re']}")
    a(f"s_load_dwordx4 s[56:59], s[0:1], {KA['c']}")
    a(f"s_load_dwordx2 s[60:61], s[0:1], {KA['x']}")
    a("v_lshrrev_b32 v1, 6, v0")
    a("s_nop 0")
    a("v_readfirstlane_b32 s40, v1")
    a("v_and_b32 v1, 63, v0")
    a("v_and_b32 v2, 15, v1")
    a("v_lshrrev_b32 v3, 4, v1")
    a("s_and_b32 s3, s2, 7")
    a("s_lshr_b32 s4, s2, 3")
    a("s_and_b32 s5, s3, 1")
    a("s_lshl_b32 s5, s5, 2")
    a("s_and_b32 s6, s4, 3")
    a("s_add_u32 s5, s5, s6")
    a("s_lshr_b32 s6, s3, 1")
    a("s_lshl_b32 s6, s6, 3")
    a("s_lshr_b32 s7, s4, 2")
    a("s_add_u32 s6, s6, s7")
    a("s_mul_i32 s33, s3, 15")
    a("s_add_u32 s33, s33, s4")
    a("s_lshl_b32 s44, s40, 3")
    a("v_add_u32 v4, s44, v3")
    a("s_movk_i32 s45, 1280")
    a("v_mul_lo_u32 v5, v4, s45")
    a("v_lshl_add_u32 v5, v2, 4, v5")
    a("v_lshrrev_b32 v12, 2, v0")
    a("v_and_b32 v13, 3, v0")
    a("s_movk_i32 s45, 7680")
    a("v_mul_lo_u32 v14, v12, s45")
    a("v_lshl_add_u32 v14, v13, 4, v14")
    a("s_lshl_b32 s34, s33, 6")
    a("v_add_u32 v14, s34, v14")
    a("v_lshlrev_b32 v15, 1, v12")
    a("s_and_b32 s41, s40, 3")
    a("v_lshrrev_b32 v8, 3, v1")
    a("v_and_b32 v9, 7, v1")
    a("v_xor_b32 v9, v9, v3")
    a("s_and_b32 s44, s41, 1")
    a("s_lshl_b32 s44, s44, 2")
    a("v_xor_b32 v9, s44, v9")
    a("s_lshl_b32 s44, s41, 3")
    a("v_add_u32 v8, s44, v8")
    a("s_movk_i32 s45, 1280")
    a("v_mul_lo_u32 v8, v8, s45")
    a("v_lshl_add_u32 v8, v9, 4, v8")
    a("s_lshl_b32 s42, s41, 10")
    a(f"s_add_u32 s42, s42, {SB}")
    a("s_waitcnt lgkmcnt(0)")
    a("s_cmp_ge_u32 s5, 4")
    a("s_cselect_b32 s8, s54, s52")
    a("s_cselect_b32 s9, s55, s53")
    a(f"s_mov_b32 s10, {160*1280}")
    a("s_mov_b32 s11, 0x00020000")
    a("s_and_b32 s7, s5, 3")
    a(f"s_mul_i32 s7, s7, {160*1280}")
    srd_add(a, 8, 7)
    srd(a, 12, 60, 61, 64 * 1280)
    a(f"s_mul_i32 s7, s6, {64*1280}")
    srd_add(a, 12, 7)
    srd(a, 20, 50, 51, WS["modf"][1], WS["modf"][0])
    srd(a, 24, 58, 59, 640 * 3840 * 2)
    srd(a, 28, 56, 57, 640 * 2)
    srd(a, 64, 48, 49, 256)
    srd(a, 68, 50, 51, WS["mod"][1], WS["mod"][0])
    srd(a, 16, 50, 51, 160 * 4096, WS["abt"][0])
    a(f"s_mul_i32 s7, s5, {160*4096}")
    srd_add(a, 16, 7)
    a("s_lshl_b32 s7, s6, 7")
    srd_add(a, 16, 7)
    a("s_cmp_ge_u32 s2, 120")
    a(f"s_cbranch_scc1 {L}_nog1")
    for p in range(5):
        a(f"buffer_load_ushort v{76+p}, v15, s[28:31], 0 offen offset:{p*256}")
    for p in range(5):
        a(f"s_mov_b32 s45, {p*128*7680}")
        a(f"buffer_load_dwordx4 v[{56+4*p}:{59+4*p}], v14, s[24:27], s45 offen")
    a.label(f"{L}_nog1")
    a("s_movk_i32 s45, 5120")
    for rp in range(2):
        for k in range(5):
            r = 16 + (rp * 5 + k) * 4
            so = "s45" if rp else "0"
            a(f"buffer_load_dwordx4 v[{r}:{r+3}], v5, s[12:15], {so} offen offset:{k*256}")

    def issue(s):
        for t in range(5):
            a(f"s_add_u32 m0, s42, {(s % NS)*slotsz + t*4096}")
            a(f"s_mov_b32 s46, {s*128 + t*32*1280}")
            a("buffer_load_dwordx4 v8, s[8:11], s46 offen lds")
    a("s_cmp_lt_u32 s40, 4")
    a(f"s_cbranch_scc1 {L}_nold")
    for s in range(NS):
        issue(s)
    a.label(f"{L}_nold")

    def rolewait(nc, tag):
        a("s_cmp_lt_u32 s40, 4")
        a(f"s_cbranch_scc1 {L}_w{tag}a")
        a(f"s_waitcnt vmcnt({nc+20})")
        a(f"s_branch {L}_w{tag}b")
        a.label(f"{L}_w{tag}a")
        a(f"s_waitcnt vmcnt({nc})")
        a.label(f"{L}_w{tag}b")
    a("s_cmp_ge_u32 s2, 120")
    a(f"s_cbranch_scc1 {L}_nog2")
    rolewait(10, "g")
    A0 = 96
    for k in range(8):
        a(f"v_mov_b32 v{A0+k}, 0")
    a("s_mov_b32 s45, 0xbfb8aa3b")
    for p in range(5):
        a(f"v_lshlrev_b32 v{76+p}, 16, v{76+p}")
        a(f"v_mul_f32 v104, s45, v{76+p}")
        a("v_exp_f32 v104, v104")
        a("s_nop 0")
        a("v_add_f32 v104, 1.0, v104")
        a("v_rcp_f32 v104, v104")
        a("s_nop 0")
        a(f"v_mul_f32 v104, v{76+p}, v104")
        a("v_cvt_pk_bf16_f32 v104, v104, v104")
        a(f"v_lshlrev_b32 v{76+p}, 16, v104")
        for q in range(4):
            unpack(a, 104, 105, 56 + 4 * p + q)
            a(f"v_fmac_f32 v{A0+2*q}, v{76+p}, v104")
            a(f"v_fmac_f32 v{A0+1+2*q}, v{76+p}, v105")
    a("v_lshlrev_b32 v104, 7, v12")
    a("v_lshl_add_u32 v104, v13, 5, v104")
    a(f"ds_write_b128 v104, v[{A0}:{A0+3}]")
    a(f"ds_write_b128 v104, v[{A0+4}:{A0+7}] offset:16")
    a("s_waitcnt lgkmcnt(0)")
    a("s_barrier")
    a("v_and_b32 v105, 31, v0")
    a("v_lshrrev_b32 v106, 5, v0")
    a("v_lshlrev_b32 v104, 10, v106")
    a("v_lshl_add_u32 v104, v105, 2, v104")
    for i in range(8):
        a(f"ds_read_b32 v{A0+i}, v104 offset:{i*128}")
    a("s_waitcnt lgkmcnt(0)")
    for (x, y) in [(0, 1), (2, 3), (4, 5), (6, 7), (0, 2), (4, 6), (0, 4)]:
        a(f"v_add_f32 v{A0+x}, v{A0+x}, v{A0+y}")
    a("v_lshlrev_b32 v104, 2, v0")
    a(f"ds_write_b32 v104, v{A0} offset:16384")
    a("s_waitcnt lgkmcnt(0)")
    a("s_barrier")
    a("s_cmp_lg_u32 s40, 0")
    a(f"s_cbranch_scc1 {L}_nog2")
    a("v_lshrrev_b32 v106, 5, v1")
    a("v_lshlrev_b32 v104, 10, v106")
    a("v_lshl_add_u32 v104, v105, 2, v104")
    for i in range(8):
        a(f"ds_read_b32 v{A0+i}, v104 offset:{16384+i*128}")
    a("s_waitcnt lgkmcnt(0)")
    for (x, y) in [(0, 1), (2, 3), (4, 5), (6, 7), (0, 2), (4, 6), (0, 4)]:
        a(f"v_add_f32 v{A0+x}, v{A0+x}, v{A0+y}")
    a(f"v_mov_b32 v{A0+1}, v{A0}")
    a("s_nop 1")
    a(f"v_permlane32_swap_b32 v{A0}, v{A0+1}")
    a("s_nop 1")
    a(f"v_add_f32 v{A0}, v{A0}, v{A0+1}")
    a(f"v_cvt_pk_bf16_f32 v{A0+1}, v{A0}, v{A0}")
    a(f"v_lshlrev_b32 v{A0+2}, 16, v{A0+1}")
    a(f"v_add_f32 v{A0+3}, 1.0, v{A0+2}")
    a(f"v_cvt_pk_bf16_f32 v{A0+3}, v{A0+3}, v{A0+3}")
    a(f"v_lshlrev_b32 v{A0+3}, 16, v{A0+3}")
    a("s_mul_i32 s44, s33, 3277")
    a("s_lshr_b32 s44, s44, 16")
    a("s_cmp_eq_u32 s44, 1")
    a("s_cselect_b32 s45, 1, 0")
    a("s_cmp_eq_u32 s44, 4")
    a("s_cselect_b32 s45, 1, s45")
    a("s_cmp_eq_u32 s45, 1")
    a(f"s_cbranch_scc0 {L}_gnc")
    a(f"v_mov_b32 v{A0+2}, v{A0+3}")
    a.label(f"{L}_gnc")
    a("v_lshlrev_b32 v104, 1, v105")
    a("v_add_u32 v104, s34, v104")
    a("v_lshlrev_b32 v106, 1, v104")
    a("v_mov_b32 v107, 0")
    a("v_mov_b32 v108, 1")
    a("v_cmp_gt_u32 vcc, 32, v1")
    a("s_and_saveexec_b64 s[36:37], vcc")
    a(f"buffer_store_short v{A0+1}, v104, s[68:71], 0 offen")
    a(f"buffer_store_dword v{A0+2}, v106, s[20:23], 0 offen sc0 sc1")
    a("s_waitcnt vmcnt(0)")
    a("s_cmp_ge_u32 s33, 40")
    a(f"s_cbranch_scc1 {L}_gna")
    a("v_cmp_gt_u32 vcc, 1, v1")
    a("s_and_b64 exec, exec, vcc")
    a("buffer_atomic_add v108, v107, s[64:67], 0 offen")
    a.label(f"{L}_gna")
    a("s_mov_b64 exec, s[36:37]")
    a.label(f"{L}_nog2")
    rolewait(0, "x")
    X, T = 96, 136

    def red16(v, t):
        for mod_ in ["quad_perm:[1,0,3,2]", "quad_perm:[2,3,0,1]", "row_half_mirror", "row_mirror"]:
            a("s_nop 1")
            a(f"v_add_f32_dpp v{t}, v{v}, v{v} {mod_} row_mask:0xf bank_mask:0xf")
            v, t = t, v
    for rp in range(2):
        R = 16 + rp * 20
        for k in range(20):
            unpack(a, X + 2 * k, X + 2 * k + 1, R + k)
        s_, t_, m_, r_, u_, w_ = T, T + 1, T + 2, T + 3, T + 4, T + 5
        a(f"v_add_f32 v{s_}, v{X}, v{X+1}")
        a(f"v_add_f32 v{t_}, v{X+2}, v{X+3}")
        for k in range(4, 40, 2):
            a(f"v_add_f32 v{s_}, v{s_}, v{X+k}")
            a(f"v_add_f32 v{t_}, v{t_}, v{X+k+1}")
        a(f"v_add_f32 v{s_}, v{s_}, v{t_}")
        red16(s_, t_)
        a(f"v_mul_f32 v{m_}, 0x3acccccd, v{s_}")
        a(f"v_sub_f32 v{t_}, v{X}, v{m_}")
        a(f"v_mul_f32 v{s_}, v{t_}, v{t_}")
        a(f"v_sub_f32 v{t_}, v{X+1}, v{m_}")
        a(f"v_mul_f32 v{r_}, v{t_}, v{t_}")
        for k in range(2, 40, 2):
            a(f"v_sub_f32 v{t_}, v{X+k}, v{m_}")
            a(f"v_fmac_f32 v{s_}, v{t_}, v{t_}")
            a(f"v_sub_f32 v{u_}, v{X+k+1}, v{m_}")
            a(f"v_fmac_f32 v{r_}, v{u_}, v{u_}")
        a(f"v_add_f32 v{s_}, v{s_}, v{r_}")
        red16(s_, t_)
        a(f"v_mul_f32 v{s_}, 0x3acccccd, v{s_}")
        a(f"v_cvt_pk_bf16_f32 v{t_}, v{m_}, v{s_}")
        unpack(a, m_, s_, t_)
        a(f"v_add_f32 v{s_}, 0x3727c5ac, v{s_}")
        a(f"v_cvt_pk_bf16_f32 v{t_}, v{s_}, v{s_}")
        a(f"v_lshlrev_b32 v{s_}, 16, v{t_}")
        a(f"v_sqrt_f32 v{s_}, v{s_}")
        a("s_nop 0")
        a(f"v_cvt_pk_bf16_f32 v{t_}, v{s_}, v{s_}")
        a(f"v_lshlrev_b32 v{s_}, 16, v{t_}")
        a(f"v_rcp_f32 v{r_}, v{s_}")
        a("s_nop 0")
        for k in range(20):
            a(f"v_sub_f32 v{u_}, v{X+2*k}, v{m_}")
            a(f"v_sub_f32 v{w_}, v{X+2*k+1}, v{m_}")
            a(f"v_cvt_pk_bf16_f32 v{t_}, v{u_}, v{w_}")
            unpack(a, u_, w_, t_)
            a(f"v_mul_f32 v{u_}, v{u_}, v{r_}")
            a(f"v_mul_f32 v{w_}, v{w_}, v{r_}")
            a(f"v_cvt_pk_bf16_f32 v{R+k}, v{u_}, v{w_}")
    a("s_cmp_lg_u32 s40, 0")
    a(f"s_cbranch_scc1 {L}_nopoll")
    a("v_mov_b32 v107, 0")
    a("s_mov_b32 s44, 0")
    a.label(f"{L}_poll")
    a("buffer_load_dword v108, v107, s[64:67], 0 offen sc0 sc1")
    a("s_waitcnt vmcnt(0)")
    a("v_readfirstlane_b32 s45, v108")
    a("s_add_u32 s44, s44, 1")
    a("s_cmp_ge_u32 s45, 40")
    a(f"s_cbranch_scc1 {L}_polled")
    a("s_sleep 2")
    a("s_cmp_lt_u32 s44, 0x40000")
    a(f"s_cbranch_scc1 {L}_poll")
    a.label(f"{L}_polled")
    a("v_lshlrev_b32 v12, 4, v1")
    a("s_movk_i32 s45, 4096")
    for i in range(5):
        so = "s45" if i == 4 else "0"
        a(f"buffer_load_dwordx4 v[{X+4*i}:{X+4*i+3}], v12, s[20:23], {so} offen offset:{(i%4)*1024} sc0 sc1")
    a("s_waitcnt vmcnt(0)")
    for i in range(5):
        a(f"ds_write_b128 v12, v[{X+4*i}:{X+4*i+3}] offset:{i*1024}")
    a("s_waitcnt lgkmcnt(0)")
    a.label(f"{L}_nopoll")
    a("s_barrier")
    a("v_lshlrev_b32 v12, 5, v2")
    SA, C1 = 56, 96
    for k in range(5):
        for h in range(2):
            a(f"ds_read_b128 v[{SA+8*k+4*h}:{SA+8*k+4*h+3}], v12 offset:{k*512+h*16}")
            a(f"ds_read_b128 v[{C1+8*k+4*h}:{C1+8*k+4*h+3}], v12 offset:{2560+k*512+h*16}")
    a("v_lshrrev_b32 v10, 1, v3")
    a("s_and_b32 s44, s40, 3")
    a("s_lshl_b32 s44, s44, 1")
    a("v_or_b32 v10, s44, v10")
    a("v_and_b32 v11, 7, v2")
    a("v_xor_b32 v10, v10, v11")
    a("v_lshlrev_b32 v10, 4, v10")
    a("v_lshl_add_u32 v10, v4, 7, v10")
    a("v_lshrrev_b32 v11, 3, v2")
    a("v_lshl_add_u32 v10, v11, 13, v10")
    a("v_add_u32 v11, 0x8000, v10")
    a("s_waitcnt lgkmcnt(0)")
    a("s_barrier")
    for k in range(5):
        for rp in range(2):
            for q in range(4):
                r = 16 + (rp * 5 + k) * 4 + q
                c = 8 * k + 2 * q
                unpack(a, T, T + 1, r)
                a(f"v_mul_f32 v{T}, v{T}, v{C1+c}")
                a(f"v_mul_f32 v{T+1}, v{T+1}, v{C1+c+1}")
                a(f"v_cvt_pk_bf16_f32 v{T+2}, v{T}, v{T+1}")
                unpack(a, T, T + 1, T + 2)
                a(f"v_add_f32 v{T}, v{T}, v{SA+c}")
                a(f"v_add_f32 v{T+1}, v{T+1}, v{SA+c+1}")
                a(f"v_cvt_pk_bf16_f32 v{r}, v{T}, v{T+1}")
            r = 16 + (rp * 5 + k) * 4
            off = k * 16384 + rp * 512
            areg = 10
            if off >= 32768:
                off -= 32768
                areg = 11
            a(f"ds_write_b128 v{areg}, v[{r}:{r+3}] offset:{off}")
    a("s_cmp_lt_u32 s40, 4")
    a(f"s_cbranch_scc1 {L}_comp")
    a("s_waitcnt vmcnt(15) lgkmcnt(0)")
    a("s_barrier")
    for s in range(nst - 1):
        issued = min(nst, NS + s)
        a(f"s_waitcnt vmcnt({(issued - (s + 2)) * 5})")
        a("s_barrier")
        if s + NS < nst:
            issue(s + NS)
    a("s_endpgm")
    a.label(f"{L}_comp")
    a("s_and_b32 s42, s40, 1")
    a("s_lshr_b32 s43, s40, 1")
    a("v_lshrrev_b32 v4, 1, v2")
    a("v_xor_b32 v4, v4, v3")
    a("v_and_b32 v5, 12, v2")
    a("v_lshlrev_b32 v5, 1, v5")
    a("v_and_b32 v6, 3, v2")
    a("v_or_b32 v5, v5, v6")
    vSA, vVA = 60, 68
    a(f"s_mul_i32 s44, s42, {80*128}")
    a(f"s_add_u32 s44, s44, {SB}")
    a(f"s_lshl_b32 s45, s43, 12")
    for j in range(2):
        a(f"v_xor_b32 v6, {4*j}, v4")
        a("v_lshlrev_b32 v6, 4, v6")
        a("v_lshl_add_u32 v7, v2, 7, v6")
        a("v_add_u32 v7, s44, v7")
        for sl in range(NS):
            a(f"v_add_u32 v{vSA+sl*2+j}, {sl*slotsz}, v7")
        a("v_lshl_add_u32 v7, v5, 7, v6")
        a(f"v_add_u32 v{vVA+j}, s45, v7")
        a(f"v_add_u32 v{vVA+2+j}, 0xa000, v{vVA+j}")
    vF = 72
    nfr = 7
    vR = 16

    def frag_reads(s, j, buf):
        for vb in range(2):
            r = vF + (buf * nfr + 5 + vb) * 4
            hi = s >= 5
            off = (s - 5 * hi) * 8192 + vb * 512
            a(f"ds_read_b128 v[{r}:{r+3}], v{vVA+2*hi+j} offset:{off}")
        for b in range(5):
            r = vF + (buf * nfr + b) * 4
            a(f"ds_read_b128 v[{r}:{r+3}], v{vSA+(s%NS)*2+j} offset:{b*2048}")

    def mfmas(buf, first):
        for b in range(5):
            for vb in range(2):
                ar = (b * 2 + vb) * 4
                sf = vF + (buf * nfr + b) * 4
                vf = vF + (buf * nfr + 5 + vb) * 4
                c = "0" if first else f"a[{ar}:{ar+3}]"
                a(f"v_mfma_f32_16x16x32_bf16 a[{ar}:{ar+3}], v[{vf}:{vf+3}], v[{sf}:{sf+3}], {c}")

    a("s_waitcnt lgkmcnt(0)")
    a("s_barrier")
    frag_reads(0, 0, 0)
    step = 0
    for s in range(nst):
        for j in range(2):
            buf = step & 1
            if j == 0:
                frag_reads(s, 1, buf ^ 1)
                a(f"s_waitcnt lgkmcnt({nfr})")
            else:
                a("s_waitcnt lgkmcnt(0)")
                if s + 1 < nst:
                    a("s_barrier")
                    frag_reads(s + 1, 0, buf ^ 1)
            mfmas(buf, step == 0)
            step += 1
    a("s_nop 7")
    a("s_nop 7")
    a("s_mul_i32 s44, s42, 80")
    a("v_add_u32 v4, s44, v2")
    a("v_lshlrev_b32 v4, 12, v4")
    a("v_lshl_add_u32 v4, v3, 4, v4")
    a("s_lshl_b32 s46, s43, 6")
    a("v_add_u32 v4, s46, v4")
    for b in range(5):
        o = vR + b * 4
        for k in range(4):
            a(f"v_accvgpr_read_b32 v{vF}, a{b*8+2*k}")
            a(f"v_accvgpr_read_b32 v{vF+1}, a{b*8+2*k+1}")
            a(f"v_cvt_pk_bf16_f32 v{o+k}, v{vF}, v{vF+1}")
        a(f"s_mov_b32 s46, {b*16*4096}")
        a(f"buffer_store_dwordx4 v[{o}:{o+3}], v4, s[16:19], s46 offen")
    a.label(f"{L}_end")
    a("s_endpgm")
    return kernel_desc(L, 144 + 40, 80, 144), 163840


def load_ptrs(a, names):
    for k, nm in enumerate(names):
        a(f"s_load_dwordx2 s[{48+2*k}:{49+2*k}], s[0:1], {KA[nm]}")
    a("s_waitcnt lgkmcnt(0)")


def setup_A(a):
    load_ptrs(a, ["ws", "hid_re", "hid_im"])
    a("s_and_b32 s3, s2, 7")
    a("s_lshr_b32 s4, s2, 3")
    a("s_and_b32 s5, s3, 3")
    a("s_lshl_b32 s5, s5, 2")
    a("s_and_b32 s6, s4, 3")
    a("s_add_u32 s5, s5, s6")
    a("s_lshr_b32 s6, s3, 2")
    a("s_lshl_b32 s6, s6, 3")
    a("s_lshr_b32 s7, s4, 2")
    a("s_add_u32 s6, s6, s7")
    a("s_cmp_ge_u32 s5, 8")
    a("s_cselect_b32 s8, s52, s50")
    a("s_cselect_b32 s9, s53, s51")
    a(f"s_mov_b32 s10, {80*1280}")
    a("s_mov_b32 s11, 0x00020000")
    a("s_and_b32 s7, s5, 7")
    a(f"s_mul_i32 s7, s7, {80*1280}")
    srd_add(a, 8, 7)
    srd(a, 12, 48, 49, 128 * 1280, WS["h"][0])
    a(f"s_mul_i32 s7, s6, {128*1280}")
    srd_add(a, 12, 7)
    srd(a, 16, 48, 49, 80 * 4096, WS["abt"][0])
    a(f"s_mul_i32 s7, s5, {80*4096}")
    srd_add(a, 16, 7)
    a("s_lshl_b32 s7, s6, 8")
    srd_add(a, 16, 7)
    return 1280, 1280


def pre_A(a, vE):
    a(f"s_load_dwordx4 s[56:59], s[0:1], {KA['seq_re']}")
    a("s_and_b32 s36, s2, 127")
    a("s_lshl_b32 s36, s36, 16")
    a("s_lshl_b32 s37, s40, 14")
    a("s_add_u32 s36, s36, s37")
    a("v_lshlrev_b32 v4, 4, v1")
    a("v_add_u32 v4, s36, v4")
    a("s_waitcnt lgkmcnt(0)")
    a("s_cmp_ge_u32 s2, 128")
    a("s_cselect_b32 s60, s58, s56")
    a("s_cselect_b32 s61, s59, s57")
    a(f"s_mov_b32 s62, {2048*2048*2}")
    a("s_mov_b32 s63, 0x00020000")
    for i in range(16):
        a(f"s_mov_b32 s37, {(i//4)*4096}")
        a(f"buffer_load_dwordx4 v[{vE+4*(i&7)}:{vE+4*(i&7)+3}], v4, s[60:63], s37 offen offset:{(i%4)*1024}")
    return 16


def epi_A(a, vR, vF, vE, nsb):
    a("v_lshlrev_b32 v4, 12, v2")
    a("v_lshl_add_u32 v4, v3, 4, v4")
    a("s_lshl_b32 s46, s40, 6")
    a("v_add_u32 v4, s46, v4")
    for b in range(nsb):
        r = vR + b * 8
        o = vF + (b & 1) * 4
        for k in range(4):
            a(f"v_cvt_pk_bf16_f32 v{o+k}, v{r+2*k}, v{r+2*k+1}")
        a(f"s_mov_b32 s46, {b*16*4096}")
        a(f"buffer_store_dwordx4 v[{o}:{o+3}], v4, s[16:19], s46 offen")


def setup_B(a):
    load_ptrs(a, ["ws", "seq_re", "seq_im"])
    a("s_and_b32 s3, s2, 7")
    a("s_lshr_b32 s4, s2, 3")
    if XB:
        a("s_and_b32 s5, s4, 1")
        a("s_lshl_b32 s6, s3, 1")
        a("s_bfe_u32 s7, s4, 0x10001")
        a("s_add_u32 s6, s6, s7")
        a("s_lshr_b32 s7, s4, 2")
    else:
        a("s_and_b32 s5, s3, 1")
        a("s_lshr_b32 s6, s3, 1")
        a("s_lshl_b32 s6, s6, 2")
        a("s_and_b32 s7, s4, 3")
        a("s_add_u32 s6, s6, s7")
        a("s_lshr_b32 s7, s4, 2")
    srd(a, 8, 48, 49, 80 * 4096, WS["abt"][0])
    a(f"s_mul_i32 s20, s5, {640*4096}")
    a(f"s_mul_i32 s21, s7, {80*4096}")
    a("s_add_u32 s20, s20, s21")
    srd_add(a, 8, 20)
    a("s_cmp_eq_u32 s5, 1")
    a("s_cselect_b32 s12, s52, s50")
    a("s_cselect_b32 s13, s53, s51")
    a(f"s_mov_b32 s14, {128*4096}")
    a("s_mov_b32 s15, 0x00020000")
    a(f"s_mul_i32 s20, s6, {128*4096}")
    srd_add(a, 12, 20)
    srd(a, 16, 48, 49, 128 * 1280, WS["y"][0])
    a(f"s_mul_i32 s20, s5, {2048*1280}")
    a(f"s_mul_i32 s21, s6, {128*1280}")
    a("s_add_u32 s20, s20, s21")
    a("s_mul_i32 s21, s7, 160")
    a("s_add_u32 s20, s20, s21")
    srd_add(a, 16, 20)
    return 4096, 4096


PFD = 13
XB = int(__import__('os').environ.get('XB', '0'))
XA = int(__import__('os').environ.get('XA', '1'))
XL = int(__import__('os').environ.get('XL', '1'))
RAMP1 = 1
STAMP = int(__import__('os').environ.get('STAMP', '0'))
STAMPK = [0]
TLBWARM = int(__import__('os').environ.get('TLBW', '0'))


PFMODE = int(__import__("os").environ.get("PFMODE", "3"))


def pre_B(a, vE):
    a("s_lshl_b32 s58, s7, 4")
    a("s_lshl_b32 s59, s40, 2")
    a("s_add_u32 s58, s58, s59")
    a("v_add_u32 v7, s58, v3")
    a("v_lshlrev_b32 v7, 12, v7")
    a("v_lshl_add_u32 v7, v2, 4, v7")
    if PFMODE == 1:
        for i in range(3, 16):
            a(f"buffer_load_dwordx4 v[{vE+4*(i&7)}:{vE+4*(i&7)+3}], v7, s[12:15], 0 offen offset:{i*256}")
    return 16


def stage_hook_B(a, s, vE):
    if PFMODE == 2 and s == 0:
        for i in range(3, 16):
            a(f"buffer_load_dwordx4 v[{vE+4*(i&7)}:{vE+4*(i&7)+3}], v7, s[12:15], 0 offen offset:{i*256}")
    if PFMODE == 3 and s < 4:
        for i in range(4 + 3 * s, min(16, 7 + 3 * s)):
            a(f"buffer_load_dwordx4 v[{vE+4*(i&7)}:{vE+4*(i&7)+3}], v7, s[12:15], 0 offen offset:{i*256}")


def make_epi_S(ldo, relu=False, resid=False):
    def epi(a, vR, vF, vE, nsb):
        a("s_lshl_b32 s46, s42, 5")
        a("v_add_u32 v4, s46, v2")
        a(f"s_movk_i32 s46, {ldo}")
        a("v_mul_lo_u32 v4, v4, s46")
        a("v_lshl_add_u32 v5, v3, 3, v4")
        a("v_lshl_add_u32 v4, v3, 4, v4")
        a(f"s_mov_b32 s47, {16*ldo}")
        if resid:
            pass
        cnt = 0
        for vb in range(2):
            so = "s47" if vb else "0"
            for p in range((nsb + 1) // 2):
                full = 2 * p + 1 < nsb
                nreg = 4 if full else 2
                o = vF + (cnt & 3) * 4
                cnt += 1
                xr = vE + 12 + vb * 10 + p * 4
                for k in range(nreg):
                    b = 2 * p + (k >> 1)
                    r = vR + (b * 2 + vb) * 4 + (k & 1) * 2
                    if relu:
                        a(f"v_max_f32 v{r}, 0, v{r}")
                        a(f"v_max_f32 v{r+1}, 0, v{r+1}")
                    a(f"v_cvt_pk_bf16_f32 v{o+k}, v{r}, v{r+1}")
                if resid:
                    t = vF + 24
                    for k in range(nreg):
                        unpack(a, t, t + 1, o + k)
                        unpack(a, t + 2, t + 3, vE + p * 4 + k)
                        a(f"v_mul_f32 v{t}, v{t}, v{t+2}")
                        a(f"v_mul_f32 v{t+1}, v{t+1}, v{t+3}")
                        a(f"v_cvt_pk_bf16_f32 v{t+4}, v{t}, v{t+1}")
                        unpack(a, t, t + 1, t + 4)
                        unpack(a, t + 2, t + 3, xr + k)
                        a(f"v_add_f32 v{t}, v{t}, v{t+2}")
                        a(f"v_add_f32 v{t+1}, v{t+1}, v{t+3}")
                        a(f"v_cvt_pk_bf16_f32 v{o+k}, v{t}, v{t+1}")
                a(f"buffer_store_dwordx{nreg} v[{o}:{o+nreg-1}], v{4 if full else 5}, s[16:19], {so} offen offset:{p*64}")
    return epi


def epi_D(a, vR, vF, vE, nsb):
    t = vF + 24
    for p in range(3):
        full = p < 2
        nreg = 4 if full else 2
        o = vF + p * 4
        for k in range(nreg):
            b = 2 * p + (k >> 1)
            r = vR + b * 4 + (k & 1) * 2
            a(f"v_cvt_pk_bf16_f32 v{o+k}, v{r}, v{r+1}")
            unpack(a, t, t + 1, o + k)
            unpack(a, t + 2, t + 3, vE + p * 4 + k)
            a(f"v_mul_f32 v{t}, v{t}, v{t+2}")
            a(f"v_mul_f32 v{t+1}, v{t+1}, v{t+3}")
            a(f"v_cvt_pk_bf16_f32 v{t+4}, v{t}, v{t+1}")
            unpack(a, t, t + 1, t + 4)
            unpack(a, t + 2, t + 3, vE + 12 + p * 4 + k)
            a(f"v_add_f32 v{t}, v{t}, v{t+2}")
            a(f"v_add_f32 v{t+1}, v{t+1}, v{t+3}")
            a(f"v_cvt_pk_bf16_f32 v{o+k}, v{t}, v{t+1}")
        a(f"buffer_store_dwordx{nreg} v[{o}:{o+nreg-1}], v{vE+24 if full else vE+25}, s[16:19], 0 offen offset:{p*64}")


def setup_C(a):
    load_ptrs(a, ["ws"])
    a("s_and_b32 s3, s2, 7")
    a("s_lshr_b32 s4, s2, 3")
    if XL:
        a("s_lshr_b32 s5, s4, 1")
        a("s_lshl_b32 s6, s3, 1")
        a("s_and_b32 s7, s4, 1")
        a("s_add_u32 s6, s6, s7")
    else:
        a("s_and_b32 s5, s3, 3")
        a("s_lshl_b32 s5, s5, 2")
        a("s_and_b32 s6, s4, 3")
        a("s_add_u32 s5, s5, s6")
        a("s_lshr_b32 s6, s3, 2")
        a("s_lshl_b32 s6, s6, 3")
        a("s_lshr_b32 s7, s4, 2")
        a("s_add_u32 s6, s6, s7")
    srd(a, 8, 48, 49, 96 * 1280, WS["w1t"][0])
    a(f"s_mul_i32 s20, s5, {96*1280}")
    srd_add(a, 8, 20)
    srd(a, 12, 48, 49, 128 * 1280, WS["h2"][0])
    a(f"s_mul_i32 s20, s6, {128*1280}")
    srd_add(a, 12, 20)
    srd(a, 16, 48, 49, 128 * 3072, WS["h1"][0])
    a(f"s_mul_i32 s20, s6, {128*3072}")
    a("s_mul_i32 s21, s5, 192")
    a("s_add_u32 s20, s20, s21")
    srd_add(a, 16, 20)
    return 1280, 1280


def setup_D(a):
    load_ptrs(a, ["ws", "out"])
    a("s_and_b32 s3, s2, 7")
    a("s_lshr_b32 s4, s2, 3")
    if XL:
        a("s_lshr_b32 s5, s4, 2")
        a("s_lshl_b32 s6, s3, 2")
        a("s_and_b32 s7, s4, 3")
        a("s_add_u32 s6, s6, s7")
    else:
        a("s_and_b32 s5, s3, 1")
        a("s_lshl_b32 s5, s5, 2")
        a("s_and_b32 s6, s4, 3")
        a("s_add_u32 s5, s5, s6")
        a("s_lshr_b32 s6, s3, 1")
        a("s_lshl_b32 s6, s6, 3")
        a("s_lshr_b32 s7, s4, 2")
        a("s_add_u32 s6, s6, s7")
    srd(a, 8, 48, 49, 80 * 3072, WS["w2t"][0])
    a(f"s_mul_i32 s20, s5, {80*3072}")
    srd_add(a, 8, 20)
    srd(a, 12, 48, 49, 64 * 3072, WS["h1"][0])
    a(f"s_mul_i32 s20, s6, {64*3072}")
    srd_add(a, 12, 20)
    a(f"s_mul_i32 s28, s6, {64*1280}")
    a("s_mul_i32 s29, s5, 160")
    a("s_add_u32 s30, s28, s29")
    srd(a, 16, 50, 51, 64 * 1280 - 0)
    srd_add(a, 16, 30)
    srd(a, 20, 48, 49, 64 * 1280, WS["x1"][0])
    srd_add(a, 20, 30)
    srd(a, 24, 48, 49, 160, WS["mod"][0] + 5 * 1280)
    srd_add(a, 24, 29)
    return 3072, 3072


def pre_epi_D(a, vE):
    a("v_lshlrev_b32 v4, 4, v3")
    a("v_lshlrev_b32 v5, 3, v3")
    a(f"buffer_load_dwordx4 v[{vE}:{vE+3}], v4, s[24:27], 0 offen")
    a(f"buffer_load_dwordx4 v[{vE+4}:{vE+7}], v4, s[24:27], 0 offen offset:64")
    a(f"buffer_load_dwordx2 v[{vE+8}:{vE+9}], v5, s[24:27], 0 offen offset:128")
    a("s_lshl_b32 s46, s42, 5")
    a("s_lshl_b32 s47, s43, 4")
    a("s_add_u32 s46, s46, s47")
    a("v_add_u32 v4, s46, v2")
    a("s_movk_i32 s46, 1280")
    a("v_mul_lo_u32 v4, v4, s46")
    a(f"v_lshl_add_u32 v{vE+25}, v3, 3, v4")
    a(f"v_lshl_add_u32 v{vE+24}, v3, 4, v4")
    r = vE + 12
    a(f"buffer_load_dwordx4 v[{r}:{r+3}], v{vE+24}, s[20:23], 0 offen")
    a(f"buffer_load_dwordx4 v[{r+4}:{r+7}], v{vE+24}, s[20:23], 0 offen offset:64")
    a(f"buffer_load_dwordx2 v[{r+8}:{r+9}], v{vE+25}, s[20:23], 0 offen offset:128")
    return 9


def main():
    a = Asm()
    descs = []
    launches = []
    FUSE = int(__import__("os").environ.get("FUSE", "0"))
    if not FUSE:
        descs.append(prep_kernel(a)); launches.append(("prep_kernel", PREP_WGS, 256, 10240))
    d, lds = fa_kernel(a) if FUSE else gemma2_kernel(a)
    descs.append(d); launches.append(("gemma_kernel", 256, 512, lds))
    d, lds = gemm_kernel(a, "gemmb_kernel", 2048, 80, 128, 128, True, 1, 3, setup_B, make_epi_S(1280), pre_epi=pre_B, stage_hook=stage_hook_B)
    descs.append(d); launches.append(("gemmb_kernel", 256, 512, lds))
    descs.append(ln_kernel(a, True)); launches.append(("ln2_kernel", LN2_WGS, 256, 10240))
    d, lds = gemm_kernel(a, "gemmc_kernel", 640, 96, 128, 64, True, 1, 5, setup_C, make_epi_S(3072, relu=True))
    descs.append(d); launches.append(("gemmc_kernel", 256, 512, lds))
    d, lds = gemm_kernel(a, "gemmd_kernel", 1536, 80, 64, 128, True, 2, 4, setup_D, epi_D,
                         pre_epi=pre_epi_D)
    descs.append(d); launches.append(("gemmd_kernel", 256, 512, lds))

    hdr = open(f"cdna_kernels/{NAME}.s.ref").read().split("\n")
    out = []
    for ln in hdr:
        if ln.startswith(";") and "@launch" not in ln and "Override" not in ln and "grid=ceil" not in ln:
            out.append(ln)
        elif not ln.startswith(";"):
            break
    for k, g, b, lds in launches:
        out.append(f"; @launch kernel={k} grid=({g},1,1) block=({b},1,1) lds={lds}")
    out.append('.amdgcn_target "amdgcn-amd-amdhsa--gfx950"')
    out.append(".text")
    txt = "\n".join(out) + "\n" + a.text()
    txt += '.section .rodata,"a"\n'
    for d in descs:
        txt += ".p2align 6\n" + d
    path = sys.argv[1] if len(sys.argv) > 1 else f"cdna_kernels/{NAME}.s"
    open(path, "w").write(txt)
    print("wrote", path, len(txt), "bytes")


if __name__ == "__main__":
    main()
```

```python
import sys

NAME = "adaLN_cond__spectral_fnet__dense_activation_relu__prompt"
S_LEN, D, DFF = 2048, 640, 1536

KA = dict(x=0, seq_re=8, seq_im=16, hid_re=24, hid_im=32, bx=40, w1=48, w2=56, c=64, wmod=72,
          out=80, dbg=88, ws=96)

def _al(x, a=0x10000):
    return (x + a - 1) // a * a
WS = {}
_o = 0
for nm, sz in [("mod", 3840 * 2), ("modf", 3840 * 4), ("w1t", DFF * D * 2), ("w2t", D * DFF * 2), ("h", S_LEN * D * 2),
               ("abt", 2 * D * S_LEN * 2), ("y", 2 * S_LEN * D * 2), ("x1", S_LEN * D * 2),
               ("h2", S_LEN * D * 2), ("h1", S_LEN * DFF * 2)]:
    WS[nm] = (_o, sz)
    _o = _al(_o + sz)


PREP_WGS = 152 + 256
LN2_WGS = 256 + 480
LN1_WGS = 256


class Asm:
    def __init__(self):
        self.lines = []

    def __call__(self, s):
        import re
        m = re.search(r"offset:(\d+)", s)
        if m and s.startswith("buffer_"):
            assert int(m.group(1)) <= 4095, s
        if m and s.startswith("ds_"):
            assert int(m.group(1)) <= 65535, s
        self.lines.append("    " + s)

    def label(self, s):
        self.lines.append(s + ":")

    def raw(self, s):
        self.lines.append(s)

    def text(self):
        return "\n".join(self.lines) + "\n"


def srd(a, sreg, base_lo, base_hi, nbytes, add=0):
    if add:
        a(f"s_add_u32 s{sreg}, s{base_lo}, {add}")
        a(f"s_addc_u32 s{sreg+1}, s{base_hi}, 0")
    else:
        a(f"s_mov_b32 s{sreg}, s{base_lo}")
        a(f"s_mov_b32 s{sreg+1}, s{base_hi}")
    a(f"s_mov_b32 s{sreg+2}, {nbytes}")
    a(f"s_mov_b32 s{sreg+3}, 0x00020000")


def srd_add(a, sreg, soff):
    a(f"s_add_u32 s{sreg}, s{sreg}, s{soff}")
    a(f"s_addc_u32 s{sreg+1}, s{sreg+1}, 0")


def kernel_header(a, label):
    a.raw(f".globl {label}")
    a.raw(".p2align 8")
    a.raw(f".type {label},@function")
    a.label(label)


def kernel_desc(label, nvgpr, nsgpr, accum):
    return f""".amdhsa_kernel {label}
  .amdhsa_next_free_vgpr {nvgpr}
  .amdhsa_next_free_sgpr {nsgpr}
  .amdhsa_accum_offset {accum}
  .amdhsa_group_segment_fixed_size 0
  .amdhsa_kernarg_size 104
  .amdhsa_user_sgpr_count 2
  .amdhsa_user_sgpr_kernarg_segment_ptr 1
  .amdhsa_system_sgpr_workgroup_id_x 1
  .amdhsa_float_denorm_mode_32 3
  .amdhsa_float_denorm_mode_16_64 3
.end_amdhsa_kernel
"""


def unpack(a, lo, hi, src):
    a(f"v_lshlrev_b32 v{lo}, 16, v{src}")
    a(f"v_and_b32 v{hi}, 0xffff0000, v{src}")


def transpose_body(a, L, base):
    a.label(f"{L}_tr")
    a(f"s_load_dwordx2 s[4:5], s[0:1], {KA['ws']}")
    a(f"s_load_dwordx4 s[28:31], s[0:1], {KA['w1']}")
    a(f"s_sub_u32 s6, s2, {base}")
    a("s_waitcnt lgkmcnt(0)")
    a("s_cmp_ge_u32 s6, 240")
    a(f"s_cbranch_scc1 {L}_tr2")
    a("s_mul_i32 s7, s6, 2731")
    a("s_lshr_b32 s7, s7, 16")
    a("s_mul_i32 s20, s7, 24")
    a("s_sub_u32 s20, s6, s20")
    srd(a, 8, 28, 29, 640 * 1536 * 2)
    srd(a, 12, 4, 5, WS["w1t"][1], WS["w1t"][0])
    a("s_movk_i32 s21, 3072")
    a("s_movk_i32 s22, 1280")
    a(f"s_branch {L}_trgo")
    a.label(f"{L}_tr2")
    a("s_sub_u32 s6, s6, 240")
    a("s_mul_i32 s7, s6, 6554")
    a("s_lshr_b32 s7, s7, 16")
    a("s_mul_i32 s20, s7, 10")
    a("s_sub_u32 s20, s6, s20")
    srd(a, 8, 30, 31, 640 * 1536 * 2)
    srd(a, 12, 4, 5, WS["w2t"][1], WS["w2t"][0])
    a("s_movk_i32 s21, 1280")
    a("s_movk_i32 s22, 3072")
    a.label(f"{L}_trgo")
    a("v_lshrrev_b32 v1, 3, v0")
    a("v_and_b32 v2, 7, v0")
    a("s_lshl_b32 s23, s7, 6")
    a("v_add_u32 v3, s23, v1")
    a("v_mul_lo_u32 v3, v3, s21")
    a("v_lshl_add_u32 v3, v2, 4, v3")
    a("s_lshl_b32 s24, s20, 7")
    a("v_add_u32 v3, s24, v3")
    a("s_lshl_b32 s25, s21, 5")
    a("buffer_load_dwordx4 v[8:11], v3, s[8:11], 0 offen")
    a("buffer_load_dwordx4 v[12:15], v3, s[8:11], s25 offen")
    a("s_movk_i32 s26, 1152")
    a("v_mul_lo_u32 v4, v2, s26")
    a("v_lshl_add_u32 v4, v1, 1, v4")
    a("s_waitcnt vmcnt(1)")
    for q in range(4):
        a(f"ds_write_b16 v4, v{8+q} offset:{(2*q)*144}")
        a(f"ds_write_b16_d16_hi v4, v{8+q} offset:{(2*q+1)*144}")
    a("s_waitcnt vmcnt(0)")
    for q in range(4):
        a(f"ds_write_b16 v4, v{12+q} offset:{(2*q)*144+64}")
        a(f"ds_write_b16_d16_hi v4, v{12+q} offset:{(2*q+1)*144+64}")
    a("s_waitcnt lgkmcnt(0)")
    a("s_barrier")
    a("s_movk_i32 s26, 144")
    a("v_mul_lo_u32 v5, v1, s26")
    a("v_lshl_add_u32 v5, v2, 4, v5")
    a("ds_read_b128 v[8:11], v5")
    a(f"ds_read_b128 v[12:15], v5 offset:{32*144}")
    a("s_lshl_b32 s23, s20, 6")
    a("v_add_u32 v6, s23, v1")
    a("v_mul_lo_u32 v6, v6, s22")
    a("v_lshl_add_u32 v6, v2, 4, v6")
    a("s_lshl_b32 s24, s7, 7")
    a("v_add_u32 v6, s24, v6")
    a("s_lshl_b32 s25, s22, 5")
    a("s_waitcnt lgkmcnt(1)")
    a("buffer_store_dwordx4 v[8:11], v6, s[12:15], 0 offen")
    a("s_waitcnt lgkmcnt(0)")
    a("buffer_store_dwordx4 v[12:15], v6, s[12:15], s25 offen")
    a(f"s_branch {L}_end")


def prep_kernel(a):
    L = "prep_kernel"
    kernel_header(a, L)
    a(f"s_cmp_ge_u32 s2, {PREP_WGS}")
    a(f"s_cbranch_scc1 {L}_end")
    a("s_cmp_ge_u32 s2, 152")
    a(f"s_cbranch_scc1 {L}_ln")
    a("s_cmp_ge_u32 s2, 146")
    a(f"s_cbranch_scc1 {L}_end")
    a("s_cmp_ge_u32 s2, 120")
    a(f"s_cbranch_scc1 {L}_pf")
    a(f"s_load_dwordx2 s[4:5], s[0:1], {KA['ws']}")
    a(f"s_load_dwordx4 s[32:35], s[0:1], {KA['c']}")
    a("s_waitcnt lgkmcnt(0)")
    a("s_and_b32 s6, s2, 7")
    a("s_mul_i32 s6, s6, 15")
    a("s_lshr_b32 s7, s2, 3")
    a("s_add_u32 s6, s6, s7")
    srd(a, 8, 34, 35, 640 * 3840 * 2)
    srd(a, 12, 32, 33, 640 * 2)
    srd(a, 16, 4, 5, WS["mod"][1], WS["mod"][0])
    a("v_lshrrev_b32 v1, 2, v0")
    a("v_and_b32 v2, 3, v0")
    a("s_movk_i32 s20, 7680")
    a("v_mul_lo_u32 v3, v1, s20")
    a("v_lshl_add_u32 v3, v2, 4, v3")
    a("s_lshl_b32 s21, s6, 6")
    a("v_add_u32 v3, s21, v3")
    a("v_lshlrev_b32 v4, 1, v1")
    for p in range(10):
        a(f"buffer_load_ushort v{10+p}, v4, s[12:15], 0 offen offset:{p*128}")
    for p in range(10):
        a(f"s_mov_b32 s22, {p*64*7680}")
        a(f"buffer_load_dwordx4 v[{20+4*p}:{23+4*p}], v3, s[8:11], s22 offen")
    for k in range(8):
        a(f"v_mov_b32 v{60+k}, 0")
    a("s_waitcnt vmcnt(10)")
    a("s_mov_b32 s23, 0xbfb8aa3b")
    for p in range(10):
        a(f"v_lshlrev_b32 v{10+p}, 16, v{10+p}")
        a(f"v_mul_f32 v70, s23, v{10+p}")
        a("v_exp_f32 v70, v70")
        a("s_nop 0")
        a("v_add_f32 v70, 1.0, v70")
        a("v_rcp_f32 v70, v70")
        a("s_nop 0")
        a(f"v_mul_f32 v70, v{10+p}, v70")
        a("v_cvt_pk_bf16_f32 v70, v70, v70")
        a(f"v_lshlrev_b32 v{10+p}, 16, v70")
    for p in range(10):
        a(f"s_waitcnt vmcnt({9-p})")
        for q in range(4):
            unpack(a, 70, 71, 20 + 4 * p + q)
            a(f"v_fmac_f32 v{60+2*q}, v{10+p}, v70")
            a(f"v_fmac_f32 v{61+2*q}, v{10+p}, v71")
    a("v_lshlrev_b32 v5, 7, v1")
    a("v_lshl_add_u32 v5, v2, 5, v5")
    a("ds_write_b128 v5, v[60:63]")
    a("ds_write_b128 v5, v[64:67] offset:16")
    a("s_waitcnt lgkmcnt(0)")
    a("s_barrier")
    a("v_and_b32 v6, 31, v0")
    a("v_lshrrev_b32 v7, 5, v0")
    a("v_lshlrev_b32 v8, 10, v7")
    a("v_lshl_add_u32 v8, v6, 2, v8")
    for i in range(8):
        a(f"ds_read_b32 v{20+i}, v8 offset:{i*128}")
    a("s_waitcnt lgkmcnt(0)")
    a("v_add_f32 v20, v20, v21")
    a("v_add_f32 v22, v22, v23")
    a("v_add_f32 v24, v24, v25")
    a("v_add_f32 v26, v26, v27")
    a("v_add_f32 v20, v20, v22")
    a("v_add_f32 v24, v24, v26")
    a("v_add_f32 v20, v20, v24")
    a("v_lshlrev_b32 v9, 2, v0")
    a("ds_write_b32 v9, v20 offset:8192")
    a("s_waitcnt lgkmcnt(0)")
    a("s_barrier")
    a("v_lshlrev_b32 v9, 2, v6")
    for i in range(8):
        a(f"ds_read_b32 v{20+i}, v9 offset:{8192+i*128}")
    a("s_waitcnt lgkmcnt(0)")
    a("v_add_f32 v20, v20, v21")
    a("v_add_f32 v22, v22, v23")
    a("v_add_f32 v24, v24, v25")
    a("v_add_f32 v26, v26, v27")
    a("v_add_f32 v20, v20, v22")
    a("v_add_f32 v24, v24, v26")
    a("v_add_f32 v20, v20, v24")
    a("v_cvt_pk_bf16_f32 v20, v20, v20")
    a("v_lshlrev_b32 v21, 16, v20")
    a("v_add_f32 v22, 1.0, v21")
    a("v_cvt_pk_bf16_f32 v22, v22, v22")
    a("v_lshlrev_b32 v22, 16, v22")
    a("s_mul_i32 s26, s6, 3277")
    a("s_lshr_b32 s26, s26, 16")
    a("s_cmp_eq_u32 s26, 1")
    a("s_cselect_b32 s27, 1, 0")
    a("s_cmp_eq_u32 s26, 4")
    a("s_cselect_b32 s27, 1, s27")
    a("s_cmp_eq_u32 s27, 1")
    a(f"s_cbranch_scc0 {L}_gnc")
    a("v_mov_b32 v21, v22")
    a.label(f"{L}_gnc")
    srd(a, 28, 4, 5, WS["modf"][1], WS["modf"][0])
    a("v_lshlrev_b32 v9, 1, v6")
    a("v_add_u32 v9, s21, v9")
    a("v_lshlrev_b32 v10, 1, v9")
    a("v_cmp_gt_u32 vcc, 32, v0")
    a("s_and_saveexec_b64 s[24:25], vcc")
    a(f"s_cbranch_execz {L}_end")
    a("buffer_store_short v20, v9, s[16:19], 0 offen")
    a("buffer_store_dword v21, v10, s[28:31], 0 offen")
    a(f"s_branch {L}_end")
    a.label(f"{L}_pf")
    a(f"s_load_dwordx8 s[28:35], s[0:1], {KA['seq_re']}")
    a("s_sub_u32 s6, s2, 120")
    a("s_waitcnt lgkmcnt(0)")
    a("s_mov_b32 s8, s32")
    a("s_mov_b32 s9, s33")
    a(f"s_mov_b32 s10, {640*640*2}")
    a("s_mov_b32 s11, 0x00020000")
    a("s_cmp_lt_u32 s6, 13")
    a(f"s_cbranch_scc1 {L}_pfgo")
    a("s_sub_u32 s6, s6, 13")
    a("s_mov_b32 s8, s34")
    a("s_mov_b32 s9, s35")
    a.label(f"{L}_pfgo")
    a("s_lshl_b32 s6, s6, 16")
    a("v_lshlrev_b32 v1, 4, v0")
    a("v_add_u32 v1, s6, v1")
    for i in range(16):
        a(f"s_mov_b32 s7, {i*4096}")
        a(f"buffer_load_dwordx4 v[{4+4*i}:{7+4*i}], v1, s[8:11], s7 offen")
    a(f"s_branch {L}_end")
    a.label(f"{L}_ln")
    a(f"s_load_dwordx2 s[4:5], s[0:1], {KA['ws']}")
    a(f"s_load_dwordx2 s[6:7], s[0:1], {KA['x']}")
    a("s_sub_u32 s3, s2, 152")
    if XL:
        a("s_and_b32 s20, s3, 7")
        a("s_lshl_b32 s20, s20, 5")
        a("s_lshr_b32 s3, s3, 3")
        a("s_add_u32 s3, s3, s20")
    a("v_lshrrev_b32 v1, 5, v0")
    a("s_lshl_b32 s3, s3, 3")
    a("v_add_u32 v1, s3, v1")
    a("v_and_b32 v2, 31, v0")
    a("v_lshlrev_b32 v2, 3, v2")
    a("s_movk_i32 s3, 1280")
    a("v_mul_lo_u32 v1, v1, s3")
    a("v_add_u32 v1, v1, v2")
    a("s_waitcnt lgkmcnt(0)")
    NB = S_LEN * D * 2
    srd(a, 8, 6, 7, NB)
    srd(a, 16, 4, 5, NB, WS["h"][0])
    for i in range(5):
        a(f"buffer_load_dwordx2 v[{10+2*i}:{11+2*i}], v1, s[8:11], 0 offen offset:{i*256}")
    a("s_waitcnt vmcnt(0)")
    for k in range(10):
        unpack(a, 20 + 2 * k, 21 + 2 * k, 10 + k)
    ln_core(a, 20, 0, 0, 40, 50, apply=False)
    for i in range(5):
        a(f"buffer_store_dwordx2 v[{40+2*i}:{41+2*i}], v1, s[16:19], 0 offen offset:{i*256}")
    a.label(f"{L}_end")
    a("s_endpgm")
    return kernel_desc(L, 72, 40, 72)


def reduce32(a, v, t):
    a("s_nop 1")
    a(f"v_add_f32_dpp v{t}, v{v}, v{v} quad_perm:[1,0,3,2] row_mask:0xf bank_mask:0xf")
    a("s_nop 1")
    a(f"v_add_f32_dpp v{v}, v{t}, v{t} quad_perm:[2,3,0,1] row_mask:0xf bank_mask:0xf")
    a("s_nop 1")
    a(f"v_add_f32_dpp v{t}, v{v}, v{v} row_half_mirror row_mask:0xf bank_mask:0xf")
    a("s_nop 1")
    a(f"v_add_f32_dpp v{v}, v{t}, v{t} row_mirror row_mask:0xf bank_mask:0xf")
    a(f"ds_swizzle_b32 v{t}, v{v} offset:0x401F")
    a("s_waitcnt lgkmcnt(0)")
    a(f"v_add_f32 v{v}, v{v}, v{t}")


def ln_core(a, X, C1, SH, OUT, T, apply=True):
    s, t, m, r = T, T + 1, T + 2, T + 3
    a(f"v_add_f32 v{s}, v{X}, v{X+1}")
    a(f"v_add_f32 v{t}, v{X+2}, v{X+3}")
    for k in range(4, 20, 2):
        a(f"v_add_f32 v{s}, v{s}, v{X+k}")
        a(f"v_add_f32 v{t}, v{t}, v{X+k+1}")
    a(f"v_add_f32 v{s}, v{s}, v{t}")
    reduce32(a, s, t)
    a(f"v_mul_f32 v{m}, 0x3acccccd, v{s}")
    a(f"v_sub_f32 v{t}, v{X}, v{m}")
    a(f"v_mul_f32 v{s}, v{t}, v{t}")
    a(f"v_sub_f32 v{t}, v{X+1}, v{m}")
    a(f"v_mul_f32 v{r}, v{t}, v{t}")
    for k in range(2, 20, 2):
        a(f"v_sub_f32 v{t}, v{X+k}, v{m}")
        a(f"v_fmac_f32 v{s}, v{t}, v{t}")
        a(f"v_sub_f32 v{t}, v{X+k+1}, v{m}")
        a(f"v_fmac_f32 v{r}, v{t}, v{t}")
    a(f"v_add_f32 v{s}, v{s}, v{r}")
    reduce32(a, s, t)
    a(f"v_mul_f32 v{s}, 0x3acccccd, v{s}")
    a(f"v_cvt_pk_bf16_f32 v{t}, v{m}, v{s}")
    unpack(a, m, s, t)
    a(f"v_add_f32 v{s}, 0x3727c5ac, v{s}")
    a(f"v_cvt_pk_bf16_f32 v{t}, v{s}, v{s}")
    a(f"v_lshlrev_b32 v{s}, 16, v{t}")
    a(f"v_sqrt_f32 v{s}, v{s}")
    a("s_nop 0")
    a(f"v_cvt_pk_bf16_f32 v{t}, v{s}, v{s}")
    a(f"v_lshlrev_b32 v{s}, 16, v{t}")
    a(f"v_rcp_f32 v{r}, v{s}")
    a("s_nop 0")
    u, w = T + 4, T + 5
    for k in range(0, 20, 2):
        a(f"v_sub_f32 v{u}, v{X+k}, v{m}")
        a(f"v_sub_f32 v{w}, v{X+k+1}, v{m}")
        a(f"v_cvt_pk_bf16_f32 v{t}, v{u}, v{w}")
        unpack(a, u, w, t)
        a(f"v_mul_f32 v{u}, v{u}, v{r}")
        a(f"v_mul_f32 v{w}, v{w}, v{r}")
        if not apply:
            a(f"v_cvt_pk_bf16_f32 v{OUT+k//2}, v{u}, v{w}")
            continue
        a(f"v_cvt_pk_bf16_f32 v{t}, v{u}, v{w}")
        unpack(a, u, w, t)
        a(f"v_mul_f32 v{u}, v{u}, v{C1+k}")
        a(f"v_mul_f32 v{w}, v{w}, v{C1+k+1}")
        a(f"v_cvt_pk_bf16_f32 v{t}, v{u}, v{w}")
        unpack(a, u, w, t)
        a(f"v_add_f32 v{u}, v{u}, v{SH+k}")
        a(f"v_add_f32 v{w}, v{w}, v{SH+k+1}")
        a(f"v_cvt_pk_bf16_f32 v{OUT+k//2}, v{u}, v{w}")


def ln_kernel(a, second):
    L = "ln2_kernel" if second else "ln1_kernel"
    kernel_header(a, L)
    if not second:
        a(f"s_cmp_ge_u32 s2, {LN1_WGS}")
        a(f"s_cbranch_scc1 {L}_end")
        a("s_cmp_lt_u32 s2, 256")
        a(f"s_cbranch_scc1 {L}_go")
        a(f"s_load_dwordx4 s[28:31], s[0:1], {KA['seq_re']}")
        a("s_sub_u32 s6, s2, 192")
        a("s_waitcnt lgkmcnt(0)")
        a("s_cmp_ge_u32 s6, 128")
        a("s_cselect_b32 s8, s30, s28")
        a("s_cselect_b32 s9, s31, s29")
        a(f"s_mov_b32 s10, {2048*2048*2}")
        a("s_mov_b32 s11, 0x00020000")
        a("s_and_b32 s6, s6, 127")
        a("s_lshl_b32 s6, s6, 16")
        a("v_lshlrev_b32 v1, 4, v0")
        a("v_add_u32 v1, s6, v1")
        for i in range(16):
            a(f"s_mov_b32 s7, {i*4096}")
            a(f"buffer_load_dwordx4 v[{4+4*i}:{7+4*i}], v1, s[8:11], s7 offen")
        a("s_endpgm")
        a.label(f"{L}_go")
    else:
        a(f"s_cmp_ge_u32 s2, {LN2_WGS}")
        a(f"s_cbranch_scc1 {L}_end")
        a("s_cmp_lt_u32 s2, 256")
        a(f"s_cbranch_scc1 {L}_go")
        transpose_body(a, L, 256)
        a.label(f"{L}_go")
    a(f"s_load_dwordx2 s[4:5], s[0:1], {KA['ws']}")
    a(f"s_load_dwordx2 s[6:7], s[0:1], {KA['x']}")
    a("s_waitcnt lgkmcnt(0)")
    NB = S_LEN * D * 2
    srd(a, 8, 6, 7, NB)
    srd(a, 12, 4, 5, WS["mod"][1], WS["mod"][0])
    srd(a, 16, 4, 5, NB, WS["h2" if second else "h"][0])
    if second:
        srd(a, 20, 4, 5, NB, WS["y"][0])
        srd(a, 24, 4, 5, NB, WS["y"][0] + NB)
        srd(a, 28, 4, 5, NB, WS["x1"][0])
    a("v_lshrrev_b32 v1, 5, v0")
    if XL:
        a("s_and_b32 s33, s2, 7")
        a("s_lshl_b32 s33, s33, 5")
        a("s_lshr_b32 s3, s2, 3")
        a("s_add_u32 s3, s3, s33")
        a("s_lshl_b32 s3, s3, 3")
    else:
        a("s_lshl_b32 s3, s2, 3")
    a("v_add_u32 v1, s3, v1")
    a("v_and_b32 v2, 31, v0")
    a("v_lshlrev_b32 v2, 3, v2")
    a("s_movk_i32 s3, 1280")
    a("v_mul_lo_u32 v1, v1, s3")
    a("v_add_u32 v1, v1, v2")
    for i in range(5):
        a(f"buffer_load_dwordx2 v[{10+2*i}:{11+2*i}], v1, s[8:11], 0 offen offset:{i*256}")
    if second:
        for i in range(5):
            a(f"buffer_load_dwordx2 v[{20+2*i}:{21+2*i}], v1, s[20:23], 0 offen offset:{i*256}")
        for i in range(5):
            a(f"buffer_load_dwordx2 v[{30+2*i}:{31+2*i}], v1, s[24:27], 0 offen offset:{i*256}")
        for i in range(5):
            a(f"buffer_load_dwordx2 v[{40+2*i}:{41+2*i}], v2, s[12:15], 0 offen offset:{2*1280+i*256}")
    coff = (4 if second else 1) * 1280
    soff = (3 if second else 0) * 1280
    a(f"s_movk_i32 s3, {coff}")
    for i in range(5):
        a(f"buffer_load_dwordx2 v[{50+2*i}:{51+2*i}], v2, s[12:15], s3 offen offset:{i*256}")
    a(f"s_movk_i32 s32, {soff}")
    for i in range(5):
        a(f"buffer_load_dwordx2 v[{60+2*i}:{61+2*i}], v2, s[12:15], s32 offen offset:{i*256}")
    X, C1, SH, OUT, T = 70, 90, 110, 130, 140
    if second:
        a("s_waitcnt vmcnt(10)")
        for k in range(10):
            unpack(a, T, T + 1, 20 + k)
            unpack(a, T + 2, T + 3, 30 + k)
            a(f"v_sub_f32 v{T}, v{T}, v{T+2}")
            a(f"v_sub_f32 v{T+1}, v{T+1}, v{T+3}")
            a(f"v_cvt_pk_bf16_f32 v{T+4}, v{T}, v{T+1}")
            unpack(a, T, T + 1, T + 4)
            unpack(a, T + 2, T + 3, 40 + k)
            a(f"v_mul_f32 v{T}, v{T}, v{T+2}")
            a(f"v_mul_f32 v{T+1}, v{T+1}, v{T+3}")
            a(f"v_cvt_pk_bf16_f32 v{T+4}, v{T}, v{T+1}")
            unpack(a, T, T + 1, T + 4)
            unpack(a, T + 2, T + 3, 10 + k)
            a(f"v_add_f32 v{T}, v{T}, v{T+2}")
            a(f"v_add_f32 v{T+1}, v{T+1}, v{T+3}")
            a(f"v_cvt_pk_bf16_f32 v{20+k}, v{T}, v{T+1}")
            unpack(a, X + 2 * k, X + 2 * k + 1, 20 + k)
        for i in range(5):
            a(f"buffer_store_dwordx2 v[{20+2*i}:{21+2*i}], v1, s[28:31], 0 offen offset:{i*256}")
        a("s_waitcnt vmcnt(5)")
    else:
        a("s_waitcnt vmcnt(10)")
        for k in range(10):
            unpack(a, X + 2 * k, X + 2 * k + 1, 10 + k)
        a("s_waitcnt vmcnt(0)")
    for k in range(10):
        unpack(a, T, T + 1, 50 + k)
        a(f"v_add_f32 v{T}, 1.0, v{T}")
        a(f"v_add_f32 v{T+1}, 1.0, v{T+1}")
        a(f"v_cvt_pk_bf16_f32 v{T+2}, v{T}, v{T+1}")
        unpack(a, C1 + 2 * k, C1 + 2 * k + 1, T + 2)
        unpack(a, SH + 2 * k, SH + 2 * k + 1, 60 + k)
    ln_core(a, X, C1, SH, OUT, T)
    for i in range(5):
        a(f"buffer_store_dwordx2 v[{OUT+2*i}:{OUT+1+2*i}], v1, s[16:19], 0 offen offset:{i*256}")
    a.label(f"{L}_end")
    a("s_endpgm")
    return kernel_desc(L, 152, 40, 152)


def rowmap(paired_ok, nb, b, i):
    if paired_ok and not (b == nb - 1 and nb % 2 == 1):
        return 32 * (b >> 1) + 8 * (i >> 2) + 4 * (b & 1) + (i & 3)
    return 16 * b + i


def fsw_row(paired_ok, nb, n):
    npair = (nb // 2) * 32 if paired_ok else 0
    if n < npair:
        return 2 * ((n >> 3) & 3) + ((n >> 1) & 1)
    return (n >> 1) & 7


def check_conflicts(paired_ok, nb):
    groups = [[0, 1, 2, 3, 12, 13, 14, 15] + list(range(20, 28)),
              list(range(4, 12)) + [16, 17, 18, 19, 28, 29, 30, 31]]
    groups += [[x + 32 for x in g] for g in groups]
    for b in range(nb):
        for j in range(2):
            for g in groups:
                qs = set()
                for l in g:
                    n = rowmap(paired_ok, nb, b, l & 15)
                    assert fsw_row(paired_ok, nb, n) == ((l & 15) >> 1)
                    addr = n * 128 + ((4 * j) ^ (l >> 4) ^ fsw_row(paired_ok, nb, n)) * 16
                    qs.add((addr // 16) % 16)
                assert len(qs) == 16, (paired_ok, nb, b, j)


def gemm_kernel(a, L, K, BS, BV, BK, ndimS, ksplit, nslot, setup, epilogue, pre_epi=None, nwg=256, stage_hook=None):
    nsb = BS // 16
    check_conflicts(ndimS, nsb)
    check_conflicts(not ndimS, 2)
    kernel_header(a, L)
    a(f"s_cmp_ge_u32 s2, {nwg}")
    a(f"s_cbranch_scc1 {L}_end")
    if STAMP:
        a("s_memtime s[96:97]")
    a("v_lshrrev_b32 v1, 6, v0")
    a("s_nop 0")
    a("v_readfirstlane_b32 s40, v1")
    a("v_and_b32 v1, 63, v0")
    a("v_and_b32 v2, 15, v1")
    a("v_lshrrev_b32 v3, 4, v1")
    ldS, ldV = setup(a)
    nsub = BK // 64
    nst = K // BK
    subS, subV = BS * 128, BV * 128
    slotsz = nsub * (subS + subV)
    NS = min(nslot, nst)
    chunks = [("S", u, r) for u in range(nsub) for r in range(BS // 8)] + \
             [("V", u, r) for u in range(nsub) for r in range(BV // 8)]
    nS = nsub * BS // 8
    assert nS % 4 == 0 and len(chunks) % 4 == 0
    nt = len(chunks) // 4

    def lds_off(op, u, r):
        return (u * subS + r * 1024) if op == "S" else (nsub * subS + u * subV + r * 1024)

    steps = [(u, j) for u in range(nsub) for j in range(2)] if ksplit == 1 else [(u, None) for u in range(nsub)]
    spw = len(steps)
    vDMA = 8
    nj = 2 if ksplit == 1 else 1
    nSA = 2 if (ndimS and nsb % 2 == 1) else 1
    vSA = 8
    vVA = vSA + NS * nSA * nj
    vT = max(vVA + NS * nj, vDMA + nt)
    vF = (vT + 4 + 3) // 4 * 4
    nfr = nsb + 2
    vR = vF + 2 * nfr * 4
    vE = vR + nsb * 8
    vTot = vE + (32 if pre_epi else 0) + (1 if STAMP else 0)
    accum = (vTot + 3) // 4 * 4
    nacc = nsb * 2 * 4
    assert accum + nacc <= 256
    sLO = 64
    a("s_cmp_lt_u32 s40, 4")
    a(f"s_cbranch_scc1 {L}_comp")
    a("s_sub_u32 s40, s40, 4")
    a("v_lshrrev_b32 v4, 3, v1")
    a("v_and_b32 v5, 7, v1")
    a("v_and_b32 v6, 1, v3")
    a("v_xor_b32 v6, v6, v5")
    a("v_xor_b32 v7, v3, v5")
    a(f"s_movk_i32 s46, {ldS}")
    a(f"v_mul_lo_u32 v{vT}, v4, s46")
    a(f"s_movk_i32 s46, {ldV}")
    a(f"v_mul_lo_u32 v{vT+1}, v4, s46")
    q = []

    def vm_wait_for(tag):
        last = -1
        for idx, t in enumerate(q):
            if t == tag:
                last = idx
        return min(len(q) - 1 - last, 63)

    def issue_one(s, t):
        op = chunks[4 * t][0]
        a(f"s_add_u32 m0, s{sLO+t}, {(s % NS)*slotsz}")
        a(f"s_movk_i32 s46, {s*BK*2}")
        sr = "s[8:11]" if op == "S" else "s[12:15]"
        a(f"buffer_load_dwordx4 v{vDMA+t}, {sr}, s46 offen lds")
        q.append(s)

    def issue(s):
        for t in range(nt):
            issue_one(s, t)

    def sel(dst, vals):
        if all(v == vals[0] + (vals[1] - vals[0]) * k for k, v in enumerate(vals)):
            if vals[1] == vals[0]:
                a(f"s_mov_b32 s{dst}, {vals[0]}")
            else:
                a(f"s_mul_i32 s{dst}, s40, {vals[1]-vals[0]}")
                if vals[0]:
                    a(f"s_add_u32 s{dst}, s{dst}, {vals[0]}")
        else:
            a(f"s_mov_b32 s{dst}, {vals[0]}")
            for w in range(1, 4):
                a(f"s_cmp_eq_u32 s40, {w}")
                a(f"s_cselect_b32 s{dst}, {vals[w]}, s{dst}")

    for t in range(nt):
        ops = [chunks[4 * t + w] for w in range(4)]
        op = ops[0][0]
        assert all(o[0] == op for o in ops)
        ld = ldS if op == "S" else ldV
        paired_ok = ndimS if op == "S" else (not ndimS)
        nb = nsb if op == "S" else 2
        npair = (nb // 2) * 32 if paired_ok else 0
        def is_paired(o):
            n = o[2] * 8
            if op == "V":
                n &= 31
            return n < npair
        pk = [is_paired(o) for o in ops]
        sx = [(2 * (o[2] & 3) if p else 4 * (o[2] & 1)) for o, p in zip(ops, pk)]
        for o, p, x in zip(ops, pk, sx):
            for lane in range(64):
                n = o[2] * 8 + (lane >> 3)
                nn = n & 31 if op == "V" else n
                f = fsw_row(paired_ok, nb, nn)
                lx = ((lane >> 4) & 1) if p else ((lane >> 4) & 3)
                assert f == (x ^ lx), (op, o, lane)
        sel(44, sx)
        sel(45, [o[2] * 8 * ld + o[1] * 128 for o in ops])
        sel(sLO + t, [lds_off(*o) for o in ops])
        if all(pk) or not any(pk):
            a(f"v_xor_b32 v{vT+2}, s44, v{6 if pk[0] else 7}")
        else:
            sel(47, [1 if p else 0 for p in pk])
            a("s_cmp_eq_u32 s47, 1")
            a("s_cselect_b64 vcc, -1, 0")
            a(f"v_cndmask_b32 v{vT+2}, v7, v6, vcc")
            a(f"v_xor_b32 v{vT+2}, s44, v{vT+2}")
        a(f"v_lshl_add_u32 v{vT+2}, v{vT+2}, 4, v{vT if op == 'S' else vT+1}")
        a(f"v_add_u32 v{vDMA+t}, s45, v{vT+2}")
        issue_one(0, t)
    if NS > 1:
        issue(1)
    a(f"s_waitcnt vmcnt({vm_wait_for(0)})")
    a("s_barrier")
    nxt = 2
    for s in range(nst - 1):
        cnt = 0
        while nxt < nst and nxt <= s + NS - 1 and cnt < 2:
            issue(nxt)
            nxt += 1
            cnt += 1
        a(f"s_waitcnt vmcnt({vm_wait_for(s+1)})")
        a("s_barrier")
    a("s_endpgm")
    a.label(f"{L}_comp")
    if ksplit == 2:
        a("s_and_b32 s42, s40, 1")
        a("s_lshr_b32 s43, s40, 1")
    else:
        a("s_mov_b32 s42, s40")
        a("s_mov_b32 s43, 0")
    a("v_lshrrev_b32 v4, 1, v2")
    a("v_xor_b32 v4, v4, v3")
    if ksplit == 2:
        a("s_lshl_b32 s46, s43, 2")
        a("v_xor_b32 v4, s46, v4")
    a("v_and_b32 v5, 12, v2")
    a("v_lshlrev_b32 v5, 1, v5")
    a("v_and_b32 v6, 3, v2")
    a("v_or_b32 v5, v5, v6")
    def addr_regs(dst_fn, rowreg, extra_sgpr=None):
        for j in range(nj):
            a(f"v_xor_b32 v6, {4*j}, v4")
            a(f"v_lshlrev_b32 v6, 4, v6")
            a(f"v_lshl_add_u32 v6, v{rowreg}, 7, v6")
            if extra_sgpr is not None:
                a(f"v_add_u32 v6, s{extra_sgpr}, v6")
            for sl in range(NS):
                a(f"v_add_u32 v{dst_fn(sl, j)}, {sl*slotsz}, v6")
    saddr = lambda kind, sl, j: vSA + (sl * nSA + kind) * nj + j
    vaddr = lambda sl, j: vVA + sl * nj + j
    addr_regs(lambda sl, j: saddr(0, sl, j), 5 if ndimS else 2)
    if nSA == 2:
        addr_regs(lambda sl, j: saddr(1, sl, j), 2)
    a(f"s_lshl_b32 s46, s42, 12")
    a(f"s_add_u32 s46, s46, {nsub*subS}")
    addr_regs(vaddr, 2 if ndimS else 5, 46)
    if pre_epi:
        pre_epi(a, vE)

    def frag_reads(s, k, buf):
        slot = s % NS
        u, j = steps[k]
        jj = j if j is not None else 0
        for vb in range(2):
            r = vF + (buf * nfr + nsb + vb) * 4
            off = u * subV + (rowmap(not ndimS, 2, vb, 0)) * 128
            a(f"ds_read_b128 v[{r}:{r+3}], v{vaddr(slot, jj)} offset:{off}")
        for b in range(nsb):
            r = vF + (buf * nfr + b) * 4
            left = ndimS and nsb % 2 == 1 and b == nsb - 1
            off = u * subS + rowmap(ndimS, nsb, b, 0) * 128
            a(f"ds_read_b128 v[{r}:{r+3}], v{saddr(1 if left else 0, slot, jj)} offset:{off}")

    def mfmas(buf, first):
        for b in range(nsb):
            for vb in range(2):
                ar = (b * 2 + vb) * 4
                sf = vF + (buf * nfr + b) * 4
                vf = vF + (buf * nfr + nsb + vb) * 4
                A, B = (sf, vf) if ndimS else (vf, sf)
                c = "0" if first else f"a[{ar}:{ar+3}]"
                a(f"v_mfma_f32_16x16x32_bf16 a[{ar}:{ar+3}], v[{A}:{A+3}], v[{B}:{B+3}], {c}")

    nstamp = [0]
    def stamp():
        if STAMP:
            a(f"s_memtime s[{100-2}:{100-1}]")
            a("s_waitcnt lgkmcnt(0)")
            a(f"v_writelane_b32 v{vST}, s98, {nstamp[0]}")
            nstamp[0] += 1
    vST = accum - 1
    step = 0
    if STAMP:
        a(f"v_writelane_b32 v{vST}, s96, 63")
    stamp()
    a("s_barrier")
    stamp()
    frag_reads(0, 0, 0)
    for s in range(nst):
        if stage_hook:
            stage_hook(a, s, vE)
        for k in range(spw):
            buf = step & 1
            last = k == spw - 1
            if not last:
                frag_reads(s, k + 1, buf ^ 1)
                a(f"s_waitcnt lgkmcnt({nfr})")
            else:
                a("s_waitcnt lgkmcnt(0)")
                if s + 1 < nst:
                    a("s_barrier")
                    stamp()
                    frag_reads(s + 1, 0, buf ^ 1)
            mfmas(buf, step == 0)
            step += 1
    a("s_nop 7")
    a("s_nop 7")
    stamp()
    if ksplit == 2:
        a("s_barrier")
        a("v_lshlrev_b32 v4, 4, v1")
        a(f"s_mul_i32 s46, s40, {nsb*1024}")
        a("v_add_u32 v5, s46, v4")
        a("s_xor_b32 s47, s40, 2")
        a(f"s_mul_i32 s46, s47, {nsb*1024}")
        a("v_add_u32 v4, s46, v4")
        a("s_cmp_eq_u32 s43, 0")
        a(f"s_cbranch_scc1 {L}_k0")
        for b in range(nsb):
            k = b * 2
            a(f"ds_write_b128 v5, a[{4*k}:{4*k+3}] offset:{b*1024}")
        for b in range(nsb):
            for r in range(4):
                a(f"v_accvgpr_read_b32 v{vR+b*4+r}, a{(b*2+1)*4+r}")
        a(f"s_branch {L}_k1")
        a.label(f"{L}_k0")
        for b in range(nsb):
            k = b * 2 + 1
            a(f"ds_write_b128 v5, a[{4*k}:{4*k+3}] offset:{b*1024}")
        for b in range(nsb):
            for r in range(4):
                a(f"v_accvgpr_read_b32 v{vR+b*4+r}, a{(b*2)*4+r}")
        a.label(f"{L}_k1")
        a("s_waitcnt lgkmcnt(0)")
        a("s_barrier")
        for b in range(nsb):
            a(f"ds_read_b128 v[{vF+4*b}:{vF+4*b+3}], v4 offset:{b*1024}")
        a("s_waitcnt lgkmcnt(0)")
        for k in range(nsb * 4):
            a(f"v_add_f32 v{vR+k}, v{vR+k}, v{vF+k}")
    else:
        for k in range(nsb * 2 * 4):
            a(f"v_accvgpr_read_b32 v{vR+k}, a{k}")
    a("s_waitcnt vmcnt(0)")
    epilogue(a, vR, vF, vE, nsb)
    if STAMP:
        stamp()
        a("s_waitcnt vmcnt(0)")
        stamp()
        srd(a, 92, 48, 49, 1 << 20, (200 << 20) + STAMPK[0] * (1 << 20))
        STAMPK[0] += 1
        a("s_lshl_b32 s46, s2, 10")
        a("s_lshl_b32 s47, s40, 8")
        a("s_add_u32 s46, s46, s47")
        a("v_lshlrev_b32 v4, 2, v1")
        a(f"buffer_store_dword v{vST}, v4, s[92:95], s46 offen")
    a.label(f"{L}_end")
    a("s_endpgm")
    lds = max(NS * slotsz, (4 * nsb * 1024) if ksplit == 2 else 0)
    assert lds <= 163840, lds
    return kernel_desc(L, accum + nacc, 102, accum), lds


def gemma2_kernel(a):
    L = "gemma_kernel"
    K, NS = 640, 4
    nst = 10
    VB = 0
    SB = 81920
    slotsz = 160 * 128
    kernel_header(a, L)
    a("s_cmp_ge_u32 s2, 256")
    a(f"s_cbranch_scc1 {L}_end")
    a(f"s_load_dwordx2 s[48:49], s[0:1], {KA['ws']}")
    a(f"s_load_dwordx4 s[52:55], s[0:1], {KA['hid_re']}")
    a("v_lshrrev_b32 v1, 6, v0")
    a("s_nop 0")
    a("v_readfirstlane_b32 s40, v1")
    a("v_and_b32 v1, 63, v0")
    a("v_and_b32 v2, 15, v1")
    a("v_lshrrev_b32 v3, 4, v1")
    a("s_and_b32 s3, s2, 7")
    a("s_lshr_b32 s4, s2, 3")
    if XL and XA:
        a("s_lshr_b32 s5, s4, 2")
        a("s_lshl_b32 s6, s3, 2")
        a("s_and_b32 s7, s4, 3")
        a("s_add_u32 s6, s6, s7")
    else:
        a("s_and_b32 s5, s3, 1")
        a("s_lshl_b32 s5, s5, 2")
        a("s_and_b32 s6, s4, 3")
        a("s_add_u32 s5, s5, s6")
        a("s_lshr_b32 s6, s3, 1")
        a("s_lshl_b32 s6, s6, 3")
        a("s_lshr_b32 s7, s4, 2")
        a("s_add_u32 s6, s6, s7")
    a("s_lshl_b32 s44, s40, 3")
    a("v_add_u32 v4, s44, v3")
    a("s_movk_i32 s45, 1280")
    a("v_mul_lo_u32 v5, v4, s45")
    a("v_lshl_add_u32 v5, v2, 4, v5")
    a("v_lshlrev_b32 v6, 4, v2")
    a("s_waitcnt lgkmcnt(0)")
    a("s_cmp_ge_u32 s5, 4")
    a("s_cselect_b32 s8, s54, s52")
    a("s_cselect_b32 s9, s55, s53")
    a(f"s_mov_b32 s10, {160*1280}")
    a("s_mov_b32 s11, 0x00020000")
    a("s_and_b32 s7, s5, 3")
    a(f"s_mul_i32 s7, s7, {160*1280}")
    srd_add(a, 8, 7)
    srd(a, 12, 48, 49, 64 * 1280, WS["h"][0])
    a(f"s_mul_i32 s7, s6, {64*1280}")
    srd_add(a, 12, 7)
    srd(a, 20, 48, 49, WS["mod"][1], WS["mod"][0])
    a("s_movk_i32 s45, 5120")
    for rp in range(2):
        for k in range(5):
            r = 16 + (rp * 5 + k) * 4
            so = "s45" if rp else "0"
            a(f"buffer_load_dwordx4 v[{r}:{r+3}], v5, s[12:15], {so} offen offset:{k*256}")
    for k in range(5):
        a(f"buffer_load_dwordx4 v[{56+4*k}:{59+4*k}], v6, s[20:23], 0 offen offset:{1280+k*256}")
    for k in range(5):
        a(f"buffer_load_dwordx4 v[{76+4*k}:{79+4*k}], v6, s[20:23], 0 offen offset:{k*256}")
    if TLBWARM:
        a(f"s_load_dwordx4 s[56:59], s[0:1], {KA['seq_re']}")
        a("s_lshr_b32 s36, s3, 1")
        a("s_lshl_b32 s36, s36, 9")
        a("s_lshl_b32 s37, s4, 4")
        a("s_add_u32 s36, s36, s37")
        a("v_add_u32 v12, s36, v2")
        a("v_lshlrev_b32 v12, 12, v12")
        a("s_waitcnt lgkmcnt(0)")
        a("s_and_b32 s37, s3, 1")
        a("s_cmp_eq_u32 s37, 1")
        a("s_cselect_b32 s60, s58, s56")
        a("s_cselect_b32 s61, s59, s57")
        a(f"s_mov_b32 s62, {2048*2048*2}")
        a("s_mov_b32 s63, 0x00020000")
        a("buffer_load_dword v13, v12, s[60:63], 0 offen")
    srd(a, 16, 48, 49, 160 * 4096, WS["abt"][0])
    a(f"s_mul_i32 s7, s5, {160*4096}")
    srd_add(a, 16, 7)
    a("s_lshl_b32 s7, s6, 7")
    srd_add(a, 16, 7)
    a("s_and_b32 s41, s40, 3")
    a("v_lshrrev_b32 v8, 3, v1")
    a("v_and_b32 v9, 7, v1")
    a("v_xor_b32 v9, v9, v3")
    a("s_and_b32 s44, s41, 1")
    a("s_lshl_b32 s44, s44, 2")
    a("v_xor_b32 v9, s44, v9")
    a("s_lshl_b32 s44, s41, 3")
    a("v_add_u32 v8, s44, v8")
    a("s_movk_i32 s45, 1280")
    a("v_mul_lo_u32 v8, v8, s45")
    a("v_lshl_add_u32 v8, v9, 4, v8")
    a("s_lshl_b32 s42, s41, 10")
    a(f"s_add_u32 s42, s42, {SB}")
    a("s_cmp_lt_u32 s40, 4")
    a(f"s_cbranch_scc1 {L}_p0")

    def issue(s):
        for t in range(5):
            a(f"s_add_u32 m0, s42, {(s % NS)*slotsz + t*4096}")
            a(f"s_mov_b32 s46, {s*128 + t*32*1280}")
            a("buffer_load_dwordx4 v8, s[8:11], s46 offen lds")
    for s in range(NS):
        issue(s)
    a("s_waitcnt vmcnt(20)")
    a(f"s_branch {L}_p0b")
    a.label(f"{L}_p0")
    a("s_waitcnt vmcnt(0)")
    a.label(f"{L}_p0b")
    a("v_lshrrev_b32 v10, 1, v3")
    a("s_and_b32 s44, s40, 3")
    a("s_lshl_b32 s44, s44, 1")
    a("v_or_b32 v10, s44, v10")
    a("v_and_b32 v11, 7, v2")
    a("v_xor_b32 v10, v10, v11")
    a("v_lshlrev_b32 v10, 4, v10")
    a("v_lshl_add_u32 v10, v4, 7, v10")
    a("v_lshrrev_b32 v11, 3, v2")
    a("v_lshl_add_u32 v10, v11, 13, v10")
    a("v_add_u32 v11, 0x8000, v10")
    T = 96
    for k in range(5):
        for q in range(4):
            unpack(a, T, T + 1, 56 + 4 * k + q)
            a(f"v_add_f32 v{T}, 1.0, v{T}")
            a(f"v_add_f32 v{T+1}, 1.0, v{T+1}")
            a(f"v_cvt_pk_bf16_f32 v{T+6}, v{T}, v{T+1}")
            unpack(a, T, T + 1, T + 6)
            unpack(a, T + 2, T + 3, 76 + 4 * k + q)
            for rp in range(2):
                r = 16 + (rp * 5 + k) * 4 + q
                unpack(a, T + 4, T + 5, r)
                a(f"v_mul_f32 v{T+4}, v{T+4}, v{T}")
                a(f"v_mul_f32 v{T+5}, v{T+5}, v{T+1}")
                a(f"v_cvt_pk_bf16_f32 v{T+6}, v{T+4}, v{T+5}")
                unpack(a, T + 4, T + 5, T + 6)
                a(f"v_add_f32 v{T+4}, v{T+4}, v{T+2}")
                a(f"v_add_f32 v{T+5}, v{T+5}, v{T+3}")
                a(f"v_cvt_pk_bf16_f32 v{r}, v{T+4}, v{T+5}")
        for rp in range(2):
            r = 16 + (rp * 5 + k) * 4
            off = k * 16384 + rp * 512
            areg = 10
            if off >= 32768:
                off -= 32768
                areg = 11
            a(f"ds_write_b128 v{areg}, v[{r}:{r+3}] offset:{off}")
    a("s_cmp_lt_u32 s40, 4")
    a(f"s_cbranch_scc1 {L}_comp")
    a("s_waitcnt vmcnt(15) lgkmcnt(0)")
    a("s_barrier")
    for s in range(nst - 1):
        out = min(NS - 1, nst - 2 - s) - 0
        issued = min(nst, NS + s)
        a(f"s_waitcnt vmcnt({(issued - (s + 2)) * 5})")
        a("s_barrier")
        if s + NS < nst:
            issue(s + NS)
    a("s_endpgm")
    a.label(f"{L}_comp")
    a("s_and_b32 s42, s40, 1")
    a("s_lshr_b32 s43, s40, 1")
    a("v_lshrrev_b32 v4, 1, v2")
    a("v_xor_b32 v4, v4, v3")
    a("v_and_b32 v5, 12, v2")
    a("v_lshlrev_b32 v5, 1, v5")
    a("v_and_b32 v6, 3, v2")
    a("v_or_b32 v5, v5, v6")
    vSA, vVA = 8, 16
    a(f"s_mul_i32 s44, s42, {80*128}")
    a(f"s_add_u32 s44, s44, {SB}")
    a(f"s_lshl_b32 s45, s43, 12")
    for j in range(2):
        a(f"v_xor_b32 v6, {4*j}, v4")
        a("v_lshlrev_b32 v6, 4, v6")
        a("v_lshl_add_u32 v7, v2, 7, v6")
        a("v_add_u32 v7, s44, v7")
        for sl in range(NS):
            a(f"v_add_u32 v{vSA+sl*2+j}, {sl*slotsz}, v7")
        a("v_lshl_add_u32 v7, v5, 7, v6")
        a(f"v_add_u32 v{vVA+j}, s45, v7")
        a(f"v_add_u32 v{vVA+2+j}, 0xa000, v{vVA+j}")
    vF = 24
    nfr = 7
    vR = vF + 2 * nfr * 4

    def frag_reads(s, j, buf):
        for vb in range(2):
            r = vF + (buf * nfr + 5 + vb) * 4
            hi = s >= 5
            off = (s - 5 * hi) * 8192 + vb * 512
            a(f"ds_read_b128 v[{r}:{r+3}], v{vVA+2*hi+j} offset:{off}")
        for b in range(5):
            r = vF + (buf * nfr + b) * 4
            a(f"ds_read_b128 v[{r}:{r+3}], v{vSA+(s%NS)*2+j} offset:{b*2048}")

    def mfmas(buf, first):
        for b in range(5):
            for vb in range(2):
                ar = (b * 2 + vb) * 4
                sf = vF + (buf * nfr + b) * 4
                vf = vF + (buf * nfr + 5 + vb) * 4
                c = "0" if first else f"a[{ar}:{ar+3}]"
                a(f"v_mfma_f32_16x16x32_bf16 a[{ar}:{ar+3}], v[{vf}:{vf+3}], v[{sf}:{sf+3}], {c}")

    a("s_waitcnt lgkmcnt(0)")
    a("s_barrier")
    frag_reads(0, 0, 0)
    step = 0
    for s in range(nst):
        for j in range(2):
            buf = step & 1
            if j == 0:
                frag_reads(s, 1, buf ^ 1)
                a(f"s_waitcnt lgkmcnt({nfr})")
            else:
                a("s_waitcnt lgkmcnt(0)")
                if s + 1 < nst:
                    a("s_barrier")
                    frag_reads(s + 1, 0, buf ^ 1)
            mfmas(buf, step == 0)
            step += 1
    a("s_nop 7")
    a("s_nop 7")
    a("s_mul_i32 s44, s42, 80")
    a("v_add_u32 v4, s44, v2")
    a("v_lshlrev_b32 v4, 12, v4")
    a("v_lshl_add_u32 v4, v3, 4, v4")
    a("s_lshl_b32 s46, s43, 6")
    a("v_add_u32 v4, s46, v4")
    for b in range(5):
        o = vR + b * 4
        for k in range(4):
            a(f"v_accvgpr_read_b32 v{vF}, a{b*8+2*k}")
            a(f"v_accvgpr_read_b32 v{vF+1}, a{b*8+2*k+1}")
            a(f"v_cvt_pk_bf16_f32 v{o+k}, v{vF}, v{vF+1}")
        a(f"s_mov_b32 s46, {b*16*4096}")
        a(f"buffer_store_dwordx4 v[{o}:{o+3}], v4, s[16:19], s46 offen")
    a.label(f"{L}_end")
    a("s_endpgm")
    return kernel_desc(L, 120 + 40, 64, 120), 163840


def fa_kernel(a):
    L = "gemma_kernel"
    NS = 4
    nst = 10
    SB = 81920
    slotsz = 160 * 128
    kernel_header(a, L)
    a("s_cmp_ge_u32 s2, 256")
    a(f"s_cbranch_scc1 {L}_end")
    a(f"s_load_dwordx4 s[48:51], s[0:1], {KA['dbg']}")
    a(f"s_load_dwordx4 s[52:55], s[0:1], {KA['hid_re']}")
    a(f"s_load_dwordx4 s[56:59], s[0:1], {KA['c']}")
    a(f"s_load_dwordx2 s[60:61], s[0:1], {KA['x']}")
    a("v_lshrrev_b32 v1, 6, v0")
    a("s_nop 0")
    a("v_readfirstlane_b32 s40, v1")
    a("v_and_b32 v1, 63, v0")
    a("v_and_b32 v2, 15, v1")
    a("v_lshrrev_b32 v3, 4, v1")
    a("s_and_b32 s3, s2, 7")
    a("s_lshr_b32 s4, s2, 3")
    a("s_and_b32 s5, s3, 1")
    a("s_lshl_b32 s5, s5, 2")
    a("s_and_b32 s6, s4, 3")
    a("s_add_u32 s5, s5, s6")
    a("s_lshr_b32 s6, s3, 1")
    a("s_lshl_b32 s6, s6, 3")
    a("s_lshr_b32 s7, s4, 2")
    a("s_add_u32 s6, s6, s7")
    a("s_mul_i32 s33, s3, 15")
    a("s_add_u32 s33, s33, s4")
    a("s_lshl_b32 s44, s40, 3")
    a("v_add_u32 v4, s44, v3")
    a("s_movk_i32 s45, 1280")
    a("v_mul_lo_u32 v5, v4, s45")
    a("v_lshl_add_u32 v5, v2, 4, v5")
    a("v_lshrrev_b32 v12, 2, v0")
    a("v_and_b32 v13, 3, v0")
    a("s_movk_i32 s45, 7680")
    a("v_mul_lo_u32 v14, v12, s45")
    a("v_lshl_add_u32 v14, v13, 4, v14")
    a("s_lshl_b32 s34, s33, 6")
    a("v_add_u32 v14, s34, v14")
    a("v_lshlrev_b32 v15, 1, v12")
    a("s_and_b32 s41, s40, 3")
    a("v_lshrrev_b32 v8, 3, v1")
    a("v_and_b32 v9, 7, v1")
    a("v_xor_b32 v9, v9, v3")
    a("s_and_b32 s44, s41, 1")
    a("s_lshl_b32 s44, s44, 2")
    a("v_xor_b32 v9, s44, v9")
    a("s_lshl_b32 s44, s41, 3")
    a("v_add_u32 v8, s44, v8")
    a("s_movk_i32 s45, 1280")
    a("v_mul_lo_u32 v8, v8, s45")
    a("v_lshl_add_u32 v8, v9, 4, v8")
    a("s_lshl_b32 s42, s41, 10")
    a(f"s_add_u32 s42, s42, {SB}")
    a("s_waitcnt lgkmcnt(0)")
    a("s_cmp_ge_u32 s5, 4")
    a("s_cselect_b32 s8, s54, s52")
    a("s_cselect_b32 s9, s55, s53")
    a(f"s_mov_b32 s10, {160*1280}")
    a("s_mov_b32 s11, 0x00020000")
    a("s_and_b32 s7, s5, 3")
    a(f"s_mul_i32 s7, s7, {160*1280}")
    srd_add(a, 8, 7)
    srd(a, 12, 60, 61, 64 * 1280)
    a(f"s_mul_i32 s7, s6, {64*1280}")
    srd_add(a, 12, 7)
    srd(a, 20, 50, 51, WS["modf"][1], WS["modf"][0])
    srd(a, 24, 58, 59, 640 * 3840 * 2)
    srd(a, 28, 56, 57, 640 * 2)
    srd(a, 64, 48, 49, 256)
    srd(a, 68, 50, 51, WS["mod"][1], WS["mod"][0])
    srd(a, 16, 50, 51, 160 * 4096, WS["abt"][0])
    a(f"s_mul_i32 s7, s5, {160*4096}")
    srd_add(a, 16, 7)
    a("s_lshl_b32 s7, s6, 7")
    srd_add(a, 16, 7)
    a("s_cmp_ge_u32 s2, 120")
    a(f"s_cbranch_scc1 {L}_nog1")
    for p in range(5):
        a(f"buffer_load_ushort v{76+p}, v15, s[28:31], 0 offen offset:{p*256}")
    for p in range(5):
        a(f"s_mov_b32 s45, {p*128*7680}")
        a(f"buffer_load_dwordx4 v[{56+4*p}:{59+4*p}], v14, s[24:27], s45 offen")
    a.label(f"{L}_nog1")
    a("s_movk_i32 s45, 5120")
    for rp in range(2):
        for k in range(5):
            r = 16 + (rp * 5 + k) * 4
            so = "s45" if rp else "0"
            a(f"buffer_load_dwordx4 v[{r}:{r+3}], v5, s[12:15], {so} offen offset:{k*256}")

    def issue(s):
        for t in range(5):
            a(f"s_add_u32 m0, s42, {(s % NS)*slotsz + t*4096}")
            a(f"s_mov_b32 s46, {s*128 + t*32*1280}")
            a("buffer_load_dwordx4 v8, s[8:11], s46 offen lds")
    a("s_cmp_lt_u32 s40, 4")
    a(f"s_cbranch_scc1 {L}_nold")
    for s in range(NS):
        issue(s)
    a.label(f"{L}_nold")

    def rolewait(nc, tag):
        a("s_cmp_lt_u32 s40, 4")
        a(f"s_cbranch_scc1 {L}_w{tag}a")
        a(f"s_waitcnt vmcnt({nc+20})")
        a(f"s_branch {L}_w{tag}b")
        a.label(f"{L}_w{tag}a")
        a(f"s_waitcnt vmcnt({nc})")
        a.label(f"{L}_w{tag}b")
    a("s_cmp_ge_u32 s2, 120")
    a(f"s_cbranch_scc1 {L}_nog2")
    rolewait(10, "g")
    A0 = 96
    for k in range(8):
        a(f"v_mov_b32 v{A0+k}, 0")
    a("s_mov_b32 s45, 0xbfb8aa3b")
    for p in range(5):
        a(f"v_lshlrev_b32 v{76+p}, 16, v{76+p}")
        a(f"v_mul_f32 v104, s45, v{76+p}")
        a("v_exp_f32 v104, v104")
        a("s_nop 0")
        a("v_add_f32 v104, 1.0, v104")
        a("v_rcp_f32 v104, v104")
        a("s_nop 0")
        a(f"v_mul_f32 v104, v{76+p}, v104")
        a("v_cvt_pk_bf16_f32 v104, v104, v104")
        a(f"v_lshlrev_b32 v{76+p}, 16, v104")
        for q in range(4):
            unpack(a, 104, 105, 56 + 4 * p + q)
            a(f"v_fmac_f32 v{A0+2*q}, v{76+p}, v104")
            a(f"v_fmac_f32 v{A0+1+2*q}, v{76+p}, v105")
    a("v_lshlrev_b32 v104, 7, v12")
    a("v_lshl_add_u32 v104, v13, 5, v104")
    a(f"ds_write_b128 v104, v[{A0}:{A0+3}]")
    a(f"ds_write_b128 v104, v[{A0+4}:{A0+7}] offset:16")
    a("s_waitcnt lgkmcnt(0)")
    a("s_barrier")
    a("v_and_b32 v105, 31, v0")
    a("v_lshrrev_b32 v106, 5, v0")
    a("v_lshlrev_b32 v104, 10, v106")
    a("v_lshl_add_u32 v104, v105, 2, v104")
    for i in range(8):
        a(f"ds_read_b32 v{A0+i}, v104 offset:{i*128}")
    a("s_waitcnt lgkmcnt(0)")
    for (x, y) in [(0, 1), (2, 3), (4, 5), (6, 7), (0, 2), (4, 6), (0, 4)]:
        a(f"v_add_f32 v{A0+x}, v{A0+x}, v{A0+y}")
    a("v_lshlrev_b32 v104, 2, v0")
    a(f"ds_write_b32 v104, v{A0} offset:16384")
    a("s_waitcnt lgkmcnt(0)")
    a("s_barrier")
    a("s_cmp_lg_u32 s40, 0")
    a(f"s_cbranch_scc1 {L}_nog2")
    a("v_lshrrev_b32 v106, 5, v1")
    a("v_lshlrev_b32 v104, 10, v106")
    a("v_lshl_add_u32 v104, v105, 2, v104")
    for i in range(8):
        a(f"ds_read_b32 v{A0+i}, v104 offset:{16384+i*128}")
    a("s_waitcnt lgkmcnt(0)")
    for (x, y) in [(0, 1), (2, 3), (4, 5), (6, 7), (0, 2), (4, 6), (0, 4)]:
        a(f"v_add_f32 v{A0+x}, v{A0+x}, v{A0+y}")
    a(f"v_mov_b32 v{A0+1}, v{A0}")
    a("s_nop 1")
    a(f"v_permlane32_swap_b32 v{A0}, v{A0+1}")
    a("s_nop 1")
    a(f"v_add_f32 v{A0}, v{A0}, v{A0+1}")
    a(f"v_cvt_pk_bf16_f32 v{A0+1}, v{A0}, v{A0}")
    a(f"v_lshlrev_b32 v{A0+2}, 16, v{A0+1}")
    a(f"v_add_f32 v{A0+3}, 1.0, v{A0+2}")
    a(f"v_cvt_pk_bf16_f32 v{A0+3}, v{A0+3}, v{A0+3}")
    a(f"v_lshlrev_b32 v{A0+3}, 16, v{A0+3}")
    a("s_mul_i32 s44, s33, 3277")
    a("s_lshr_b32 s44, s44, 16")
    a("s_cmp_eq_u32 s44, 1")
    a("s_cselect_b32 s45, 1, 0")
    a("s_cmp_eq_u32 s44, 4")
    a("s_cselect_b32 s45, 1, s45")
    a("s_cmp_eq_u32 s45, 1")
    a(f"s_cbranch_scc0 {L}_gnc")
    a(f"v_mov_b32 v{A0+2}, v{A0+3}")
    a.label(f"{L}_gnc")
    a("v_lshlrev_b32 v104, 1, v105")
    a("v_add_u32 v104, s34, v104")
    a("v_lshlrev_b32 v106, 1, v104")
    a("v_mov_b32 v107, 0")
    a("v_mov_b32 v108, 1")
    a("v_cmp_gt_u32 vcc, 32, v1")
    a("s_and_saveexec_b64 s[36:37], vcc")
    a(f"buffer_store_short v{A0+1}, v104, s[68:71], 0 offen")
    a(f"buffer_store_dword v{A0+2}, v106, s[20:23], 0 offen sc0 sc1")
    a("s_waitcnt vmcnt(0)")
    a("s_cmp_ge_u32 s33, 40")
    a(f"s_cbranch_scc1 {L}_gna")
    a("v_cmp_gt_u32 vcc, 1, v1")
    a("s_and_b64 exec, exec, vcc")
    a("buffer_atomic_add v108, v107, s[64:67], 0 offen")
    a.label(f"{L}_gna")
    a("s_mov_b64 exec, s[36:37]")
    a.label(f"{L}_nog2")
    rolewait(0, "x")
    X, T = 96, 136

    def red16(v, t):
        for mod_ in ["quad_perm:[1,0,3,2]", "quad_perm:[2,3,0,1]", "row_half_mirror", "row_mirror"]:
            a("s_nop 1")
            a(f"v_add_f32_dpp v{t}, v{v}, v{v} {mod_} row_mask:0xf bank_mask:0xf")
            v, t = t, v
    for rp in range(2):
        R = 16 + rp * 20
        for k in range(20):
            unpack(a, X + 2 * k, X + 2 * k + 1, R + k)
        s_, t_, m_, r_, u_, w_ = T, T + 1, T + 2, T + 3, T + 4, T + 5
        a(f"v_add_f32 v{s_}, v{X}, v{X+1}")
        a(f"v_add_f32 v{t_}, v{X+2}, v{X+3}")
        for k in range(4, 40, 2):
            a(f"v_add_f32 v{s_}, v{s_}, v{X+k}")
            a(f"v_add_f32 v{t_}, v{t_}, v{X+k+1}")
        a(f"v_add_f32 v{s_}, v{s_}, v{t_}")
        red16(s_, t_)
        a(f"v_mul_f32 v{m_}, 0x3acccccd, v{s_}")
        a(f"v_sub_f32 v{t_}, v{X}, v{m_}")
        a(f"v_mul_f32 v{s_}, v{t_}, v{t_}")
        a(f"v_sub_f32 v{t_}, v{X+1}, v{m_}")
        a(f"v_mul_f32 v{r_}, v{t_}, v{t_}")
        for k in range(2, 40, 2):
            a(f"v_sub_f32 v{t_}, v{X+k}, v{m_}")
            a(f"v_fmac_f32 v{s_}, v{t_}, v{t_}")
            a(f"v_sub_f32 v{u_}, v{X+k+1}, v{m_}")
            a(f"v_fmac_f32 v{r_}, v{u_}, v{u_}")
        a(f"v_add_f32 v{s_}, v{s_}, v{r_}")
        red16(s_, t_)
        a(f"v_mul_f32 v{s_}, 0x3acccccd, v{s_}")
        a(f"v_cvt_pk_bf16_f32 v{t_}, v{m_}, v{s_}")
        unpack(a, m_, s_, t_)
        a(f"v_add_f32 v{s_}, 0x3727c5ac, v{s_}")
        a(f"v_cvt_pk_bf16_f32 v{t_}, v{s_}, v{s_}")
        a(f"v_lshlrev_b32 v{s_}, 16, v{t_}")
        a(f"v_sqrt_f32 v{s_}, v{s_}")
        a("s_nop 0")
        a(f"v_cvt_pk_bf16_f32 v{t_}, v{s_}, v{s_}")
        a(f"v_lshlrev_b32 v{s_}, 16, v{t_}")
        a(f"v_rcp_f32 v{r_}, v{s_}")
        a("s_nop 0")
        for k in range(20):
            a(f"v_sub_f32 v{u_}, v{X+2*k}, v{m_}")
            a(f"v_sub_f32 v{w_}, v{X+2*k+1}, v{m_}")
            a(f"v_cvt_pk_bf16_f32 v{t_}, v{u_}, v{w_}")
            unpack(a, u_, w_, t_)
            a(f"v_mul_f32 v{u_}, v{u_}, v{r_}")
            a(f"v_mul_f32 v{w_}, v{w_}, v{r_}")
            a(f"v_cvt_pk_bf16_f32 v{R+k}, v{u_}, v{w_}")
    a("s_cmp_lg_u32 s40, 0")
    a(f"s_cbranch_scc1 {L}_nopoll")
    a("v_mov_b32 v107, 0")
    a("s_mov_b32 s44, 0")
    a.label(f"{L}_poll")
    a("buffer_load_dword v108, v107, s[64:67], 0 offen sc0 sc1")
    a("s_waitcnt vmcnt(0)")
    a("v_readfirstlane_b32 s45, v108")
    a("s_add_u32 s44, s44, 1")
    a("s_cmp_ge_u32 s45, 40")
    a(f"s_cbranch_scc1 {L}_polled")
    a("s_sleep 2")
    a("s_cmp_lt_u32 s44, 0x40000")
    a(f"s_cbranch_scc1 {L}_poll")
    a.label(f"{L}_polled")
    a("v_lshlrev_b32 v12, 4, v1")
    a("s_movk_i32 s45, 4096")
    for i in range(5):
        so = "s45" if i == 4 else "0"
        a(f"buffer_load_dwordx4 v[{X+4*i}:{X+4*i+3}], v12, s[20:23], {so} offen offset:{(i%4)*1024} sc0 sc1")
    a("s_waitcnt vmcnt(0)")
    for i in range(5):
        a(f"ds_write_b128 v12, v[{X+4*i}:{X+4*i+3}] offset:{i*1024}")
    a("s_waitcnt lgkmcnt(0)")
    a.label(f"{L}_nopoll")
    a("s_barrier")
    a("v_lshlrev_b32 v12, 5, v2")
    SA, C1 = 56, 96
    for k in range(5):
        for h in range(2):
            a(f"ds_read_b128 v[{SA+8*k+4*h}:{SA+8*k+4*h+3}], v12 offset:{k*512+h*16}")
            a(f"ds_read_b128 v[{C1+8*k+4*h}:{C1+8*k+4*h+3}], v12 offset:{2560+k*512+h*16}")
    a("v_lshrrev_b32 v10, 1, v3")
    a("s_and_b32 s44, s40, 3")
    a("s_lshl_b32 s44, s44, 1")
    a("v_or_b32 v10, s44, v10")
    a("v_and_b32 v11, 7, v2")
    a("v_xor_b32 v10, v10, v11")
    a("v_lshlrev_b32 v10, 4, v10")
    a("v_lshl_add_u32 v10, v4, 7, v10")
    a("v_lshrrev_b32 v11, 3, v2")
    a("v_lshl_add_u32 v10, v11, 13, v10")
    a("v_add_u32 v11, 0x8000, v10")
    a("s_waitcnt lgkmcnt(0)")
    a("s_barrier")
    for k in range(5):
        for rp in range(2):
            for q in range(4):
                r = 16 + (rp * 5 + k) * 4 + q
                c = 8 * k + 2 * q
                unpack(a, T, T + 1, r)
                a(f"v_mul_f32 v{T}, v{T}, v{C1+c}")
                a(f"v_mul_f32 v{T+1}, v{T+1}, v{C1+c+1}")
                a(f"v_cvt_pk_bf16_f32 v{T+2}, v{T}, v{T+1}")
                unpack(a, T, T + 1, T + 2)
                a(f"v_add_f32 v{T}, v{T}, v{SA+c}")
                a(f"v_add_f32 v{T+1}, v{T+1}, v{SA+c+1}")
                a(f"v_cvt_pk_bf16_f32 v{r}, v{T}, v{T+1}")
            r = 16 + (rp * 5 + k) * 4
            off = k * 16384 + rp * 512
            areg = 10
            if off >= 32768:
                off -= 32768
                areg = 11
            a(f"ds_write_b128 v{areg}, v[{r}:{r+3}] offset:{off}")
    a("s_cmp_lt_u32 s40, 4")
    a(f"s_cbranch_scc1 {L}_comp")
    a("s_waitcnt vmcnt(15) lgkmcnt(0)")
    a("s_barrier")
    for s in range(nst - 1):
        issued = min(nst, NS + s)
        a(f"s_waitcnt vmcnt({(issued - (s + 2)) * 5})")
        a("s_barrier")
        if s + NS < nst:
            issue(s + NS)
    a("s_endpgm")
    a.label(f"{L}_comp")
    a("s_and_b32 s42, s40, 1")
    a("s_lshr_b32 s43, s40, 1")
    a("v_lshrrev_b32 v4, 1, v2")
    a("v_xor_b32 v4, v4, v3")
    a("v_and_b32 v5, 12, v2")
    a("v_lshlrev_b32 v5, 1, v5")
    a("v_and_b32 v6, 3, v2")
    a("v_or_b32 v5, v5, v6")
    vSA, vVA = 60, 68
    a(f"s_mul_i32 s44, s42, {80*128}")
    a(f"s_add_u32 s44, s44, {SB}")
    a(f"s_lshl_b32 s45, s43, 12")
    for j in range(2):
        a(f"v_xor_b32 v6, {4*j}, v4")
        a("v_lshlrev_b32 v6, 4, v6")
        a("v_lshl_add_u32 v7, v2, 7, v6")
        a("v_add_u32 v7, s44, v7")
        for sl in range(NS):
            a(f"v_add_u32 v{vSA+sl*2+j}, {sl*slotsz}, v7")
        a("v_lshl_add_u32 v7, v5, 7, v6")
        a(f"v_add_u32 v{vVA+j}, s45, v7")
        a(f"v_add_u32 v{vVA+2+j}, 0xa000, v{vVA+j}")
    vF = 72
    nfr = 7
    vR = 16

    def frag_reads(s, j, buf):
        for vb in range(2):
            r = vF + (buf * nfr + 5 + vb) * 4
            hi = s >= 5
            off = (s - 5 * hi) * 8192 + vb * 512
            a(f"ds_read_b128 v[{r}:{r+3}], v{vVA+2*hi+j} offset:{off}")
        for b in range(5):
            r = vF + (buf * nfr + b) * 4
            a(f"ds_read_b128 v[{r}:{r+3}], v{vSA+(s%NS)*2+j} offset:{b*2048}")

    def mfmas(buf, first):
        for b in range(5):
            for vb in range(2):
                ar = (b * 2 + vb) * 4
                sf = vF + (buf * nfr + b) * 4
                vf = vF + (buf * nfr + 5 + vb) * 4
                c = "0" if first else f"a[{ar}:{ar+3}]"
                a(f"v_mfma_f32_16x16x32_bf16 a[{ar}:{ar+3}], v[{vf}:{vf+3}], v[{sf}:{sf+3}], {c}")

    a("s_waitcnt lgkmcnt(0)")
    a("s_barrier")
    frag_reads(0, 0, 0)
    step = 0
    for s in range(nst):
        for j in range(2):
            buf = step & 1
            if j == 0:
                frag_reads(s, 1, buf ^ 1)
                a(f"s_waitcnt lgkmcnt({nfr})")
            else:
                a("s_waitcnt lgkmcnt(0)")
                if s + 1 < nst:
                    a("s_barrier")
                    frag_reads(s + 1, 0, buf ^ 1)
            mfmas(buf, step == 0)
            step += 1
    a("s_nop 7")
    a("s_nop 7")
    a("s_mul_i32 s44, s42, 80")
    a("v_add_u32 v4, s44, v2")
    a("v_lshlrev_b32 v4, 12, v4")
    a("v_lshl_add_u32 v4, v3, 4, v4")
    a("s_lshl_b32 s46, s43, 6")
    a("v_add_u32 v4, s46, v4")
    for b in range(5):
        o = vR + b * 4
        for k in range(4):
            a(f"v_accvgpr_read_b32 v{vF}, a{b*8+2*k}")
            a(f"v_accvgpr_read_b32 v{vF+1}, a{b*8+2*k+1}")
            a(f"v_cvt_pk_bf16_f32 v{o+k}, v{vF}, v{vF+1}")
        a(f"s_mov_b32 s46, {b*16*4096}")
        a(f"buffer_store_dwordx4 v[{o}:{o+3}], v4, s[16:19], s46 offen")
    a.label(f"{L}_end")
    a("s_endpgm")
    return kernel_desc(L, 144 + 40, 80, 144), 163840


def gemma3_kernel(a):
    L = "gemma_kernel"
    NS, nst = 4, 10
    SB = 81920
    slotsz = 160 * 128
    kernel_header(a, L)
    a("s_cmp_ge_u32 s2, 256")
    a(f"s_cbranch_scc1 {L}_end")
    a(f"s_load_dwordx2 s[48:49], s[0:1], {KA['ws']}")
    a(f"s_load_dwordx4 s[52:55], s[0:1], {KA['hid_re']}")
    a("v_lshrrev_b32 v1, 6, v0")
    a("s_nop 0")
    a("v_readfirstlane_b32 s40, v1")
    a("v_and_b32 v1, 63, v0")
    a("v_and_b32 v2, 15, v1")
    a("v_lshrrev_b32 v3, 4, v1")
    a("s_and_b32 s3, s2, 7")
    a("s_lshr_b32 s4, s2, 3")
    a("s_and_b32 s5, s3, 1")
    a("s_lshl_b32 s5, s5, 2")
    a("s_and_b32 s6, s4, 3")
    a("s_add_u32 s5, s5, s6")
    a("s_lshr_b32 s6, s3, 1")
    a("s_lshl_b32 s6, s6, 3")
    a("s_lshr_b32 s7, s4, 2")
    a("s_add_u32 s6, s6, s7")
    a("s_cmp_lt_u32 s40, 4")
    a(f"s_cbranch_scc1 {L}_comp")
    a("s_sub_u32 s41, s40, 4")
    a("s_lshl_b32 s44, s41, 4")
    a("v_add_u32 v4, s44, v3")
    a("s_movk_i32 s45, 1280")
    a("v_mul_lo_u32 v5, v4, s45")
    a("v_lshl_add_u32 v5, v2, 4, v5")
    a("v_lshlrev_b32 v6, 5, v2")
    a("v_lshrrev_b32 v8, 3, v1")
    a("v_and_b32 v9, 7, v1")
    a("v_xor_b32 v9, v9, v3")
    a("s_and_b32 s44, s41, 1")
    a("s_lshl_b32 s44, s44, 2")
    a("v_xor_b32 v9, s44, v9")
    a("s_lshl_b32 s44, s41, 3")
    a("v_add_u32 v8, s44, v8")
    a("v_mul_lo_u32 v8, v8, s45")
    a("v_lshl_add_u32 v8, v9, 4, v8")
    a("s_lshl_b32 s42, s41, 10")
    a(f"s_add_u32 s42, s42, {SB}")
    a("s_waitcnt lgkmcnt(0)")
    a("s_cmp_ge_u32 s5, 4")
    a("s_cselect_b32 s8, s54, s52")
    a("s_cselect_b32 s9, s55, s53")
    a(f"s_mov_b32 s10, {160*1280}")
    a("s_mov_b32 s11, 0x00020000")
    a("s_and_b32 s7, s5, 3")
    a(f"s_mul_i32 s7, s7, {160*1280}")
    srd_add(a, 8, 7)
    srd(a, 12, 48, 49, 64 * 1280, WS["h"][0])
    a(f"s_mul_i32 s7, s6, {64*1280}")
    srd_add(a, 12, 7)
    srd(a, 20, 48, 49, WS["modf"][1], WS["modf"][0])
    q = []

    def wait_for(tag, extra=""):
        last = max(i for i, t in enumerate(q) if t == tag)
        a(f"s_waitcnt vmcnt({min(63, len(q)-1-last)}){extra}")

    def issue(s):
        for t in range(5):
            a(f"s_add_u32 m0, s42, {(s % NS)*slotsz + t*4096}")
            a(f"s_mov_b32 s46, {s*128 + t*32*1280}")
            a("buffer_load_dwordx4 v8, s[8:11], s46 offen lds")
            q.append(("S", s))
    Nr = lambda k, rp: 16 + (k * 4 + rp) * 4
    C1 = lambda k: 96 + k * 16
    SA = lambda k: 104 + k * 16
    for rp in range(4):
        a(f"s_movk_i32 s{56+rp}, {rp*4*1280}")

    def loadk(k):
        for rp in range(4):
            r = Nr(k, rp)
            a(f"buffer_load_dwordx4 v[{r}:{r+3}], v5, s[12:15], s{56+rp} offen offset:{k*256}")
            q.append(("K", k))
        for h in range(2):
            a(f"buffer_load_dwordx4 v[{C1(k)+4*h}:{C1(k)+4*h+3}], v6, s[20:23], 0 offen offset:{2560+k*512+h*16 if 2560+k*512+h*16 < 4096 else 0}" if False else
              f"buffer_load_dwordx4 v[{C1(k)+4*h}:{C1(k)+4*h+3}], v7, s[20:23], 0 offen offset:{k*512+h*16}")
            q.append(("K", k))
            a(f"buffer_load_dwordx4 v[{SA(k)+4*h}:{SA(k)+4*h+3}], v6, s[20:23], 0 offen offset:{k*512+h*16}")
            q.append(("K", k))
    a("v_add_u32 v7, 2560, v6")
    loadk(0); issue(0); issue(1); loadk(1); issue(2); issue(3); loadk(2); loadk(3); loadk(4)
    a("v_lshrrev_b32 v10, 1, v3")
    a("v_and_b32 v11, 7, v2")
    a("v_xor_b32 v10, v10, v11")
    a("v_lshrrev_b32 v11, 3, v2")
    a("v_lshlrev_b32 v11, 13, v11")
    a("v_lshl_add_u32 v11, v4, 7, v11")
    a("s_and_b32 s44, s41, 1")
    a("s_lshl_b32 s44, s44, 2")
    for h in range(2):
        a(f"s_add_u32 s45, s44, {2*h}")
        a(f"v_xor_b32 v9, s45, v10")
        a(f"v_lshl_add_u32 v{12+h}, v9, 4, v11")
        if h:
            a(f"v_add_u32 v{12+h}, {8*128}, v{12+h}")
        a(f"v_add_u32 v{14+h}, 0x8000, v{12+h}")
    T = 176

    def apply(k):
        wait_for(("K", k))
        for rp in range(4):
            for qq in range(4):
                r = Nr(k, rp) + qq
                unpack(a, T, T + 1, r)
                a(f"v_mul_f32 v{T}, v{T}, v{C1(k)+2*qq}")
                a(f"v_mul_f32 v{T+1}, v{T+1}, v{C1(k)+2*qq+1}")
                a(f"v_cvt_pk_bf16_f32 v{T+2}, v{T}, v{T+1}")
                unpack(a, T, T + 1, T + 2)
                a(f"v_add_f32 v{T}, v{T}, v{SA(k)+2*qq}")
                a(f"v_add_f32 v{T+1}, v{T+1}, v{SA(k)+2*qq+1}")
                a(f"v_cvt_pk_bf16_f32 v{r}, v{T}, v{T+1}")
            r = Nr(k, rp)
            off = k * 16384 + (rp & 1) * 512
            areg = 12 + (rp >> 1)
            if off >= 32768:
                off -= 32768
                areg += 2
            a(f"ds_write_b128 v{areg}, v[{r}:{r+3}] offset:{off}")
    for s in range(nst):
        if s < 5:
            apply(s)
        wait_for(("S", s), " lgkmcnt(0)")
        a("s_barrier")
        if s >= 1 and s - 1 + NS < nst:
            issue(s - 1 + NS)
    a("s_endpgm")
    a.label(f"{L}_comp")
    a("s_and_b32 s42, s40, 1")
    a("s_lshr_b32 s43, s40, 1")
    a("v_lshrrev_b32 v4, 1, v2")
    a("v_xor_b32 v4, v4, v3")
    a("v_and_b32 v5, 12, v2")
    a("v_lshlrev_b32 v5, 1, v5")
    a("v_and_b32 v6, 3, v2")
    a("v_or_b32 v5, v5, v6")
    vSA, vVA = 8, 16
    a(f"s_mul_i32 s44, s42, {80*128}")
    a(f"s_add_u32 s44, s44, {SB}")
    a(f"s_lshl_b32 s45, s43, 12")
    for j in range(2):
        a(f"v_xor_b32 v6, {4*j}, v4")
        a("v_lshlrev_b32 v6, 4, v6")
        a("v_lshl_add_u32 v7, v2, 7, v6")
        a("v_add_u32 v7, s44, v7")
        for sl in range(NS):
            a(f"v_add_u32 v{vSA+sl*2+j}, {sl*slotsz}, v7")
        a("v_lshl_add_u32 v7, v5, 7, v6")
        a(f"v_add_u32 v{vVA+j}, s45, v7")
        a(f"v_add_u32 v{vVA+2+j}, 0xa000, v{vVA+j}")
    a("s_mul_i32 s44, s42, 80")
    a("v_add_u32 v20, s44, v2")
    a("v_lshlrev_b32 v20, 12, v20")
    a("v_lshl_add_u32 v20, v3, 4, v20")
    a("s_lshl_b32 s46, s43, 6")
    a("v_add_u32 v20, s46, v20")
    a("s_waitcnt lgkmcnt(0)")
    srd(a, 16, 48, 49, 160 * 4096, WS["abt"][0])
    a(f"s_mul_i32 s7, s5, {160*4096}")
    srd_add(a, 16, 7)
    a("s_lshl_b32 s7, s6, 7")
    srd_add(a, 16, 7)
    vF = 24
    nfr = 7
    vA = 80
    vR = 120

    def frag_reads(s, j, buf):
        for vb in range(2):
            r = vF + (buf * nfr + 5 + vb) * 4
            hi = s >= 5
            off = (s - 5 * hi) * 8192 + vb * 512
            a(f"ds_read_b128 v[{r}:{r+3}], v{vVA+2*hi+j} offset:{off}")
        for b in range(5):
            r = vF + (buf * nfr + b) * 4
            a(f"ds_read_b128 v[{r}:{r+3}], v{vSA+(s%NS)*2+j} offset:{b*2048}")

    def mfmas(buf, first):
        for b in range(5):
            for vb in range(2):
                ar = vA + (b * 2 + vb) * 4
                sf = vF + (buf * nfr + b) * 4
                vf = vF + (buf * nfr + 5 + vb) * 4
                c = "0" if first else f"v[{ar}:{ar+3}]"
                a(f"v_mfma_f32_16x16x32_bf16 v[{ar}:{ar+3}], v[{vf}:{vf+3}], v[{sf}:{sf+3}], {c}")

    a("s_barrier")
    frag_reads(0, 0, 0)
    step = 0
    for s in range(nst):
        for j in range(2):
            buf = step & 1
            if j == 0:
                frag_reads(s, 1, buf ^ 1)
                a(f"s_waitcnt lgkmcnt({nfr})")
            else:
                a("s_waitcnt lgkmcnt(0)")
                if s + 1 < nst:
                    a("s_barrier")
                    frag_reads(s + 1, 0, buf ^ 1)
            mfmas(buf, step == 0)
            step += 1
    a("s_nop 7")
    a("s_nop 7")
    for b in range(5):
        o = vR + b * 4
        for k in range(4):
            a(f"v_cvt_pk_bf16_f32 v{o+k}, v{vA+b*8+2*k}, v{vA+b*8+2*k+1}")
        a(f"s_mov_b32 s46, {b*16*4096}")
        a(f"buffer_store_dwordx4 v[{o}:{o+3}], v20, s[16:19], s46 offen")
    a.label(f"{L}_end")
    a("s_endpgm")
    return kernel_desc(L, 180, 64, 180), 163840


def load_ptrs(a, names):
    for k, nm in enumerate(names):
        a(f"s_load_dwordx2 s[{48+2*k}:{49+2*k}], s[0:1], {KA[nm]}")
    a("s_waitcnt lgkmcnt(0)")


def setup_A(a):
    load_ptrs(a, ["ws", "hid_re", "hid_im"])
    a("s_and_b32 s3, s2, 7")
    a("s_lshr_b32 s4, s2, 3")
    a("s_and_b32 s5, s3, 3")
    a("s_lshl_b32 s5, s5, 2")
    a("s_and_b32 s6, s4, 3")
    a("s_add_u32 s5, s5, s6")
    a("s_lshr_b32 s6, s3, 2")
    a("s_lshl_b32 s6, s6, 3")
    a("s_lshr_b32 s7, s4, 2")
    a("s_add_u32 s6, s6, s7")
    a("s_cmp_ge_u32 s5, 8")
    a("s_cselect_b32 s8, s52, s50")
    a("s_cselect_b32 s9, s53, s51")
    a(f"s_mov_b32 s10, {80*1280}")
    a("s_mov_b32 s11, 0x00020000")
    a("s_and_b32 s7, s5, 7")
    a(f"s_mul_i32 s7, s7, {80*1280}")
    srd_add(a, 8, 7)
    srd(a, 12, 48, 49, 128 * 1280, WS["h"][0])
    a(f"s_mul_i32 s7, s6, {128*1280}")
    srd_add(a, 12, 7)
    srd(a, 16, 48, 49, 80 * 4096, WS["abt"][0])
    a(f"s_mul_i32 s7, s5, {80*4096}")
    srd_add(a, 16, 7)
    a("s_lshl_b32 s7, s6, 8")
    srd_add(a, 16, 7)
    return 1280, 1280


def pre_A(a, vE):
    a(f"s_load_dwordx4 s[56:59], s[0:1], {KA['seq_re']}")
    a("s_and_b32 s36, s2, 127")
    a("s_lshl_b32 s36, s36, 16")
    a("s_lshl_b32 s37, s40, 14")
    a("s_add_u32 s36, s36, s37")
    a("v_lshlrev_b32 v4, 4, v1")
    a("v_add_u32 v4, s36, v4")
    a("s_waitcnt lgkmcnt(0)")
    a("s_cmp_ge_u32 s2, 128")
    a("s_cselect_b32 s60, s58, s56")
    a("s_cselect_b32 s61, s59, s57")
    a(f"s_mov_b32 s62, {2048*2048*2}")
    a("s_mov_b32 s63, 0x00020000")
    for i in range(16):
        a(f"s_mov_b32 s37, {(i//4)*4096}")
        a(f"buffer_load_dwordx4 v[{vE+4*(i&7)}:{vE+4*(i&7)+3}], v4, s[60:63], s37 offen offset:{(i%4)*1024}")
    return 16


def epi_A(a, vR, vF, vE, nsb):
    a("v_lshlrev_b32 v4, 12, v2")
    a("v_lshl_add_u32 v4, v3, 4, v4")
    a("s_lshl_b32 s46, s40, 6")
    a("v_add_u32 v4, s46, v4")
    for b in range(nsb):
        r = vR + b * 8
        o = vF + (b & 1) * 4
        for k in range(4):
            a(f"v_cvt_pk_bf16_f32 v{o+k}, v{r+2*k}, v{r+2*k+1}")
        a(f"s_mov_b32 s46, {b*16*4096}")
        a(f"buffer_store_dwordx4 v[{o}:{o+3}], v4, s[16:19], s46 offen")


def setup_B(a):
    load_ptrs(a, ["ws", "seq_re", "seq_im"])
    a("s_and_b32 s3, s2, 7")
    a("s_lshr_b32 s4, s2, 3")
    if XB:
        a("s_and_b32 s5, s4, 1")
        a("s_lshl_b32 s6, s3, 1")
        a("s_bfe_u32 s7, s4, 0x10001")
        a("s_add_u32 s6, s6, s7")
        a("s_lshr_b32 s7, s4, 2")
    else:
        a("s_and_b32 s5, s3, 1")
        a("s_lshr_b32 s6, s3, 1")
        a("s_lshl_b32 s6, s6, 2")
        a("s_and_b32 s7, s4, 3")
        a("s_add_u32 s6, s6, s7")
        a("s_lshr_b32 s7, s4, 2")
    srd(a, 8, 48, 49, 80 * 4096, WS["abt"][0])
    a(f"s_mul_i32 s20, s5, {640*4096}")
    a(f"s_mul_i32 s21, s7, {80*4096}")
    a("s_add_u32 s20, s20, s21")
    srd_add(a, 8, 20)
    a("s_cmp_eq_u32 s5, 1")
    a("s_cselect_b32 s12, s52, s50")
    a("s_cselect_b32 s13, s53, s51")
    a(f"s_mov_b32 s14, {128*4096}")
    a("s_mov_b32 s15, 0x00020000")
    a(f"s_mul_i32 s20, s6, {128*4096}")
    srd_add(a, 12, 20)
    srd(a, 16, 48, 49, 128 * 1280, WS["y"][0])
    a(f"s_mul_i32 s20, s5, {2048*1280}")
    a(f"s_mul_i32 s21, s6, {128*1280}")
    a("s_add_u32 s20, s20, s21")
    a("s_mul_i32 s21, s7, 160")
    a("s_add_u32 s20, s20, s21")
    srd_add(a, 16, 20)
    return 4096, 4096


PFD = 13
XB = int(__import__('os').environ.get('XB', '0'))
XA = int(__import__('os').environ.get('XA', '0'))
XL = int(__import__('os').environ.get('XL', '1'))
RAMP1 = 1
STAMP = int(__import__('os').environ.get('STAMP', '0'))
STAMPK = [0]
TLBWARM = int(__import__('os').environ.get('TLBW', '0'))


PFMODE = int(__import__("os").environ.get("PFMODE", "3"))


def pre_B(a, vE):
    a("s_lshl_b32 s58, s7, 4")
    a("s_lshl_b32 s59, s40, 2")
    a("s_add_u32 s58, s58, s59")
    a("v_add_u32 v7, s58, v3")
    a("v_lshlrev_b32 v7, 12, v7")
    a("v_lshl_add_u32 v7, v2, 4, v7")
    if PFMODE == 1:
        for i in range(3, 16):
            a(f"buffer_load_dwordx4 v[{vE+4*(i&7)}:{vE+4*(i&7)+3}], v7, s[12:15], 0 offen offset:{i*256}")
    return 16


def stage_hook_B(a, s, vE):
    if PFMODE == 2 and s == 0:
        for i in range(3, 16):
            a(f"buffer_load_dwordx4 v[{vE+4*(i&7)}:{vE+4*(i&7)+3}], v7, s[12:15], 0 offen offset:{i*256}")
    if PFMODE == 3 and s < 4:
        for i in range(4 + 3 * s, min(16, 7 + 3 * s)):
            a(f"buffer_load_dwordx4 v[{vE+4*(i&7)}:{vE+4*(i&7)+3}], v7, s[12:15], 0 offen offset:{i*256}")


def make_epi_S(ldo, relu=False, resid=False):
    def epi(a, vR, vF, vE, nsb):
        a("s_lshl_b32 s46, s42, 5")
        a("v_add_u32 v4, s46, v2")
        a(f"s_movk_i32 s46, {ldo}")
        a("v_mul_lo_u32 v4, v4, s46")
        a("v_lshl_add_u32 v5, v3, 3, v4")
        a("v_lshl_add_u32 v4, v3, 4, v4")
        a(f"s_mov_b32 s47, {16*ldo}")
        if resid:
            pass
        cnt = 0
        for vb in range(2):
            so = "s47" if vb else "0"
            for p in range((nsb + 1) // 2):
                full = 2 * p + 1 < nsb
                nreg = 4 if full else 2
                o = vF + (cnt & 3) * 4
                cnt += 1
                xr = vE + 12 + vb * 10 + p * 4
                for k in range(nreg):
                    b = 2 * p + (k >> 1)
                    r = vR + (b * 2 + vb) * 4 + (k & 1) * 2
                    if relu:
                        a(f"v_max_f32 v{r}, 0, v{r}")
                        a(f"v_max_f32 v{r+1}, 0, v{r+1}")
                    a(f"v_cvt_pk_bf16_f32 v{o+k}, v{r}, v{r+1}")
                if resid:
                    t = vF + 24
                    for k in range(nreg):
                        unpack(a, t, t + 1, o + k)
                        unpack(a, t + 2, t + 3, vE + p * 4 + k)
                        a(f"v_mul_f32 v{t}, v{t}, v{t+2}")
                        a(f"v_mul_f32 v{t+1}, v{t+1}, v{t+3}")
                        a(f"v_cvt_pk_bf16_f32 v{t+4}, v{t}, v{t+1}")
                        unpack(a, t, t + 1, t + 4)
                        unpack(a, t + 2, t + 3, xr + k)
                        a(f"v_add_f32 v{t}, v{t}, v{t+2}")
                        a(f"v_add_f32 v{t+1}, v{t+1}, v{t+3}")
                        a(f"v_cvt_pk_bf16_f32 v{o+k}, v{t}, v{t+1}")
                a(f"buffer_store_dwordx{nreg} v[{o}:{o+nreg-1}], v{4 if full else 5}, s[16:19], {so} offen offset:{p*64}")
    return epi


def epi_D(a, vR, vF, vE, nsb):
    t = vF + 24
    for p in range(3):
        full = p < 2
        nreg = 4 if full else 2
        o = vF + p * 4
        for k in range(nreg):
            b = 2 * p + (k >> 1)
            r = vR + b * 4 + (k & 1) * 2
            a(f"v_cvt_pk_bf16_f32 v{o+k}, v{r}, v{r+1}")
            unpack(a, t, t + 1, o + k)
            unpack(a, t + 2, t + 3, vE + p * 4 + k)
            a(f"v_mul_f32 v{t}, v{t}, v{t+2}")
            a(f"v_mul_f32 v{t+1}, v{t+1}, v{t+3}")
            a(f"v_cvt_pk_bf16_f32 v{t+4}, v{t}, v{t+1}")
            unpack(a, t, t + 1, t + 4)
            unpack(a, t + 2, t + 3, vE + 12 + p * 4 + k)
            a(f"v_add_f32 v{t}, v{t}, v{t+2}")
            a(f"v_add_f32 v{t+1}, v{t+1}, v{t+3}")
            a(f"v_cvt_pk_bf16_f32 v{o+k}, v{t}, v{t+1}")
        a(f"buffer_store_dwordx{nreg} v[{o}:{o+nreg-1}], v{vE+24 if full else vE+25}, s[16:19], 0 offen offset:{p*64}")


def setup_C(a):
    load_ptrs(a, ["ws"])
    a("s_and_b32 s3, s2, 7")
    a("s_lshr_b32 s4, s2, 3")
    if XL:
        a("s_lshr_b32 s5, s4, 1")
        a("s_lshl_b32 s6, s3, 1")
        a("s_and_b32 s7, s4, 1")
        a("s_add_u32 s6, s6, s7")
    else:
        a("s_and_b32 s5, s3, 3")
        a("s_lshl_b32 s5, s5, 2")
        a("s_and_b32 s6, s4, 3")
        a("s_add_u32 s5, s5, s6")
        a("s_lshr_b32 s6, s3, 2")
        a("s_lshl_b32 s6, s6, 3")
        a("s_lshr_b32 s7, s4, 2")
        a("s_add_u32 s6, s6, s7")
    srd(a, 8, 48, 49, 96 * 1280, WS["w1t"][0])
    a(f"s_mul_i32 s20, s5, {96*1280}")
    srd_add(a, 8, 20)
    srd(a, 12, 48, 49, 128 * 1280, WS["h2"][0])
    a(f"s_mul_i32 s20, s6, {128*1280}")
    srd_add(a, 12, 20)
    srd(a, 16, 48, 49, 128 * 3072, WS["h1"][0])
    a(f"s_mul_i32 s20, s6, {128*3072}")
    a("s_mul_i32 s21, s5, 192")
    a("s_add_u32 s20, s20, s21")
    srd_add(a, 16, 20)
    return 1280, 1280


def setup_D(a):
    load_ptrs(a, ["ws", "out"])
    a("s_and_b32 s3, s2, 7")
    a("s_lshr_b32 s4, s2, 3")
    if XL:
        a("s_lshr_b32 s5, s4, 2")
        a("s_lshl_b32 s6, s3, 2")
        a("s_and_b32 s7, s4, 3")
        a("s_add_u32 s6, s6, s7")
    else:
        a("s_and_b32 s5, s3, 1")
        a("s_lshl_b32 s5, s5, 2")
        a("s_and_b32 s6, s4, 3")
        a("s_add_u32 s5, s5, s6")
        a("s_lshr_b32 s6, s3, 1")
        a("s_lshl_b32 s6, s6, 3")
        a("s_lshr_b32 s7, s4, 2")
        a("s_add_u32 s6, s6, s7")
    srd(a, 8, 48, 49, 80 * 3072, WS["w2t"][0])
    a(f"s_mul_i32 s20, s5, {80*3072}")
    srd_add(a, 8, 20)
    srd(a, 12, 48, 49, 64 * 3072, WS["h1"][0])
    a(f"s_mul_i32 s20, s6, {64*3072}")
    srd_add(a, 12, 20)
    a(f"s_mul_i32 s28, s6, {64*1280}")
    a("s_mul_i32 s29, s5, 160")
    a("s_add_u32 s30, s28, s29")
    srd(a, 16, 50, 51, 64 * 1280 - 0)
    srd_add(a, 16, 30)
    srd(a, 20, 48, 49, 64 * 1280, WS["x1"][0])
    srd_add(a, 20, 30)
    srd(a, 24, 48, 49, 160, WS["mod"][0] + 5 * 1280)
    srd_add(a, 24, 29)
    return 3072, 3072


def pre_epi_D(a, vE):
    a("v_lshlrev_b32 v4, 4, v3")
    a("v_lshlrev_b32 v5, 3, v3")
    a(f"buffer_load_dwordx4 v[{vE}:{vE+3}], v4, s[24:27], 0 offen")
    a(f"buffer_load_dwordx4 v[{vE+4}:{vE+7}], v4, s[24:27], 0 offen offset:64")
    a(f"buffer_load_dwordx2 v[{vE+8}:{vE+9}], v5, s[24:27], 0 offen offset:128")
    a("s_lshl_b32 s46, s42, 5")
    a("s_lshl_b32 s47, s43, 4")
    a("s_add_u32 s46, s46, s47")
    a("v_add_u32 v4, s46, v2")
    a("s_movk_i32 s46, 1280")
    a("v_mul_lo_u32 v4, v4, s46")
    a(f"v_lshl_add_u32 v{vE+25}, v3, 3, v4")
    a(f"v_lshl_add_u32 v{vE+24}, v3, 4, v4")
    r = vE + 12
    a(f"buffer_load_dwordx4 v[{r}:{r+3}], v{vE+24}, s[20:23], 0 offen")
    a(f"buffer_load_dwordx4 v[{r+4}:{r+7}], v{vE+24}, s[20:23], 0 offen offset:64")
    a(f"buffer_load_dwordx2 v[{r+8}:{r+9}], v{vE+25}, s[20:23], 0 offen offset:128")
    return 9


def main():
    a = Asm()
    descs = []
    launches = []
    FUSE = int(__import__("os").environ.get("FUSE", "0"))
    if not FUSE:
        descs.append(prep_kernel(a)); launches.append(("prep_kernel", PREP_WGS, 256, 10240))
    d, lds = fa_kernel(a) if FUSE else (gemma3_kernel(a) if int(__import__('os').environ.get('A3', '1')) else gemma2_kernel(a))
    descs.append(d); launches.append(("gemma_kernel", 256, 512, lds))
    d, lds = gemm_kernel(a, "gemmb_kernel", 2048, 80, 128, 128, True, 1, 3, setup_B, make_epi_S(1280), pre_epi=pre_B, stage_hook=stage_hook_B)
    descs.append(d); launches.append(("gemmb_kernel", 256, 512, lds))
    descs.append(ln_kernel(a, True)); launches.append(("ln2_kernel", LN2_WGS, 256, 10240))
    d, lds = gemm_kernel(a, "gemmc_kernel", 640, 96, 128, 64, True, 1, 5, setup_C, make_epi_S(3072, relu=True))
    descs.append(d); launches.append(("gemmc_kernel", 256, 512, lds))
    d, lds = gemm_kernel(a, "gemmd_kernel", 1536, 80, 64, 128, True, 2, 4, setup_D, epi_D,
                         pre_epi=pre_epi_D)
    descs.append(d); launches.append(("gemmd_kernel", 256, 512, lds))

    hdr = open(f"cdna_kernels/{NAME}.s.ref").read().split("\n")
    out = []
    for ln in hdr:
        if ln.startswith(";") and "@launch" not in ln and "Override" not in ln and "grid=ceil" not in ln:
            out.append(ln)
        elif not ln.startswith(";"):
            break
    for k, g, b, lds in launches:
        out.append(f"; @launch kernel={k} grid=({g},1,1) block=({b},1,1) lds={lds}")
    out.append('.amdgcn_target "amdgcn-amd-amdhsa--gfx950"')
    out.append(".text")
    txt = "\n".join(out) + "\n" + a.text()
    txt += '.section .rodata,"a"\n'
    for d in descs:
        txt += ".p2align 6\n" + d
    path = sys.argv[1] if len(sys.argv) > 1 else f"cdna_kernels/{NAME}.s"
    open(path, "w").write(txt)
    print("wrote", path, len(txt), "bytes")


if __name__ == "__main__":
    main()
```

```python
import sys

NAME = "adaLN_cond__spectral_fnet__dense_activation_relu__prompt"
S_LEN, D, DFF = 2048, 640, 1536

KA = dict(x=0, seq_re=8, seq_im=16, hid_re=24, hid_im=32, bx=40, w1=48, w2=56, c=64, wmod=72,
          out=80, dbg=88, ws=96)

def _al(x, a=0x10000):
    return (x + a - 1) // a * a
WS = {}
_o = 0
for nm, sz in [("mod", 3840 * 2), ("modf", 3840 * 4), ("w1t", DFF * D * 2), ("w2t", D * DFF * 2), ("h", S_LEN * D * 2),
               ("abt", 2 * D * S_LEN * 2), ("y", 2 * S_LEN * D * 2), ("x1", S_LEN * D * 2),
               ("h2", S_LEN * D * 2), ("h1", S_LEN * DFF * 2)]:
    WS[nm] = (_o, sz)
    _o = _al(_o + sz)


CODEPF = int(__import__('os').environ.get('CODEPF', '1'))
PREP_WGS = 152 + 256 + 8 * CODEPF
LN2_WGS = 256 + 480
LN1_WGS = 256


class Asm:
    def __init__(self):
        self.lines = []

    def __call__(self, s):
        import re
        m = re.search(r"offset:(\d+)", s)
        if m and s.startswith("buffer_"):
            assert int(m.group(1)) <= 4095, s
        if m and s.startswith("ds_"):
            assert int(m.group(1)) <= 65535, s
        self.lines.append("    " + s)

    def label(self, s):
        self.lines.append(s + ":")

    def raw(self, s):
        self.lines.append(s)

    def text(self):
        return "\n".join(self.lines) + "\n"


def srd(a, sreg, base_lo, base_hi, nbytes, add=0):
    if add:
        a(f"s_add_u32 s{sreg}, s{base_lo}, {add}")
        a(f"s_addc_u32 s{sreg+1}, s{base_hi}, 0")
    else:
        a(f"s_mov_b32 s{sreg}, s{base_lo}")
        a(f"s_mov_b32 s{sreg+1}, s{base_hi}")
    a(f"s_mov_b32 s{sreg+2}, {nbytes}")
    a(f"s_mov_b32 s{sreg+3}, 0x00020000")


def srd_add(a, sreg, soff):
    a(f"s_add_u32 s{sreg}, s{sreg}, s{soff}")
    a(f"s_addc_u32 s{sreg+1}, s{sreg+1}, 0")


def kernel_header(a, label):
    a.raw(f".globl {label}")
    a.raw(".p2align 8")
    a.raw(f".type {label},@function")
    a.label(label)


def kernel_desc(label, nvgpr, nsgpr, accum):
    return f""".amdhsa_kernel {label}
  .amdhsa_next_free_vgpr {nvgpr}
  .amdhsa_next_free_sgpr {nsgpr}
  .amdhsa_accum_offset {accum}
  .amdhsa_group_segment_fixed_size 0
  .amdhsa_kernarg_size 104
  .amdhsa_user_sgpr_count 2
  .amdhsa_user_sgpr_kernarg_segment_ptr 1
  .amdhsa_system_sgpr_workgroup_id_x 1
  .amdhsa_float_denorm_mode_32 3
  .amdhsa_float_denorm_mode_16_64 3
.end_amdhsa_kernel
"""


def unpack(a, lo, hi, src):
    a(f"v_lshlrev_b32 v{lo}, 16, v{src}")
    a(f"v_and_b32 v{hi}, 0xffff0000, v{src}")


def transpose_body(a, L, base):
    a.label(f"{L}_tr")
    a(f"s_load_dwordx2 s[4:5], s[0:1], {KA['ws']}")
    a(f"s_load_dwordx4 s[28:31], s[0:1], {KA['w1']}")
    a(f"s_sub_u32 s6, s2, {base}")
    a("s_waitcnt lgkmcnt(0)")
    a("s_cmp_ge_u32 s6, 240")
    a(f"s_cbranch_scc1 {L}_tr2")
    a("s_mul_i32 s7, s6, 2731")
    a("s_lshr_b32 s7, s7, 16")
    a("s_mul_i32 s20, s7, 24")
    a("s_sub_u32 s20, s6, s20")
    srd(a, 8, 28, 29, 640 * 1536 * 2)
    srd(a, 12, 4, 5, WS["w1t"][1], WS["w1t"][0])
    a("s_movk_i32 s21, 3072")
    a("s_movk_i32 s22, 1280")
    a(f"s_branch {L}_trgo")
    a.label(f"{L}_tr2")
    a("s_sub_u32 s6, s6, 240")
    a("s_mul_i32 s7, s6, 6554")
    a("s_lshr_b32 s7, s7, 16")
    a("s_mul_i32 s20, s7, 10")
    a("s_sub_u32 s20, s6, s20")
    srd(a, 8, 30, 31, 640 * 1536 * 2)
    srd(a, 12, 4, 5, WS["w2t"][1], WS["w2t"][0])
    a("s_movk_i32 s21, 1280")
    a("s_movk_i32 s22, 3072")
    a.label(f"{L}_trgo")
    a("v_lshrrev_b32 v1, 3, v0")
    a("v_and_b32 v2, 7, v0")
    a("s_lshl_b32 s23, s7, 6")
    a("v_add_u32 v3, s23, v1")
    a("v_mul_lo_u32 v3, v3, s21")
    a("v_lshl_add_u32 v3, v2, 4, v3")
    a("s_lshl_b32 s24, s20, 7")
    a("v_add_u32 v3, s24, v3")
    a("s_lshl_b32 s25, s21, 5")
    a("buffer_load_dwordx4 v[8:11], v3, s[8:11], 0 offen")
    a("buffer_load_dwordx4 v[12:15], v3, s[8:11], s25 offen")
    a("s_movk_i32 s26, 1152")
    a("v_mul_lo_u32 v4, v2, s26")
    a("v_lshl_add_u32 v4, v1, 1, v4")
    a("s_waitcnt vmcnt(1)")
    for q in range(4):
        a(f"ds_write_b16 v4, v{8+q} offset:{(2*q)*144}")
        a(f"ds_write_b16_d16_hi v4, v{8+q} offset:{(2*q+1)*144}")
    a("s_waitcnt vmcnt(0)")
    for q in range(4):
        a(f"ds_write_b16 v4, v{12+q} offset:{(2*q)*144+64}")
        a(f"ds_write_b16_d16_hi v4, v{12+q} offset:{(2*q+1)*144+64}")
    a("s_waitcnt lgkmcnt(0)")
    a("s_barrier")
    a("s_movk_i32 s26, 144")
    a("v_mul_lo_u32 v5, v1, s26")
    a("v_lshl_add_u32 v5, v2, 4, v5")
    a("ds_read_b128 v[8:11], v5")
    a(f"ds_read_b128 v[12:15], v5 offset:{32*144}")
    a("s_lshl_b32 s23, s20, 6")
    a("v_add_u32 v6, s23, v1")
    a("v_mul_lo_u32 v6, v6, s22")
    a("v_lshl_add_u32 v6, v2, 4, v6")
    a("s_lshl_b32 s24, s7, 7")
    a("v_add_u32 v6, s24, v6")
    a("s_lshl_b32 s25, s22, 5")
    a("s_waitcnt lgkmcnt(1)")
    a("buffer_store_dwordx4 v[8:11], v6, s[12:15], 0 offen")
    a("s_waitcnt lgkmcnt(0)")
    a("buffer_store_dwordx4 v[12:15], v6, s[12:15], s25 offen")
    a(f"s_branch {L}_end")


def prep_kernel(a):
    L = "prep_kernel"
    kernel_header(a, L)
    a(f"s_cmp_ge_u32 s2, {PREP_WGS}")
    a(f"s_cbranch_scc1 {L}_end")
    if CODEPF:
        a("s_cmp_lt_u32 s2, 408")
        a(f"s_cbranch_scc1 {L}_nocp")
        a("s_getpc_b64 s[4:5]")
        a.label(f"{L}_pcref")
        a(f"s_sub_u32 s4, s4, {L}_pcref - {L}")
        a("s_subb_u32 s5, s5, 0")
        a("v_lshlrev_b32 v1, 4, v0")
        a(f"s_mov_b32 s6, code_end_label - {L} - 16")
        for i in range(12):
            a("v_min_u32 v2, s6, v1")
            a(f"global_load_dwordx4 v[{4+4*i}:{7+4*i}], v2, s[4:5] offset:0")
            a("v_add_u32 v1, 0x1000, v1")
        a("s_endpgm")
        a.label(f"{L}_nocp")
    a("s_cmp_ge_u32 s2, 152")
    a(f"s_cbranch_scc1 {L}_ln")
    a("s_cmp_ge_u32 s2, 146")
    a(f"s_cbranch_scc1 {L}_end")
    a("s_cmp_ge_u32 s2, 120")
    a(f"s_cbranch_scc1 {L}_pf")
    a(f"s_load_dwordx2 s[4:5], s[0:1], {KA['ws']}")
    a(f"s_load_dwordx4 s[32:35], s[0:1], {KA['c']}")
    a("s_waitcnt lgkmcnt(0)")
    a("s_and_b32 s6, s2, 7")
    a("s_mul_i32 s6, s6, 15")
    a("s_lshr_b32 s7, s2, 3")
    a("s_add_u32 s6, s6, s7")
    srd(a, 8, 34, 35, 640 * 3840 * 2)
    srd(a, 12, 32, 33, 640 * 2)
    srd(a, 16, 4, 5, WS["mod"][1], WS["mod"][0])
    a("v_lshrrev_b32 v1, 2, v0")
    a("v_and_b32 v2, 3, v0")
    a("s_movk_i32 s20, 7680")
    a("v_mul_lo_u32 v3, v1, s20")
    a("v_lshl_add_u32 v3, v2, 4, v3")
    a("s_lshl_b32 s21, s6, 6")
    a("v_add_u32 v3, s21, v3")
    a("v_lshlrev_b32 v4, 1, v1")
    for p in range(10):
        a(f"buffer_load_ushort v{10+p}, v4, s[12:15], 0 offen offset:{p*128}")
    for p in range(10):
        a(f"s_mov_b32 s22, {p*64*7680}")
        a(f"buffer_load_dwordx4 v[{20+4*p}:{23+4*p}], v3, s[8:11], s22 offen")
    for k in range(8):
        a(f"v_mov_b32 v{60+k}, 0")
    a("s_waitcnt vmcnt(10)")
    a("s_mov_b32 s23, 0xbfb8aa3b")
    for p in range(10):
        a(f"v_lshlrev_b32 v{10+p}, 16, v{10+p}")
        a(f"v_mul_f32 v70, s23, v{10+p}")
        a("v_exp_f32 v70, v70")
        a("s_nop 0")
        a("v_add_f32 v70, 1.0, v70")
        a("v_rcp_f32 v70, v70")
        a("s_nop 0")
        a(f"v_mul_f32 v70, v{10+p}, v70")
        a("v_cvt_pk_bf16_f32 v70, v70, v70")
        a(f"v_lshlrev_b32 v{10+p}, 16, v70")
    for p in range(10):
        a(f"s_waitcnt vmcnt({9-p})")
        for q in range(4):
            unpack(a, 70, 71, 20 + 4 * p + q)
            a(f"v_fmac_f32 v{60+2*q}, v{10+p}, v70")
            a(f"v_fmac_f32 v{61+2*q}, v{10+p}, v71")
    a("v_lshlrev_b32 v5, 7, v1")
    a("v_lshl_add_u32 v5, v2, 5, v5")
    a("ds_write_b128 v5, v[60:63]")
    a("ds_write_b128 v5, v[64:67] offset:16")
    a("s_waitcnt lgkmcnt(0)")
    a("s_barrier")
    a("v_and_b32 v6, 31, v0")
    a("v_lshrrev_b32 v7, 5, v0")
    a("v_lshlrev_b32 v8, 10, v7")
    a("v_lshl_add_u32 v8, v6, 2, v8")
    for i in range(8):
        a(f"ds_read_b32 v{20+i}, v8 offset:{i*128}")
    a("s_waitcnt lgkmcnt(0)")
    a("v_add_f32 v20, v20, v21")
    a("v_add_f32 v22, v22, v23")
    a("v_add_f32 v24, v24, v25")
    a("v_add_f32 v26, v26, v27")
    a("v_add_f32 v20, v20, v22")
    a("v_add_f32 v24, v24, v26")
    a("v_add_f32 v20, v20, v24")
    a("v_lshlrev_b32 v9, 2, v0")
    a("ds_write_b32 v9, v20 offset:8192")
    a("s_waitcnt lgkmcnt(0)")
    a("s_barrier")
    a("v_lshlrev_b32 v9, 2, v6")
    for i in range(8):
        a(f"ds_read_b32 v{20+i}, v9 offset:{8192+i*128}")
    a("s_waitcnt lgkmcnt(0)")
    a("v_add_f32 v20, v20, v21")
    a("v_add_f32 v22, v22, v23")
    a("v_add_f32 v24, v24, v25")
    a("v_add_f32 v26, v26, v27")
    a("v_add_f32 v20, v20, v22")
    a("v_add_f32 v24, v24, v26")
    a("v_add_f32 v20, v20, v24")
    a("v_cvt_pk_bf16_f32 v20, v20, v20")
    a("v_lshlrev_b32 v21, 16, v20")
    a("v_add_f32 v22, 1.0, v21")
    a("v_cvt_pk_bf16_f32 v22, v22, v22")
    a("v_lshlrev_b32 v22, 16, v22")
    a("s_mul_i32 s26, s6, 3277")
    a("s_lshr_b32 s26, s26, 16")
    a("s_cmp_eq_u32 s26, 1")
    a("s_cselect_b32 s27, 1, 0")
    a("s_cmp_eq_u32 s26, 4")
    a("s_cselect_b32 s27, 1, s27")
    a("s_cmp_eq_u32 s27, 1")
    a(f"s_cbranch_scc0 {L}_gnc")
    a("v_mov_b32 v21, v22")
    a.label(f"{L}_gnc")
    srd(a, 28, 4, 5, WS["modf"][1], WS["modf"][0])
    a("v_lshlrev_b32 v9, 1, v6")
    a("v_add_u32 v9, s21, v9")
    a("v_lshlrev_b32 v10, 1, v9")
    a("v_cmp_gt_u32 vcc, 32, v0")
    a("s_and_saveexec_b64 s[24:25], vcc")
    a(f"s_cbranch_execz {L}_end")
    a("buffer_store_short v20, v9, s[16:19], 0 offen")
    a("buffer_store_dword v21, v10, s[28:31], 0 offen")
    a(f"s_branch {L}_end")
    a.label(f"{L}_pf")
    a(f"s_load_dwordx8 s[28:35], s[0:1], {KA['seq_re']}")
    a("s_sub_u32 s6, s2, 120")
    a("s_waitcnt lgkmcnt(0)")
    a("s_mov_b32 s8, s32")
    a("s_mov_b32 s9, s33")
    a(f"s_mov_b32 s10, {640*640*2}")
    a("s_mov_b32 s11, 0x00020000")
    a("s_cmp_lt_u32 s6, 13")
    a(f"s_cbranch_scc1 {L}_pfgo")
    a("s_sub_u32 s6, s6, 13")
    a("s_mov_b32 s8, s34")
    a("s_mov_b32 s9, s35")
    a.label(f"{L}_pfgo")
    a("s_lshl_b32 s6, s6, 16")
    a("v_lshlrev_b32 v1, 4, v0")
    a("v_add_u32 v1, s6, v1")
    for i in range(16):
        a(f"s_mov_b32 s7, {i*4096}")
        a(f"buffer_load_dwordx4 v[{4+4*i}:{7+4*i}], v1, s[8:11], s7 offen")
    a(f"s_branch {L}_end")
    a.label(f"{L}_ln")
    a(f"s_load_dwordx2 s[4:5], s[0:1], {KA['ws']}")
    a(f"s_load_dwordx2 s[6:7], s[0:1], {KA['x']}")
    a("s_sub_u32 s3, s2, 152")
    if XL:
        a("s_and_b32 s20, s3, 7")
        a("s_lshl_b32 s20, s20, 5")
        a("s_lshr_b32 s3, s3, 3")
        a("s_add_u32 s3, s3, s20")
    a("v_lshrrev_b32 v1, 5, v0")
    a("s_lshl_b32 s3, s3, 3")
    a("v_add_u32 v1, s3, v1")
    a("v_and_b32 v2, 31, v0")
    a("v_lshlrev_b32 v2, 3, v2")
    a("s_movk_i32 s3, 1280")
    a("v_mul_lo_u32 v1, v1, s3")
    a("v_add_u32 v1, v1, v2")
    a("s_waitcnt lgkmcnt(0)")
    NB = S_LEN * D * 2
    srd(a, 8, 6, 7, NB)
    srd(a, 16, 4, 5, NB, WS["h"][0])
    for i in range(5):
        a(f"buffer_load_dwordx2 v[{10+2*i}:{11+2*i}], v1, s[8:11], 0 offen offset:{i*256}")
    a("s_waitcnt vmcnt(0)")
    for k in range(10):
        unpack(a, 20 + 2 * k, 21 + 2 * k, 10 + k)
    ln_core(a, 20, 0, 0, 40, 50, apply=False)
    for i in range(5):
        a(f"buffer_store_dwordx2 v[{40+2*i}:{41+2*i}], v1, s[16:19], 0 offen offset:{i*256}")
    a.label(f"{L}_end")
    a("s_endpgm")
    return kernel_desc(L, 72, 40, 72)


def reduce32(a, v, t):
    a("s_nop 1")
    a(f"v_add_f32_dpp v{t}, v{v}, v{v} quad_perm:[1,0,3,2] row_mask:0xf bank_mask:0xf")
    a("s_nop 1")
    a(f"v_add_f32_dpp v{v}, v{t}, v{t} quad_perm:[2,3,0,1] row_mask:0xf bank_mask:0xf")
    a("s_nop 1")
    a(f"v_add_f32_dpp v{t}, v{v}, v{v} row_half_mirror row_mask:0xf bank_mask:0xf")
    a("s_nop 1")
    a(f"v_add_f32_dpp v{v}, v{t}, v{t} row_mirror row_mask:0xf bank_mask:0xf")
    a(f"ds_swizzle_b32 v{t}, v{v} offset:0x401F")
    a("s_waitcnt lgkmcnt(0)")
    a(f"v_add_f32 v{v}, v{v}, v{t}")


def ln_core(a, X, C1, SH, OUT, T, apply=True):
    s, t, m, r = T, T + 1, T + 2, T + 3
    a(f"v_add_f32 v{s}, v{X}, v{X+1}")
    a(f"v_add_f32 v{t}, v{X+2}, v{X+3}")
    for k in range(4, 20, 2):
        a(f"v_add_f32 v{s}, v{s}, v{X+k}")
        a(f"v_add_f32 v{t}, v{t}, v{X+k+1}")
    a(f"v_add_f32 v{s}, v{s}, v{t}")
    reduce32(a, s, t)
    a(f"v_mul_f32 v{m}, 0x3acccccd, v{s}")
    a(f"v_sub_f32 v{t}, v{X}, v{m}")
    a(f"v_mul_f32 v{s}, v{t}, v{t}")
    a(f"v_sub_f32 v{t}, v{X+1}, v{m}")
    a(f"v_mul_f32 v{r}, v{t}, v{t}")
    for k in range(2, 20, 2):
        a(f"v_sub_f32 v{t}, v{X+k}, v{m}")
        a(f"v_fmac_f32 v{s}, v{t}, v{t}")
        a(f"v_sub_f32 v{t}, v{X+k+1}, v{m}")
        a(f"v_fmac_f32 v{r}, v{t}, v{t}")
    a(f"v_add_f32 v{s}, v{s}, v{r}")
    reduce32(a, s, t)
    a(f"v_mul_f32 v{s}, 0x3acccccd, v{s}")
    a(f"v_cvt_pk_bf16_f32 v{t}, v{m}, v{s}")
    unpack(a, m, s, t)
    a(f"v_add_f32 v{s}, 0x3727c5ac, v{s}")
    a(f"v_cvt_pk_bf16_f32 v{t}, v{s}, v{s}")
    a(f"v_lshlrev_b32 v{s}, 16, v{t}")
    a(f"v_sqrt_f32 v{s}, v{s}")
    a("s_nop 0")
    a(f"v_cvt_pk_bf16_f32 v{t}, v{s}, v{s}")
    a(f"v_lshlrev_b32 v{s}, 16, v{t}")
    a(f"v_rcp_f32 v{r}, v{s}")
    a("s_nop 0")
    u, w = T + 4, T + 5
    for k in range(0, 20, 2):
        a(f"v_sub_f32 v{u}, v{X+k}, v{m}")
        a(f"v_sub_f32 v{w}, v{X+k+1}, v{m}")
        a(f"v_cvt_pk_bf16_f32 v{t}, v{u}, v{w}")
        unpack(a, u, w, t)
        a(f"v_mul_f32 v{u}, v{u}, v{r}")
        a(f"v_mul_f32 v{w}, v{w}, v{r}")
        if not apply:
            a(f"v_cvt_pk_bf16_f32 v{OUT+k//2}, v{u}, v{w}")
            continue
        a(f"v_cvt_pk_bf16_f32 v{t}, v{u}, v{w}")
        unpack(a, u, w, t)
        a(f"v_mul_f32 v{u}, v{u}, v{C1+k}")
        a(f"v_mul_f32 v{w}, v{w}, v{C1+k+1}")
        a(f"v_cvt_pk_bf16_f32 v{t}, v{u}, v{w}")
        unpack(a, u, w, t)
        a(f"v_add_f32 v{u}, v{u}, v{SH+k}")
        a(f"v_add_f32 v{w}, v{w}, v{SH+k+1}")
        a(f"v_cvt_pk_bf16_f32 v{OUT+k//2}, v{u}, v{w}")


def ln_kernel(a, second):
    L = "ln2_kernel" if second else "ln1_kernel"
    kernel_header(a, L)
    if not second:
        a(f"s_cmp_ge_u32 s2, {LN1_WGS}")
        a(f"s_cbranch_scc1 {L}_end")
        a("s_cmp_lt_u32 s2, 256")
        a(f"s_cbranch_scc1 {L}_go")
        a(f"s_load_dwordx4 s[28:31], s[0:1], {KA['seq_re']}")
        a("s_sub_u32 s6, s2, 192")
        a("s_waitcnt lgkmcnt(0)")
        a("s_cmp_ge_u32 s6, 128")
        a("s_cselect_b32 s8, s30, s28")
        a("s_cselect_b32 s9, s31, s29")
        a(f"s_mov_b32 s10, {2048*2048*2}")
        a("s_mov_b32 s11, 0x00020000")
        a("s_and_b32 s6, s6, 127")
        a("s_lshl_b32 s6, s6, 16")
        a("v_lshlrev_b32 v1, 4, v0")
        a("v_add_u32 v1, s6, v1")
        for i in range(16):
            a(f"s_mov_b32 s7, {i*4096}")
            a(f"buffer_load_dwordx4 v[{4+4*i}:{7+4*i}], v1, s[8:11], s7 offen")
        a("s_endpgm")
        a.label(f"{L}_go")
    else:
        a(f"s_cmp_ge_u32 s2, {LN2_WGS}")
        a(f"s_cbranch_scc1 {L}_end")
        a("s_cmp_lt_u32 s2, 256")
        a(f"s_cbranch_scc1 {L}_go")
        transpose_body(a, L, 256)
        a.label(f"{L}_go")
    a(f"s_load_dwordx2 s[4:5], s[0:1], {KA['ws']}")
    a(f"s_load_dwordx2 s[6:7], s[0:1], {KA['x']}")
    a("s_waitcnt lgkmcnt(0)")
    NB = S_LEN * D * 2
    srd(a, 8, 6, 7, NB)
    srd(a, 12, 4, 5, WS["mod"][1], WS["mod"][0])
    srd(a, 16, 4, 5, NB, WS["h2" if second else "h"][0])
    if second:
        srd(a, 20, 4, 5, NB, WS["y"][0])
        srd(a, 24, 4, 5, NB, WS["y"][0] + NB)
        srd(a, 28, 4, 5, NB, WS["x1"][0])
    a("v_lshrrev_b32 v1, 5, v0")
    if XL:
        a("s_and_b32 s33, s2, 7")
        a("s_lshl_b32 s33, s33, 5")
        a("s_lshr_b32 s3, s2, 3")
        a("s_add_u32 s3, s3, s33")
        a("s_lshl_b32 s3, s3, 3")
    else:
        a("s_lshl_b32 s3, s2, 3")
    a("v_add_u32 v1, s3, v1")
    a("v_and_b32 v2, 31, v0")
    a("v_lshlrev_b32 v2, 3, v2")
    a("s_movk_i32 s3, 1280")
    a("v_mul_lo_u32 v1, v1, s3")
    a("v_add_u32 v1, v1, v2")
    for i in range(5):
        a(f"buffer_load_dwordx2 v[{10+2*i}:{11+2*i}], v1, s[8:11], 0 offen offset:{i*256}")
    if second:
        for i in range(5):
            a(f"buffer_load_dwordx2 v[{20+2*i}:{21+2*i}], v1, s[20:23], 0 offen offset:{i*256}")
        for i in range(5):
            a(f"buffer_load_dwordx2 v[{30+2*i}:{31+2*i}], v1, s[24:27], 0 offen offset:{i*256}")
        for i in range(5):
            a(f"buffer_load_dwordx2 v[{40+2*i}:{41+2*i}], v2, s[12:15], 0 offen offset:{2*1280+i*256}")
    coff = (4 if second else 1) * 1280
    soff = (3 if second else 0) * 1280
    a(f"s_movk_i32 s3, {coff}")
    for i in range(5):
        a(f"buffer_load_dwordx2 v[{50+2*i}:{51+2*i}], v2, s[12:15], s3 offen offset:{i*256}")
    a(f"s_movk_i32 s32, {soff}")
    for i in range(5):
        a(f"buffer_load_dwordx2 v[{60+2*i}:{61+2*i}], v2, s[12:15], s32 offen offset:{i*256}")
    X, C1, SH, OUT, T = 70, 90, 110, 130, 140
    if second:
        a("s_waitcnt vmcnt(10)")
        for k in range(10):
            unpack(a, T, T + 1, 20 + k)
            unpack(a, T + 2, T + 3, 30 + k)
            a(f"v_sub_f32 v{T}, v{T}, v{T+2}")
            a(f"v_sub_f32 v{T+1}, v{T+1}, v{T+3}")
            a(f"v_cvt_pk_bf16_f32 v{T+4}, v{T}, v{T+1}")
            unpack(a, T, T + 1, T + 4)
            unpack(a, T + 2, T + 3, 40 + k)
            a(f"v_mul_f32 v{T}, v{T}, v{T+2}")
            a(f"v_mul_f32 v{T+1}, v{T+1}, v{T+3}")
            a(f"v_cvt_pk_bf16_f32 v{T+4}, v{T}, v{T+1}")
            unpack(a, T, T + 1, T + 4)
            unpack(a, T + 2, T + 3, 10 + k)
            a(f"v_add_f32 v{T}, v{T}, v{T+2}")
            a(f"v_add_f32 v{T+1}, v{T+1}, v{T+3}")
            a(f"v_cvt_pk_bf16_f32 v{20+k}, v{T}, v{T+1}")
            unpack(a, X + 2 * k, X + 2 * k + 1, 20 + k)
        for i in range(5):
            a(f"buffer_store_dwordx2 v[{20+2*i}:{21+2*i}], v1, s[28:31], 0 offen offset:{i*256}")
        a("s_waitcnt vmcnt(5)")
    else:
        a("s_waitcnt vmcnt(10)")
        for k in range(10):
            unpack(a, X + 2 * k, X + 2 * k + 1, 10 + k)
        a("s_waitcnt vmcnt(0)")
    for k in range(10):
        unpack(a, T, T + 1, 50 + k)
        a(f"v_add_f32 v{T}, 1.0, v{T}")
        a(f"v_add_f32 v{T+1}, 1.0, v{T+1}")
        a(f"v_cvt_pk_bf16_f32 v{T+2}, v{T}, v{T+1}")
        unpack(a, C1 + 2 * k, C1 + 2 * k + 1, T + 2)
        unpack(a, SH + 2 * k, SH + 2 * k + 1, 60 + k)
    ln_core(a, X, C1, SH, OUT, T)
    for i in range(5):
        a(f"buffer_store_dwordx2 v[{OUT+2*i}:{OUT+1+2*i}], v1, s[16:19], 0 offen offset:{i*256}")
    a.label(f"{L}_end")
    a("s_endpgm")
    return kernel_desc(L, 152, 40, 152)


def rowmap(paired_ok, nb, b, i):
    if paired_ok and not (b == nb - 1 and nb % 2 == 1):
        return 32 * (b >> 1) + 8 * (i >> 2) + 4 * (b & 1) + (i & 3)
    return 16 * b + i


def fsw_row(paired_ok, nb, n):
    npair = (nb // 2) * 32 if paired_ok else 0
    if n < npair:
        return 2 * ((n >> 3) & 3) + ((n >> 1) & 1)
    return (n >> 1) & 7


def check_conflicts(paired_ok, nb):
    groups = [[0, 1, 2, 3, 12, 13, 14, 15] + list(range(20, 28)),
              list(range(4, 12)) + [16, 17, 18, 19, 28, 29, 30, 31]]
    groups += [[x + 32 for x in g] for g in groups]
    for b in range(nb):
        for j in range(2):
            for g in groups:
                qs = set()
                for l in g:
                    n = rowmap(paired_ok, nb, b, l & 15)
                    assert fsw_row(paired_ok, nb, n) == ((l & 15) >> 1)
                    addr = n * 128 + ((4 * j) ^ (l >> 4) ^ fsw_row(paired_ok, nb, n)) * 16
                    qs.add((addr // 16) % 16)
                assert len(qs) == 16, (paired_ok, nb, b, j)


def gemm_kernel(a, L, K, BS, BV, BK, ndimS, ksplit, nslot, setup, epilogue, pre_epi=None, nwg=256, stage_hook=None):
    nsb = BS // 16
    check_conflicts(ndimS, nsb)
    check_conflicts(not ndimS, 2)
    kernel_header(a, L)
    a(f"s_cmp_ge_u32 s2, {nwg}")
    a(f"s_cbranch_scc1 {L}_end")
    if STAMP:
        a("s_memtime s[96:97]")
    a("v_lshrrev_b32 v1, 6, v0")
    a("s_nop 0")
    a("v_readfirstlane_b32 s40, v1")
    a("v_and_b32 v1, 63, v0")
    a("v_and_b32 v2, 15, v1")
    a("v_lshrrev_b32 v3, 4, v1")
    ldS, ldV = setup(a)
    nsub = BK // 64
    nst = K // BK
    subS, subV = BS * 128, BV * 128
    slotsz = nsub * (subS + subV)
    NS = min(nslot, nst)
    chunks = [("S", u, r) for u in range(nsub) for r in range(BS // 8)] + \
             [("V", u, r) for u in range(nsub) for r in range(BV // 8)]
    nS = nsub * BS // 8
    assert nS % 4 == 0 and len(chunks) % 4 == 0
    nt = len(chunks) // 4

    def lds_off(op, u, r):
        return (u * subS + r * 1024) if op == "S" else (nsub * subS + u * subV + r * 1024)

    steps = [(u, j) for u in range(nsub) for j in range(2)] if ksplit == 1 else [(u, None) for u in range(nsub)]
    spw = len(steps)
    vDMA = 8
    nj = 2 if ksplit == 1 else 1
    nSA = 2 if (ndimS and nsb % 2 == 1) else 1
    vSA = 8
    vVA = vSA + NS * nSA * nj
    vT = max(vVA + NS * nj, vDMA + nt)
    vF = (vT + 4 + 3) // 4 * 4
    nfr = nsb + 2
    vR = vF + 2 * nfr * 4
    vE = vR + nsb * 8
    vTot = vE + (32 if pre_epi else 0) + (1 if STAMP else 0)
    accum = (vTot + 3) // 4 * 4
    nacc = nsb * 2 * 4
    assert accum + nacc <= 256
    sLO = 64
    a("s_cmp_lt_u32 s40, 4")
    a(f"s_cbranch_scc1 {L}_comp")
    a("s_sub_u32 s40, s40, 4")
    a("v_lshrrev_b32 v4, 3, v1")
    a("v_and_b32 v5, 7, v1")
    a("v_and_b32 v6, 1, v3")
    a("v_xor_b32 v6, v6, v5")
    a("v_xor_b32 v7, v3, v5")
    a(f"s_movk_i32 s46, {ldS}")
    a(f"v_mul_lo_u32 v{vT}, v4, s46")
    a(f"s_movk_i32 s46, {ldV}")
    a(f"v_mul_lo_u32 v{vT+1}, v4, s46")
    q = []

    def vm_wait_for(tag):
        last = -1
        for idx, t in enumerate(q):
            if t == tag:
                last = idx
        return min(len(q) - 1 - last, 63)

    def issue_one(s, t):
        op = chunks[4 * t][0]
        a(f"s_add_u32 m0, s{sLO+t}, {(s % NS)*slotsz}")
        a(f"s_movk_i32 s46, {s*BK*2}")
        sr = "s[8:11]" if op == "S" else "s[12:15]"
        a(f"buffer_load_dwordx4 v{vDMA+t}, {sr}, s46 offen lds")
        q.append(s)

    def issue(s):
        for t in range(nt):
            issue_one(s, t)

    def sel(dst, vals):
        if all(v == vals[0] + (vals[1] - vals[0]) * k for k, v in enumerate(vals)):
            if vals[1] == vals[0]:
                a(f"s_mov_b32 s{dst}, {vals[0]}")
            else:
                a(f"s_mul_i32 s{dst}, s40, {vals[1]-vals[0]}")
                if vals[0]:
                    a(f"s_add_u32 s{dst}, s{dst}, {vals[0]}")
        else:
            a(f"s_mov_b32 s{dst}, {vals[0]}")
            for w in range(1, 4):
                a(f"s_cmp_eq_u32 s40, {w}")
                a(f"s_cselect_b32 s{dst}, {vals[w]}, s{dst}")

    for t in range(nt):
        ops = [chunks[4 * t + w] for w in range(4)]
        op = ops[0][0]
        assert all(o[0] == op for o in ops)
        ld = ldS if op == "S" else ldV
        paired_ok = ndimS if op == "S" else (not ndimS)
        nb = nsb if op == "S" else 2
        npair = (nb // 2) * 32 if paired_ok else 0
        def is_paired(o):
            n = o[2] * 8
            if op == "V":
                n &= 31
            return n < npair
        pk = [is_paired(o) for o in ops]
        sx = [(2 * (o[2] & 3) if p else 4 * (o[2] & 1)) for o, p in zip(ops, pk)]
        for o, p, x in zip(ops, pk, sx):
            for lane in range(64):
                n = o[2] * 8 + (lane >> 3)
                nn = n & 31 if op == "V" else n
                f = fsw_row(paired_ok, nb, nn)
                lx = ((lane >> 4) & 1) if p else ((lane >> 4) & 3)
                assert f == (x ^ lx), (op, o, lane)
        sel(44, sx)
        sel(45, [o[2] * 8 * ld + o[1] * 128 for o in ops])
        sel(sLO + t, [lds_off(*o) for o in ops])
        if all(pk) or not any(pk):
            a(f"v_xor_b32 v{vT+2}, s44, v{6 if pk[0] else 7}")
        else:
            sel(47, [1 if p else 0 for p in pk])
            a("s_cmp_eq_u32 s47, 1")
            a("s_cselect_b64 vcc, -1, 0")
            a(f"v_cndmask_b32 v{vT+2}, v7, v6, vcc")
            a(f"v_xor_b32 v{vT+2}, s44, v{vT+2}")
        a(f"v_lshl_add_u32 v{vT+2}, v{vT+2}, 4, v{vT if op == 'S' else vT+1}")
        a(f"v_add_u32 v{vDMA+t}, s45, v{vT+2}")
        issue_one(0, t)
    if NS > 1:
        issue(1)
    a(f"s_waitcnt vmcnt({vm_wait_for(0)})")
    a("s_barrier")
    nxt = 2
    for s in range(nst - 1):
        cnt = 0
        while nxt < nst and nxt <= s + NS - 1 and cnt < 2:
            issue(nxt)
            nxt += 1
            cnt += 1
        a(f"s_waitcnt vmcnt({vm_wait_for(s+1)})")
        a("s_barrier")
    a("s_endpgm")
    a.label(f"{L}_comp")
    if ksplit == 2:
        a("s_and_b32 s42, s40, 1")
        a("s_lshr_b32 s43, s40, 1")
    else:
        a("s_mov_b32 s42, s40")
        a("s_mov_b32 s43, 0")
    a("v_lshrrev_b32 v4, 1, v2")
    a("v_xor_b32 v4, v4, v3")
    if ksplit == 2:
        a("s_lshl_b32 s46, s43, 2")
        a("v_xor_b32 v4, s46, v4")
    a("v_and_b32 v5, 12, v2")
    a("v_lshlrev_b32 v5, 1, v5")
    a("v_and_b32 v6, 3, v2")
    a("v_or_b32 v5, v5, v6")
    def addr_regs(dst_fn, rowreg, extra_sgpr=None):
        for j in range(nj):
            a(f"v_xor_b32 v6, {4*j}, v4")
            a(f"v_lshlrev_b32 v6, 4, v6")
            a(f"v_lshl_add_u32 v6, v{rowreg}, 7, v6")
            if extra_sgpr is not None:
                a(f"v_add_u32 v6, s{extra_sgpr}, v6")
            for sl in range(NS):
                a(f"v_add_u32 v{dst_fn(sl, j)}, {sl*slotsz}, v6")
    saddr = lambda kind, sl, j: vSA + (sl * nSA + kind) * nj + j
    vaddr = lambda sl, j: vVA + sl * nj + j
    addr_regs(lambda sl, j: saddr(0, sl, j), 5 if ndimS else 2)
    if nSA == 2:
        addr_regs(lambda sl, j: saddr(1, sl, j), 2)
    a(f"s_lshl_b32 s46, s42, 12")
    a(f"s_add_u32 s46, s46, {nsub*subS}")
    addr_regs(vaddr, 2 if ndimS else 5, 46)
    if pre_epi:
        pre_epi(a, vE)

    def frag_reads(s, k, buf):
        slot = s % NS
        u, j = steps[k]
        jj = j if j is not None else 0
        for vb in range(2):
            r = vF + (buf * nfr + nsb + vb) * 4
            off = u * subV + (rowmap(not ndimS, 2, vb, 0)) * 128
            a(f"ds_read_b128 v[{r}:{r+3}], v{vaddr(slot, jj)} offset:{off}")
        for b in range(nsb):
            r = vF + (buf * nfr + b) * 4
            left = ndimS and nsb % 2 == 1 and b == nsb - 1
            off = u * subS + rowmap(ndimS, nsb, b, 0) * 128
            a(f"ds_read_b128 v[{r}:{r+3}], v{saddr(1 if left else 0, slot, jj)} offset:{off}")

    def mfmas(buf, first):
        for b in range(nsb):
            for vb in range(2):
                ar = (b * 2 + vb) * 4
                sf = vF + (buf * nfr + b) * 4
                vf = vF + (buf * nfr + nsb + vb) * 4
                A, B = (sf, vf) if ndimS else (vf, sf)
                c = "0" if first else f"a[{ar}:{ar+3}]"
                a(f"v_mfma_f32_16x16x32_bf16 a[{ar}:{ar+3}], v[{A}:{A+3}], v[{B}:{B+3}], {c}")

    nstamp = [0]
    def stamp():
        if STAMP:
            a(f"s_memtime s[{100-2}:{100-1}]")
            a("s_waitcnt lgkmcnt(0)")
            a(f"v_writelane_b32 v{vST}, s98, {nstamp[0]}")
            nstamp[0] += 1
    vST = accum - 1
    step = 0
    if STAMP:
        a(f"v_writelane_b32 v{vST}, s96, 63")
    stamp()
    a("s_barrier")
    stamp()
    frag_reads(0, 0, 0)
    for s in range(nst):
        if stage_hook:
            stage_hook(a, s, vE)
        for k in range(spw):
            buf = step & 1
            last = k == spw - 1
            if not last:
                frag_reads(s, k + 1, buf ^ 1)
                a(f"s_waitcnt lgkmcnt({nfr})")
            else:
                a("s_waitcnt lgkmcnt(0)")
                if s + 1 < nst:
                    a("s_barrier")
                    stamp()
                    frag_reads(s + 1, 0, buf ^ 1)
            mfmas(buf, step == 0)
            step += 1
    a("s_nop 7")
    a("s_nop 7")
    stamp()
    if ksplit == 2:
        a("s_barrier")
        a("v_lshlrev_b32 v4, 4, v1")
        a(f"s_mul_i32 s46, s40, {nsb*1024}")
        a("v_add_u32 v5, s46, v4")
        a("s_xor_b32 s47, s40, 2")
        a(f"s_mul_i32 s46, s47, {nsb*1024}")
        a("v_add_u32 v4, s46, v4")
        a("s_cmp_eq_u32 s43, 0")
        a(f"s_cbranch_scc1 {L}_k0")
        for b in range(nsb):
            k = b * 2
            a(f"ds_write_b128 v5, a[{4*k}:{4*k+3}] offset:{b*1024}")
        for b in range(nsb):
            for r in range(4):
                a(f"v_accvgpr_read_b32 v{vR+b*4+r}, a{(b*2+1)*4+r}")
        a(f"s_branch {L}_k1")
        a.label(f"{L}_k0")
        for b in range(nsb):
            k = b * 2 + 1
            a(f"ds_write_b128 v5, a[{4*k}:{4*k+3}] offset:{b*1024}")
        for b in range(nsb):
            for r in range(4):
                a(f"v_accvgpr_read_b32 v{vR+b*4+r}, a{(b*2)*4+r}")
        a.label(f"{L}_k1")
        a("s_waitcnt lgkmcnt(0)")
        a("s_barrier")
        for b in range(nsb):
            a(f"ds_read_b128 v[{vF+4*b}:{vF+4*b+3}], v4 offset:{b*1024}")
        a("s_waitcnt lgkmcnt(0)")
        for k in range(nsb * 4):
            a(f"v_add_f32 v{vR+k}, v{vR+k}, v{vF+k}")
    else:
        for k in range(nsb * 2 * 4):
            a(f"v_accvgpr_read_b32 v{vR+k}, a{k}")
    a("s_waitcnt vmcnt(0)")
    epilogue(a, vR, vF, vE, nsb)
    if STAMP:
        stamp()
        a("s_waitcnt vmcnt(0)")
        stamp()
        srd(a, 92, 48, 49, 1 << 20, (200 << 20) + STAMPK[0] * (1 << 20))
        STAMPK[0] += 1
        a("s_lshl_b32 s46, s2, 10")
        a("s_lshl_b32 s47, s40, 8")
        a("s_add_u32 s46, s46, s47")
        a("v_lshlrev_b32 v4, 2, v1")
        a(f"buffer_store_dword v{vST}, v4, s[92:95], s46 offen")
    a.label(f"{L}_end")
    a("s_endpgm")
    lds = max(NS * slotsz, (4 * nsb * 1024) if ksplit == 2 else 0)
    assert lds <= 163840, lds
    return kernel_desc(L, accum + nacc, 102, accum), lds


def gemma2_kernel(a):
    L = "gemma_kernel"
    K, NS = 640, 4
    nst = 10
    VB = 0
    SB = 81920
    slotsz = 160 * 128
    kernel_header(a, L)
    a("s_cmp_ge_u32 s2, 256")
    a(f"s_cbranch_scc1 {L}_end")
    a(f"s_load_dwordx2 s[48:49], s[0:1], {KA['ws']}")
    a(f"s_load_dwordx4 s[52:55], s[0:1], {KA['hid_re']}")
    a("v_lshrrev_b32 v1, 6, v0")
    a("s_nop 0")
    a("v_readfirstlane_b32 s40, v1")
    a("v_and_b32 v1, 63, v0")
    a("v_and_b32 v2, 15, v1")
    a("v_lshrrev_b32 v3, 4, v1")
    a("s_and_b32 s3, s2, 7")
    a("s_lshr_b32 s4, s2, 3")
    if XL and XA:
        a("s_lshr_b32 s5, s4, 2")
        a("s_lshl_b32 s6, s3, 2")
        a("s_and_b32 s7, s4, 3")
        a("s_add_u32 s6, s6, s7")
    else:
        a("s_and_b32 s5, s3, 1")
        a("s_lshl_b32 s5, s5, 2")
        a("s_and_b32 s6, s4, 3")
        a("s_add_u32 s5, s5, s6")
        a("s_lshr_b32 s6, s3, 1")
        a("s_lshl_b32 s6, s6, 3")
        a("s_lshr_b32 s7, s4, 2")
        a("s_add_u32 s6, s6, s7")
    a("s_lshl_b32 s44, s40, 3")
    a("v_add_u32 v4, s44, v3")
    a("s_movk_i32 s45, 1280")
    a("v_mul_lo_u32 v5, v4, s45")
    a("v_lshl_add_u32 v5, v2, 4, v5")
    a("v_lshlrev_b32 v6, 4, v2")
    a("s_waitcnt lgkmcnt(0)")
    a("s_cmp_ge_u32 s5, 4")
    a("s_cselect_b32 s8, s54, s52")
    a("s_cselect_b32 s9, s55, s53")
    a(f"s_mov_b32 s10, {160*1280}")
    a("s_mov_b32 s11, 0x00020000")
    a("s_and_b32 s7, s5, 3")
    a(f"s_mul_i32 s7, s7, {160*1280}")
    srd_add(a, 8, 7)
    srd(a, 12, 48, 49, 64 * 1280, WS["h"][0])
    a(f"s_mul_i32 s7, s6, {64*1280}")
    srd_add(a, 12, 7)
    srd(a, 20, 48, 49, WS["mod"][1], WS["mod"][0])
    a("s_movk_i32 s45, 5120")
    for rp in range(2):
        for k in range(5):
            r = 16 + (rp * 5 + k) * 4
            so = "s45" if rp else "0"
            a(f"buffer_load_dwordx4 v[{r}:{r+3}], v5, s[12:15], {so} offen offset:{k*256}")
    for k in range(5):
        a(f"buffer_load_dwordx4 v[{56+4*k}:{59+4*k}], v6, s[20:23], 0 offen offset:{1280+k*256}")
    for k in range(5):
        a(f"buffer_load_dwordx4 v[{76+4*k}:{79+4*k}], v6, s[20:23], 0 offen offset:{k*256}")
    if TLBWARM:
        a(f"s_load_dwordx4 s[56:59], s[0:1], {KA['seq_re']}")
        a("s_lshr_b32 s36, s3, 1")
        a("s_lshl_b32 s36, s36, 9")
        a("s_lshl_b32 s37, s4, 4")
        a("s_add_u32 s36, s36, s37")
        a("v_add_u32 v12, s36, v2")
        a("v_lshlrev_b32 v12, 12, v12")
        a("s_waitcnt lgkmcnt(0)")
        a("s_and_b32 s37, s3, 1")
        a("s_cmp_eq_u32 s37, 1")
        a("s_cselect_b32 s60, s58, s56")
        a("s_cselect_b32 s61, s59, s57")
        a(f"s_mov_b32 s62, {2048*2048*2}")
        a("s_mov_b32 s63, 0x00020000")
        a("buffer_load_dword v13, v12, s[60:63], 0 offen")
    srd(a, 16, 48, 49, 160 * 4096, WS["abt"][0])
    a(f"s_mul_i32 s7, s5, {160*4096}")
    srd_add(a, 16, 7)
    a("s_lshl_b32 s7, s6, 7")
    srd_add(a, 16, 7)
    a("s_and_b32 s41, s40, 3")
    a("v_lshrrev_b32 v8, 3, v1")
    a("v_and_b32 v9, 7, v1")
    a("v_xor_b32 v9, v9, v3")
    a("s_and_b32 s44, s41, 1")
    a("s_lshl_b32 s44, s44, 2")
    a("v_xor_b32 v9, s44, v9")
    a("s_lshl_b32 s44, s41, 3")
    a("v_add_u32 v8, s44, v8")
    a("s_movk_i32 s45, 1280")
    a("v_mul_lo_u32 v8, v8, s45")
    a("v_lshl_add_u32 v8, v9, 4, v8")
    a("s_lshl_b32 s42, s41, 10")
    a(f"s_add_u32 s42, s42, {SB}")
    a("s_cmp_lt_u32 s40, 4")
    a(f"s_cbranch_scc1 {L}_p0")

    def issue(s):
        for t in range(5):
            a(f"s_add_u32 m0, s42, {(s % NS)*slotsz + t*4096}")
            a(f"s_mov_b32 s46, {s*128 + t*32*1280}")
            a("buffer_load_dwordx4 v8, s[8:11], s46 offen lds")
    for s in range(NS):
        issue(s)
    a("s_waitcnt vmcnt(20)")
    a(f"s_branch {L}_p0b")
    a.label(f"{L}_p0")
    a("s_waitcnt vmcnt(0)")
    a.label(f"{L}_p0b")
    a("v_lshrrev_b32 v10, 1, v3")
    a("s_and_b32 s44, s40, 3")
    a("s_lshl_b32 s44, s44, 1")
    a("v_or_b32 v10, s44, v10")
    a("v_and_b32 v11, 7, v2")
    a("v_xor_b32 v10, v10, v11")
    a("v_lshlrev_b32 v10, 4, v10")
    a("v_lshl_add_u32 v10, v4, 7, v10")
    a("v_lshrrev_b32 v11, 3, v2")
    a("v_lshl_add_u32 v10, v11, 13, v10")
    a("v_add_u32 v11, 0x8000, v10")
    T = 96
    for k in range(5):
        for q in range(4):
            unpack(a, T, T + 1, 56 + 4 * k + q)
            a(f"v_add_f32 v{T}, 1.0, v{T}")
            a(f"v_add_f32 v{T+1}, 1.0, v{T+1}")
            a(f"v_cvt_pk_bf16_f32 v{T+6}, v{T}, v{T+1}")
            unpack(a, T, T + 1, T + 6)
            unpack(a, T + 2, T + 3, 76 + 4 * k + q)
            for rp in range(2):
                r = 16 + (rp * 5 + k) * 4 + q
                unpack(a, T + 4, T + 5, r)
                a(f"v_mul_f32 v{T+4}, v{T+4}, v{T}")
                a(f"v_mul_f32 v{T+5}, v{T+5}, v{T+1}")
                a(f"v_cvt_pk_bf16_f32 v{T+6}, v{T+4}, v{T+5}")
                unpack(a, T + 4, T + 5, T + 6)
                a(f"v_add_f32 v{T+4}, v{T+4}, v{T+2}")
                a(f"v_add_f32 v{T+5}, v{T+5}, v{T+3}")
                a(f"v_cvt_pk_bf16_f32 v{r}, v{T+4}, v{T+5}")
        for rp in range(2):
            r = 16 + (rp * 5 + k) * 4
            off = k * 16384 + rp * 512
            areg = 10
            if off >= 32768:
                off -= 32768
                areg = 11
            a(f"ds_write_b128 v{areg}, v[{r}:{r+3}] offset:{off}")
    a("s_cmp_lt_u32 s40, 4")
    a(f"s_cbranch_scc1 {L}_comp")
    a("s_waitcnt vmcnt(15) lgkmcnt(0)")
    a("s_barrier")
    for s in range(nst - 1):
        out = min(NS - 1, nst - 2 - s) - 0
        issued = min(nst, NS + s)
        a(f"s_waitcnt vmcnt({(issued - (s + 2)) * 5})")
        a("s_barrier")
        if s + NS < nst:
            issue(s + NS)
    a("s_endpgm")
    a.label(f"{L}_comp")
    a("s_and_b32 s42, s40, 1")
    a("s_lshr_b32 s43, s40, 1")
    a("v_lshrrev_b32 v4, 1, v2")
    a("v_xor_b32 v4, v4, v3")
    a("v_and_b32 v5, 12, v2")
    a("v_lshlrev_b32 v5, 1, v5")
    a("v_and_b32 v6, 3, v2")
    a("v_or_b32 v5, v5, v6")
    vSA, vVA = 8, 16
    a(f"s_mul_i32 s44, s42, {80*128}")
    a(f"s_add_u32 s44, s44, {SB}")
    a(f"s_lshl_b32 s45, s43, 12")
    for j in range(2):
        a(f"v_xor_b32 v6, {4*j}, v4")
        a("v_lshlrev_b32 v6, 4, v6")
        a("v_lshl_add_u32 v7, v2, 7, v6")
        a("v_add_u32 v7, s44, v7")
        for sl in range(NS):
            a(f"v_add_u32 v{vSA+sl*2+j}, {sl*slotsz}, v7")
        a("v_lshl_add_u32 v7, v5, 7, v6")
        a(f"v_add_u32 v{vVA+j}, s45, v7")
        a(f"v_add_u32 v{vVA+2+j}, 0xa000, v{vVA+j}")
    vF = 24
    nfr = 7
    vR = vF + 2 * nfr * 4

    def frag_reads(s, j, buf):
        for vb in range(2):
            r = vF + (buf * nfr + 5 + vb) * 4
            hi = s >= 5
            off = (s - 5 * hi) * 8192 + vb * 512
            a(f"ds_read_b128 v[{r}:{r+3}], v{vVA+2*hi+j} offset:{off}")
        for b in range(5):
            r = vF + (buf * nfr + b) * 4
            a(f"ds_read_b128 v[{r}:{r+3}], v{vSA+(s%NS)*2+j} offset:{b*2048}")

    def mfmas(buf, first):
        for b in range(5):
            for vb in range(2):
                ar = (b * 2 + vb) * 4
                sf = vF + (buf * nfr + b) * 4
                vf = vF + (buf * nfr + 5 + vb) * 4
                c = "0" if first else f"a[{ar}:{ar+3}]"
                a(f"v_mfma_f32_16x16x32_bf16 a[{ar}:{ar+3}], v[{vf}:{vf+3}], v[{sf}:{sf+3}], {c}")

    a("s_waitcnt lgkmcnt(0)")
    a("s_barrier")
    frag_reads(0, 0, 0)
    step = 0
    for s in range(nst):
        for j in range(2):
            buf = step & 1
            if j == 0:
                frag_reads(s, 1, buf ^ 1)
                a(f"s_waitcnt lgkmcnt({nfr})")
            else:
                a("s_waitcnt lgkmcnt(0)")
                if s + 1 < nst:
                    a("s_barrier")
                    frag_reads(s + 1, 0, buf ^ 1)
            mfmas(buf, step == 0)
            step += 1
    a("s_nop 7")
    a("s_nop 7")
    a("s_mul_i32 s44, s42, 80")
    a("v_add_u32 v4, s44, v2")
    a("v_lshlrev_b32 v4, 12, v4")
    a("v_lshl_add_u32 v4, v3, 4, v4")
    a("s_lshl_b32 s46, s43, 6")
    a("v_add_u32 v4, s46, v4")
    for b in range(5):
        o = vR + b * 4
        for k in range(4):
            a(f"v_accvgpr_read_b32 v{vF}, a{b*8+2*k}")
            a(f"v_accvgpr_read_b32 v{vF+1}, a{b*8+2*k+1}")
            a(f"v_cvt_pk_bf16_f32 v{o+k}, v{vF}, v{vF+1}")
        a(f"s_mov_b32 s46, {b*16*4096}")
        a(f"buffer_store_dwordx4 v[{o}:{o+3}], v4, s[16:19], s46 offen")
    a.label(f"{L}_end")
    a("s_endpgm")
    return kernel_desc(L, 120 + 40, 64, 120), 163840


def fa_kernel(a):
    L = "gemma_kernel"
    NS = 4
    nst = 10
    SB = 81920
    slotsz = 160 * 128
    kernel_header(a, L)
    a("s_cmp_ge_u32 s2, 256")
    a(f"s_cbranch_scc1 {L}_end")
    a(f"s_load_dwordx4 s[48:51], s[0:1], {KA['dbg']}")
    a(f"s_load_dwordx4 s[52:55], s[0:1], {KA['hid_re']}")
    a(f"s_load_dwordx4 s[56:59], s[0:1], {KA['c']}")
    a(f"s_load_dwordx2 s[60:61], s[0:1], {KA['x']}")
    a("v_lshrrev_b32 v1, 6, v0")
    a("s_nop 0")
    a("v_readfirstlane_b32 s40, v1")
    a("v_and_b32 v1, 63, v0")
    a("v_and_b32 v2, 15, v1")
    a("v_lshrrev_b32 v3, 4, v1")
    a("s_and_b32 s3, s2, 7")
    a("s_lshr_b32 s4, s2, 3")
    a("s_and_b32 s5, s3, 1")
    a("s_lshl_b32 s5, s5, 2")
    a("s_and_b32 s6, s4, 3")
    a("s_add_u32 s5, s5, s6")
    a("s_lshr_b32 s6, s3, 1")
    a("s_lshl_b32 s6, s6, 3")
    a("s_lshr_b32 s7, s4, 2")
    a("s_add_u32 s6, s6, s7")
    a("s_mul_i32 s33, s3, 15")
    a("s_add_u32 s33, s33, s4")
    a("s_lshl_b32 s44, s40, 3")
    a("v_add_u32 v4, s44, v3")
    a("s_movk_i32 s45, 1280")
    a("v_mul_lo_u32 v5, v4, s45")
    a("v_lshl_add_u32 v5, v2, 4, v5")
    a("v_lshrrev_b32 v12, 2, v0")
    a("v_and_b32 v13, 3, v0")
    a("s_movk_i32 s45, 7680")
    a("v_mul_lo_u32 v14, v12, s45")
    a("v_lshl_add_u32 v14, v13, 4, v14")
    a("s_lshl_b32 s34, s33, 6")
    a("v_add_u32 v14, s34, v14")
    a("v_lshlrev_b32 v15, 1, v12")
    a("s_and_b32 s41, s40, 3")
    a("v_lshrrev_b32 v8, 3, v1")
    a("v_and_b32 v9, 7, v1")
    a("v_xor_b32 v9, v9, v3")
    a("s_and_b32 s44, s41, 1")
    a("s_lshl_b32 s44, s44, 2")
    a("v_xor_b32 v9, s44, v9")
    a("s_lshl_b32 s44, s41, 3")
    a("v_add_u32 v8, s44, v8")
    a("s_movk_i32 s45, 1280")
    a("v_mul_lo_u32 v8, v8, s45")
    a("v_lshl_add_u32 v8, v9, 4, v8")
    a("s_lshl_b32 s42, s41, 10")
    a(f"s_add_u32 s42, s42, {SB}")
    a("s_waitcnt lgkmcnt(0)")
    a("s_cmp_ge_u32 s5, 4")
    a("s_cselect_b32 s8, s54, s52")
    a("s_cselect_b32 s9, s55, s53")
    a(f"s_mov_b32 s10, {160*1280}")
    a("s_mov_b32 s11, 0x00020000")
    a("s_and_b32 s7, s5, 3")
    a(f"s_mul_i32 s7, s7, {160*1280}")
    srd_add(a, 8, 7)
    srd(a, 12, 60, 61, 64 * 1280)
    a(f"s_mul_i32 s7, s6, {64*1280}")
    srd_add(a, 12, 7)
    srd(a, 20, 50, 51, WS["modf"][1], WS["modf"][0])
    srd(a, 24, 58, 59, 640 * 3840 * 2)
    srd(a, 28, 56, 57, 640 * 2)
    srd(a, 64, 48, 49, 256)
    srd(a, 68, 50, 51, WS["mod"][1], WS["mod"][0])
    srd(a, 16, 50, 51, 160 * 4096, WS["abt"][0])
    a(f"s_mul_i32 s7, s5, {160*4096}")
    srd_add(a, 16, 7)
    a("s_lshl_b32 s7, s6, 7")
    srd_add(a, 16, 7)
    a("s_cmp_ge_u32 s2, 120")
    a(f"s_cbranch_scc1 {L}_nog1")
    for p in range(5):
        a(f"buffer_load_ushort v{76+p}, v15, s[28:31], 0 offen offset:{p*256}")
    for p in range(5):
        a(f"s_mov_b32 s45, {p*128*7680}")
        a(f"buffer_load_dwordx4 v[{56+4*p}:{59+4*p}], v14, s[24:27], s45 offen")
    a.label(f"{L}_nog1")
    a("s_movk_i32 s45, 5120")
    for rp in range(2):
        for k in range(5):
            r = 16 + (rp * 5 + k) * 4
            so = "s45" if rp else "0"
            a(f"buffer_load_dwordx4 v[{r}:{r+3}], v5, s[12:15], {so} offen offset:{k*256}")

    def issue(s):
        for t in range(5):
            a(f"s_add_u32 m0, s42, {(s % NS)*slotsz + t*4096}")
            a(f"s_mov_b32 s46, {s*128 + t*32*1280}")
            a("buffer_load_dwordx4 v8, s[8:11], s46 offen lds")
    a("s_cmp_lt_u32 s40, 4")
    a(f"s_cbranch_scc1 {L}_nold")
    for s in range(NS):
        issue(s)
    a.label(f"{L}_nold")

    def rolewait(nc, tag):
        a("s_cmp_lt_u32 s40, 4")
        a(f"s_cbranch_scc1 {L}_w{tag}a")
        a(f"s_waitcnt vmcnt({nc+20})")
        a(f"s_branch {L}_w{tag}b")
        a.label(f"{L}_w{tag}a")
        a(f"s_waitcnt vmcnt({nc})")
        a.label(f"{L}_w{tag}b")
    a("s_cmp_ge_u32 s2, 120")
    a(f"s_cbranch_scc1 {L}_nog2")
    rolewait(10, "g")
    A0 = 96
    for k in range(8):
        a(f"v_mov_b32 v{A0+k}, 0")
    a("s_mov_b32 s45, 0xbfb8aa3b")
    for p in range(5):
        a(f"v_lshlrev_b32 v{76+p}, 16, v{76+p}")
        a(f"v_mul_f32 v104, s45, v{76+p}")
        a("v_exp_f32 v104, v104")
        a("s_nop 0")
        a("v_add_f32 v104, 1.0, v104")
        a("v_rcp_f32 v104, v104")
        a("s_nop 0")
        a(f"v_mul_f32 v104, v{76+p}, v104")
        a("v_cvt_pk_bf16_f32 v104, v104, v104")
        a(f"v_lshlrev_b32 v{76+p}, 16, v104")
        for q in range(4):
            unpack(a, 104, 105, 56 + 4 * p + q)
            a(f"v_fmac_f32 v{A0+2*q}, v{76+p}, v104")
            a(f"v_fmac_f32 v{A0+1+2*q}, v{76+p}, v105")
    a("v_lshlrev_b32 v104, 7, v12")
    a("v_lshl_add_u32 v104, v13, 5, v104")
    a(f"ds_write_b128 v104, v[{A0}:{A0+3}]")
    a(f"ds_write_b128 v104, v[{A0+4}:{A0+7}] offset:16")
    a("s_waitcnt lgkmcnt(0)")
    a("s_barrier")
    a("v_and_b32 v105, 31, v0")
    a("v_lshrrev_b32 v106, 5, v0")
    a("v_lshlrev_b32 v104, 10, v106")
    a("v_lshl_add_u32 v104, v105, 2, v104")
    for i in range(8):
        a(f"ds_read_b32 v{A0+i}, v104 offset:{i*128}")
    a("s_waitcnt lgkmcnt(0)")
    for (x, y) in [(0, 1), (2, 3), (4, 5), (6, 7), (0, 2), (4, 6), (0, 4)]:
        a(f"v_add_f32 v{A0+x}, v{A0+x}, v{A0+y}")
    a("v_lshlrev_b32 v104, 2, v0")
    a(f"ds_write_b32 v104, v{A0} offset:16384")
    a("s_waitcnt lgkmcnt(0)")
    a("s_barrier")
    a("s_cmp_lg_u32 s40, 0")
    a(f"s_cbranch_scc1 {L}_nog2")
    a("v_lshrrev_b32 v106, 5, v1")
    a("v_lshlrev_b32 v104, 10, v106")
    a("v_lshl_add_u32 v104, v105, 2, v104")
    for i in range(8):
        a(f"ds_read_b32 v{A0+i}, v104 offset:{16384+i*128}")
    a("s_waitcnt lgkmcnt(0)")
    for (x, y) in [(0, 1), (2, 3), (4, 5), (6, 7), (0, 2), (4, 6), (0, 4)]:
        a(f"v_add_f32 v{A0+x}, v{A0+x}, v{A0+y}")
    a(f"v_mov_b32 v{A0+1}, v{A0}")
    a("s_nop 1")
    a(f"v_permlane32_swap_b32 v{A0}, v{A0+1}")
    a("s_nop 1")
    a(f"v_add_f32 v{A0}, v{A0}, v{A0+1}")
    a(f"v_cvt_pk_bf16_f32 v{A0+1}, v{A0}, v{A0}")
    a(f"v_lshlrev_b32 v{A0+2}, 16, v{A0+1}")
    a(f"v_add_f32 v{A0+3}, 1.0, v{A0+2}")
    a(f"v_cvt_pk_bf16_f32 v{A0+3}, v{A0+3}, v{A0+3}")
    a(f"v_lshlrev_b32 v{A0+3}, 16, v{A0+3}")
    a("s_mul_i32 s44, s33, 3277")
    a("s_lshr_b32 s44, s44, 16")
    a("s_cmp_eq_u32 s44, 1")
    a("s_cselect_b32 s45, 1, 0")
    a("s_cmp_eq_u32 s44, 4")
    a("s_cselect_b32 s45, 1, s45")
    a("s_cmp_eq_u32 s45, 1")
    a(f"s_cbranch_scc0 {L}_gnc")
    a(f"v_mov_b32 v{A0+2}, v{A0+3}")
    a.label(f"{L}_gnc")
    a("v_lshlrev_b32 v104, 1, v105")
    a("v_add_u32 v104, s34, v104")
    a("v_lshlrev_b32 v106, 1, v104")
    a("v_mov_b32 v107, 0")
    a("v_mov_b32 v108, 1")
    a("v_cmp_gt_u32 vcc, 32, v1")
    a("s_and_saveexec_b64 s[36:37], vcc")
    a(f"buffer_store_short v{A0+1}, v104, s[68:71], 0 offen")
    a(f"buffer_store_dword v{A0+2}, v106, s[20:23], 0 offen sc0 sc1")
    a("s_waitcnt vmcnt(0)")
    a("s_cmp_ge_u32 s33, 40")
    a(f"s_cbranch_scc1 {L}_gna")
    a("v_cmp_gt_u32 vcc, 1, v1")
    a("s_and_b64 exec, exec, vcc")
    a("buffer_atomic_add v108, v107, s[64:67], 0 offen")
    a.label(f"{L}_gna")
    a("s_mov_b64 exec, s[36:37]")
    a.label(f"{L}_nog2")
    rolewait(0, "x")
    X, T = 96, 136

    def red16(v, t):
        for mod_ in ["quad_perm:[1,0,3,2]", "quad_perm:[2,3,0,1]", "row_half_mirror", "row_mirror"]:
            a("s_nop 1")
            a(f"v_add_f32_dpp v{t}, v{v}, v{v} {mod_} row_mask:0xf bank_mask:0xf")
            v, t = t, v
    for rp in range(2):
        R = 16 + rp * 20
        for k in range(20):
            unpack(a, X + 2 * k, X + 2 * k + 1, R + k)
        s_, t_, m_, r_, u_, w_ = T, T + 1, T + 2, T + 3, T + 4, T + 5
        a(f"v_add_f32 v{s_}, v{X}, v{X+1}")
        a(f"v_add_f32 v{t_}, v{X+2}, v{X+3}")
        for k in range(4, 40, 2):
            a(f"v_add_f32 v{s_}, v{s_}, v{X+k}")
            a(f"v_add_f32 v{t_}, v{t_}, v{X+k+1}")
        a(f"v_add_f32 v{s_}, v{s_}, v{t_}")
        red16(s_, t_)
        a(f"v_mul_f32 v{m_}, 0x3acccccd, v{s_}")
        a(f"v_sub_f32 v{t_}, v{X}, v{m_}")
        a(f"v_mul_f32 v{s_}, v{t_}, v{t_}")
        a(f"v_sub_f32 v{t_}, v{X+1}, v{m_}")
        a(f"v_mul_f32 v{r_}, v{t_}, v{t_}")
        for k in range(2, 40, 2):
            a(f"v_sub_f32 v{t_}, v{X+k}, v{m_}")
            a(f"v_fmac_f32 v{s_}, v{t_}, v{t_}")
            a(f"v_sub_f32 v{u_}, v{X+k+1}, v{m_}")
            a(f"v_fmac_f32 v{r_}, v{u_}, v{u_}")
        a(f"v_add_f32 v{s_}, v{s_}, v{r_}")
        red16(s_, t_)
        a(f"v_mul_f32 v{s_}, 0x3acccccd, v{s_}")
        a(f"v_cvt_pk_bf16_f32 v{t_}, v{m_}, v{s_}")
        unpack(a, m_, s_, t_)
        a(f"v_add_f32 v{s_}, 0x3727c5ac, v{s_}")
        a(f"v_cvt_pk_bf16_f32 v{t_}, v{s_}, v{s_}")
        a(f"v_lshlrev_b32 v{s_}, 16, v{t_}")
        a(f"v_sqrt_f32 v{s_}, v{s_}")
        a("s_nop 0")
        a(f"v_cvt_pk_bf16_f32 v{t_}, v{s_}, v{s_}")
        a(f"v_lshlrev_b32 v{s_}, 16, v{t_}")
        a(f"v_rcp_f32 v{r_}, v{s_}")
        a("s_nop 0")
        for k in range(20):
            a(f"v_sub_f32 v{u_}, v{X+2*k}, v{m_}")
            a(f"v_sub_f32 v{w_}, v{X+2*k+1}, v{m_}")
            a(f"v_cvt_pk_bf16_f32 v{t_}, v{u_}, v{w_}")
            unpack(a, u_, w_, t_)
            a(f"v_mul_f32 v{u_}, v{u_}, v{r_}")
            a(f"v_mul_f32 v{w_}, v{w_}, v{r_}")
            a(f"v_cvt_pk_bf16_f32 v{R+k}, v{u_}, v{w_}")
    a("s_cmp_lg_u32 s40, 0")
    a(f"s_cbranch_scc1 {L}_nopoll")
    a("v_mov_b32 v107, 0")
    a("s_mov_b32 s44, 0")
    a.label(f"{L}_poll")
    a("buffer_load_dword v108, v107, s[64:67], 0 offen sc0 sc1")
    a("s_waitcnt vmcnt(0)")
    a("v_readfirstlane_b32 s45, v108")
    a("s_add_u32 s44, s44, 1")
    a("s_cmp_ge_u32 s45, 40")
    a(f"s_cbranch_scc1 {L}_polled")
    a("s_sleep 2")
    a("s_cmp_lt_u32 s44, 0x40000")
    a(f"s_cbranch_scc1 {L}_poll")
    a.label(f"{L}_polled")
    a("v_lshlrev_b32 v12, 4, v1")
    a("s_movk_i32 s45, 4096")
    for i in range(5):
        so = "s45" if i == 4 else "0"
        a(f"buffer_load_dwordx4 v[{X+4*i}:{X+4*i+3}], v12, s[20:23], {so} offen offset:{(i%4)*1024} sc0 sc1")
    a("s_waitcnt vmcnt(0)")
    for i in range(5):
        a(f"ds_write_b128 v12, v[{X+4*i}:{X+4*i+3}] offset:{i*1024}")
    a("s_waitcnt lgkmcnt(0)")
    a.label(f"{L}_nopoll")
    a("s_barrier")
    a("v_lshlrev_b32 v12, 5, v2")
    SA, C1 = 56, 96
    for k in range(5):
        for h in range(2):
            a(f"ds_read_b128 v[{SA+8*k+4*h}:{SA+8*k+4*h+3}], v12 offset:{k*512+h*16}")
            a(f"ds_read_b128 v[{C1+8*k+4*h}:{C1+8*k+4*h+3}], v12 offset:{2560+k*512+h*16}")
    a("v_lshrrev_b32 v10, 1, v3")
    a("s_and_b32 s44, s40, 3")
    a("s_lshl_b32 s44, s44, 1")
    a("v_or_b32 v10, s44, v10")
    a("v_and_b32 v11, 7, v2")
    a("v_xor_b32 v10, v10, v11")
    a("v_lshlrev_b32 v10, 4, v10")
    a("v_lshl_add_u32 v10, v4, 7, v10")
    a("v_lshrrev_b32 v11, 3, v2")
    a("v_lshl_add_u32 v10, v11, 13, v10")
    a("v_add_u32 v11, 0x8000, v10")
    a("s_waitcnt lgkmcnt(0)")
    a("s_barrier")
    for k in range(5):
        for rp in range(2):
            for q in range(4):
                r = 16 + (rp * 5 + k) * 4 + q
                c = 8 * k + 2 * q
                unpack(a, T, T + 1, r)
                a(f"v_mul_f32 v{T}, v{T}, v{C1+c}")
                a(f"v_mul_f32 v{T+1}, v{T+1}, v{C1+c+1}")
                a(f"v_cvt_pk_bf16_f32 v{T+2}, v{T}, v{T+1}")
                unpack(a, T, T + 1, T + 2)
                a(f"v_add_f32 v{T}, v{T}, v{SA+c}")
                a(f"v_add_f32 v{T+1}, v{T+1}, v{SA+c+1}")
                a(f"v_cvt_pk_bf16_f32 v{r}, v{T}, v{T+1}")
            r = 16 + (rp * 5 + k) * 4
            off = k * 16384 + rp * 512
            areg = 10
            if off >= 32768:
                off -= 32768
                areg = 11
            a(f"ds_write_b128 v{areg}, v[{r}:{r+3}] offset:{off}")
    a("s_cmp_lt_u32 s40, 4")
    a(f"s_cbranch_scc1 {L}_comp")
    a("s_waitcnt vmcnt(15) lgkmcnt(0)")
    a("s_barrier")
    for s in range(nst - 1):
        issued = min(nst, NS + s)
        a(f"s_waitcnt vmcnt({(issued - (s + 2)) * 5})")
        a("s_barrier")
        if s + NS < nst:
            issue(s + NS)
    a("s_endpgm")
    a.label(f"{L}_comp")
    a("s_and_b32 s42, s40, 1")
    a("s_lshr_b32 s43, s40, 1")
    a("v_lshrrev_b32 v4, 1, v2")
    a("v_xor_b32 v4, v4, v3")
    a("v_and_b32 v5, 12, v2")
    a("v_lshlrev_b32 v5, 1, v5")
    a("v_and_b32 v6, 3, v2")
    a("v_or_b32 v5, v5, v6")
    vSA, vVA = 60, 68
    a(f"s_mul_i32 s44, s42, {80*128}")
    a(f"s_add_u32 s44, s44, {SB}")
    a(f"s_lshl_b32 s45, s43, 12")
    for j in range(2):
        a(f"v_xor_b32 v6, {4*j}, v4")
        a("v_lshlrev_b32 v6, 4, v6")
        a("v_lshl_add_u32 v7, v2, 7, v6")
        a("v_add_u32 v7, s44, v7")
        for sl in range(NS):
            a(f"v_add_u32 v{vSA+sl*2+j}, {sl*slotsz}, v7")
        a("v_lshl_add_u32 v7, v5, 7, v6")
        a(f"v_add_u32 v{vVA+j}, s45, v7")
        a(f"v_add_u32 v{vVA+2+j}, 0xa000, v{vVA+j}")
    vF = 72
    nfr = 7
    vR = 16

    def frag_reads(s, j, buf):
        for vb in range(2):
            r = vF + (buf * nfr + 5 + vb) * 4
            hi = s >= 5
            off = (s - 5 * hi) * 8192 + vb * 512
            a(f"ds_read_b128 v[{r}:{r+3}], v{vVA+2*hi+j} offset:{off}")
        for b in range(5):
            r = vF + (buf * nfr + b) * 4
            a(f"ds_read_b128 v[{r}:{r+3}], v{vSA+(s%NS)*2+j} offset:{b*2048}")

    def mfmas(buf, first):
        for b in range(5):
            for vb in range(2):
                ar = (b * 2 + vb) * 4
                sf = vF + (buf * nfr + b) * 4
                vf = vF + (buf * nfr + 5 + vb) * 4
                c = "0" if first else f"a[{ar}:{ar+3}]"
                a(f"v_mfma_f32_16x16x32_bf16 a[{ar}:{ar+3}], v[{vf}:{vf+3}], v[{sf}:{sf+3}], {c}")

    a("s_waitcnt lgkmcnt(0)")
    a("s_barrier")
    frag_reads(0, 0, 0)
    step = 0
    for s in range(nst):
        for j in range(2):
            buf = step & 1
            if j == 0:
                frag_reads(s, 1, buf ^ 1)
                a(f"s_waitcnt lgkmcnt({nfr})")
            else:
                a("s_waitcnt lgkmcnt(0)")
                if s + 1 < nst:
                    a("s_barrier")
                    frag_reads(s + 1, 0, buf ^ 1)
            mfmas(buf, step == 0)
            step += 1
    a("s_nop 7")
    a("s_nop 7")
    a("s_mul_i32 s44, s42, 80")
    a("v_add_u32 v4, s44, v2")
    a("v_lshlrev_b32 v4, 12, v4")
    a("v_lshl_add_u32 v4, v3, 4, v4")
    a("s_lshl_b32 s46, s43, 6")
    a("v_add_u32 v4, s46, v4")
    for b in range(5):
        o = vR + b * 4
        for k in range(4):
            a(f"v_accvgpr_read_b32 v{vF}, a{b*8+2*k}")
            a(f"v_accvgpr_read_b32 v{vF+1}, a{b*8+2*k+1}")
            a(f"v_cvt_pk_bf16_f32 v{o+k}, v{vF}, v{vF+1}")
        a(f"s_mov_b32 s46, {b*16*4096}")
        a(f"buffer_store_dwordx4 v[{o}:{o+3}], v4, s[16:19], s46 offen")
    a.label(f"{L}_end")
    a("s_endpgm")
    return kernel_desc(L, 144 + 40, 80, 144), 163840


def gemma3_kernel(a):
    L = "gemma_kernel"
    NS, nst = 4, 10
    SB = 81920
    slotsz = 160 * 128
    kernel_header(a, L)
    a("s_cmp_ge_u32 s2, 256")
    a(f"s_cbranch_scc1 {L}_end")
    a(f"s_load_dwordx2 s[48:49], s[0:1], {KA['ws']}")
    a(f"s_load_dwordx4 s[52:55], s[0:1], {KA['hid_re']}")
    a("v_lshrrev_b32 v1, 6, v0")
    a("s_nop 0")
    a("v_readfirstlane_b32 s40, v1")
    a("v_and_b32 v1, 63, v0")
    a("v_and_b32 v2, 15, v1")
    a("v_lshrrev_b32 v3, 4, v1")
    a("s_and_b32 s3, s2, 7")
    a("s_lshr_b32 s4, s2, 3")
    a("s_and_b32 s5, s3, 1")
    a("s_lshl_b32 s5, s5, 2")
    a("s_and_b32 s6, s4, 3")
    a("s_add_u32 s5, s5, s6")
    a("s_lshr_b32 s6, s3, 1")
    a("s_lshl_b32 s6, s6, 3")
    a("s_lshr_b32 s7, s4, 2")
    a("s_add_u32 s6, s6, s7")
    a("s_cmp_lt_u32 s40, 4")
    a(f"s_cbranch_scc1 {L}_comp")
    a("s_sub_u32 s41, s40, 4")
    a("s_lshl_b32 s44, s41, 4")
    a("v_add_u32 v4, s44, v3")
    a("s_movk_i32 s45, 1280")
    a("v_mul_lo_u32 v5, v4, s45")
    a("v_lshl_add_u32 v5, v2, 4, v5")
    a("v_lshlrev_b32 v6, 5, v2")
    a("v_lshrrev_b32 v8, 3, v1")
    a("v_and_b32 v9, 7, v1")
    a("v_xor_b32 v9, v9, v3")
    a("s_and_b32 s44, s41, 1")
    a("s_lshl_b32 s44, s44, 2")
    a("v_xor_b32 v9, s44, v9")
    a("s_lshl_b32 s44, s41, 3")
    a("v_add_u32 v8, s44, v8")
    a("v_mul_lo_u32 v8, v8, s45")
    a("v_lshl_add_u32 v8, v9, 4, v8")
    a("s_lshl_b32 s42, s41, 10")
    a(f"s_add_u32 s42, s42, {SB}")
    a("s_waitcnt lgkmcnt(0)")
    a("s_cmp_ge_u32 s5, 4")
    a("s_cselect_b32 s8, s54, s52")
    a("s_cselect_b32 s9, s55, s53")
    a(f"s_mov_b32 s10, {160*1280}")
    a("s_mov_b32 s11, 0x00020000")
    a("s_and_b32 s7, s5, 3")
    a(f"s_mul_i32 s7, s7, {160*1280}")
    srd_add(a, 8, 7)
    srd(a, 12, 48, 49, 64 * 1280, WS["h"][0])
    a(f"s_mul_i32 s7, s6, {64*1280}")
    srd_add(a, 12, 7)
    srd(a, 20, 48, 49, WS["modf"][1], WS["modf"][0])
    q = []

    def wait_for(tag, extra=""):
        last = max(i for i, t in enumerate(q) if t == tag)
        a(f"s_waitcnt vmcnt({min(63, len(q)-1-last)}){extra}")

    def issue(s):
        for t in range(5):
            a(f"s_add_u32 m0, s42, {(s % NS)*slotsz + t*4096}")
            a(f"s_mov_b32 s46, {s*128 + t*32*1280}")
            a("buffer_load_dwordx4 v8, s[8:11], s46 offen lds")
            q.append(("S", s))
    Nr = lambda k, rp: 16 + (k * 4 + rp) * 4
    C1 = lambda k: 96 + k * 16
    SA = lambda k: 104 + k * 16
    for rp in range(4):
        a(f"s_movk_i32 s{56+rp}, {rp*4*1280}")

    def loadk(k):
        for rp in range(4):
            r = Nr(k, rp)
            a(f"buffer_load_dwordx4 v[{r}:{r+3}], v5, s[12:15], s{56+rp} offen offset:{k*256}")
            q.append(("K", k))
        for h in range(2):
            a(f"buffer_load_dwordx4 v[{C1(k)+4*h}:{C1(k)+4*h+3}], v6, s[20:23], 0 offen offset:{2560+k*512+h*16 if 2560+k*512+h*16 < 4096 else 0}" if False else
              f"buffer_load_dwordx4 v[{C1(k)+4*h}:{C1(k)+4*h+3}], v7, s[20:23], 0 offen offset:{k*512+h*16}")
            q.append(("K", k))
            a(f"buffer_load_dwordx4 v[{SA(k)+4*h}:{SA(k)+4*h+3}], v6, s[20:23], 0 offen offset:{k*512+h*16}")
            q.append(("K", k))
    a("v_add_u32 v7, 2560, v6")
    loadk(0); issue(0); issue(1); loadk(1); issue(2); issue(3); loadk(2); loadk(3); loadk(4)
    a("v_lshrrev_b32 v10, 1, v3")
    a("v_and_b32 v11, 7, v2")
    a("v_xor_b32 v10, v10, v11")
    a("v_lshrrev_b32 v11, 3, v2")
    a("v_lshlrev_b32 v11, 13, v11")
    a("v_lshl_add_u32 v11, v4, 7, v11")
    a("s_and_b32 s44, s41, 1")
    a("s_lshl_b32 s44, s44, 2")
    for h in range(2):
        a(f"s_add_u32 s45, s44, {2*h}")
        a(f"v_xor_b32 v9, s45, v10")
        a(f"v_lshl_add_u32 v{12+h}, v9, 4, v11")
        if h:
            a(f"v_add_u32 v{12+h}, {8*128}, v{12+h}")
        a(f"v_add_u32 v{14+h}, 0x8000, v{12+h}")
    T = 176

    def apply(k):
        wait_for(("K", k))
        for rp in range(4):
            for qq in range(4):
                r = Nr(k, rp) + qq
                unpack(a, T, T + 1, r)
                a(f"v_mul_f32 v{T}, v{T}, v{C1(k)+2*qq}")
                a(f"v_mul_f32 v{T+1}, v{T+1}, v{C1(k)+2*qq+1}")
                a(f"v_cvt_pk_bf16_f32 v{T+2}, v{T}, v{T+1}")
                unpack(a, T, T + 1, T + 2)
                a(f"v_add_f32 v{T}, v{T}, v{SA(k)+2*qq}")
                a(f"v_add_f32 v{T+1}, v{T+1}, v{SA(k)+2*qq+1}")
                a(f"v_cvt_pk_bf16_f32 v{r}, v{T}, v{T+1}")
            r = Nr(k, rp)
            off = k * 16384 + (rp & 1) * 512
            areg = 12 + (rp >> 1)
            if off >= 32768:
                off -= 32768
                areg += 2
            a(f"ds_write_b128 v{areg}, v[{r}:{r+3}] offset:{off}")
    for s in range(nst):
        if s < 5:
            apply(s)
        wait_for(("S", s), " lgkmcnt(0)")
        a("s_barrier")
        if s >= 1 and s - 1 + NS < nst:
            issue(s - 1 + NS)
    a("s_endpgm")
    a.label(f"{L}_comp")
    a("s_and_b32 s42, s40, 1")
    a("s_lshr_b32 s43, s40, 1")
    a("v_lshrrev_b32 v4, 1, v2")
    a("v_xor_b32 v4, v4, v3")
    a("v_and_b32 v5, 12, v2")
    a("v_lshlrev_b32 v5, 1, v5")
    a("v_and_b32 v6, 3, v2")
    a("v_or_b32 v5, v5, v6")
    vSA, vVA = 8, 16
    a(f"s_mul_i32 s44, s42, {80*128}")
    a(f"s_add_u32 s44, s44, {SB}")
    a(f"s_lshl_b32 s45, s43, 12")
    for j in range(2):
        a(f"v_xor_b32 v6, {4*j}, v4")
        a("v_lshlrev_b32 v6, 4, v6")
        a("v_lshl_add_u32 v7, v2, 7, v6")
        a("v_add_u32 v7, s44, v7")
        for sl in range(NS):
            a(f"v_add_u32 v{vSA+sl*2+j}, {sl*slotsz}, v7")
        a("v_lshl_add_u32 v7, v5, 7, v6")
        a(f"v_add_u32 v{vVA+j}, s45, v7")
        a(f"v_add_u32 v{vVA+2+j}, 0xa000, v{vVA+j}")
    a("s_mul_i32 s44, s42, 80")
    a("v_add_u32 v20, s44, v2")
    a("v_lshlrev_b32 v20, 12, v20")
    a("v_lshl_add_u32 v20, v3, 4, v20")
    a("s_lshl_b32 s46, s43, 6")
    a("v_add_u32 v20, s46, v20")
    a("s_waitcnt lgkmcnt(0)")
    srd(a, 16, 48, 49, 160 * 4096, WS["abt"][0])
    a(f"s_mul_i32 s7, s5, {160*4096}")
    srd_add(a, 16, 7)
    a("s_lshl_b32 s7, s6, 7")
    srd_add(a, 16, 7)
    vF = 24
    nfr = 7
    vA = 80
    vR = 120

    def frag_reads(s, j, buf):
        for vb in range(2):
            r = vF + (buf * nfr + 5 + vb) * 4
            hi = s >= 5
            off = (s - 5 * hi) * 8192 + vb * 512
            a(f"ds_read_b128 v[{r}:{r+3}], v{vVA+2*hi+j} offset:{off}")
        for b in range(5):
            r = vF + (buf * nfr + b) * 4
            a(f"ds_read_b128 v[{r}:{r+3}], v{vSA+(s%NS)*2+j} offset:{b*2048}")

    def mfmas(buf, first):
        for b in range(5):
            for vb in range(2):
                ar = vA + (b * 2 + vb) * 4
                sf = vF + (buf * nfr + b) * 4
                vf = vF + (buf * nfr + 5 + vb) * 4
                c = "0" if first else f"v[{ar}:{ar+3}]"
                a(f"v_mfma_f32_16x16x32_bf16 v[{ar}:{ar+3}], v[{vf}:{vf+3}], v[{sf}:{sf+3}], {c}")

    a("s_barrier")
    frag_reads(0, 0, 0)
    step = 0
    for s in range(nst):
        for j in range(2):
            buf = step & 1
            if j == 0:
                frag_reads(s, 1, buf ^ 1)
                a(f"s_waitcnt lgkmcnt({nfr})")
            else:
                a("s_waitcnt lgkmcnt(0)")
                if s + 1 < nst:
                    a("s_barrier")
                    frag_reads(s + 1, 0, buf ^ 1)
            mfmas(buf, step == 0)
            step += 1
    a("s_nop 7")
    a("s_nop 7")
    for b in range(5):
        o = vR + b * 4
        for k in range(4):
            a(f"v_cvt_pk_bf16_f32 v{o+k}, v{vA+b*8+2*k}, v{vA+b*8+2*k+1}")
        a(f"s_mov_b32 s46, {b*16*4096}")
        a(f"buffer_store_dwordx4 v[{o}:{o+3}], v20, s[16:19], s46 offen")
    a.label(f"{L}_end")
    a("s_endpgm")
    return kernel_desc(L, 180, 64, 180), 163840


def load_ptrs(a, names):
    for k, nm in enumerate(names):
        a(f"s_load_dwordx2 s[{48+2*k}:{49+2*k}], s[0:1], {KA[nm]}")
    a("s_waitcnt lgkmcnt(0)")


def setup_A(a):
    load_ptrs(a, ["ws", "hid_re", "hid_im"])
    a("s_and_b32 s3, s2, 7")
    a("s_lshr_b32 s4, s2, 3")
    a("s_and_b32 s5, s3, 3")
    a("s_lshl_b32 s5, s5, 2")
    a("s_and_b32 s6, s4, 3")
    a("s_add_u32 s5, s5, s6")
    a("s_lshr_b32 s6, s3, 2")
    a("s_lshl_b32 s6, s6, 3")
    a("s_lshr_b32 s7, s4, 2")
    a("s_add_u32 s6, s6, s7")
    a("s_cmp_ge_u32 s5, 8")
    a("s_cselect_b32 s8, s52, s50")
    a("s_cselect_b32 s9, s53, s51")
    a(f"s_mov_b32 s10, {80*1280}")
    a("s_mov_b32 s11, 0x00020000")
    a("s_and_b32 s7, s5, 7")
    a(f"s_mul_i32 s7, s7, {80*1280}")
    srd_add(a, 8, 7)
    srd(a, 12, 48, 49, 128 * 1280, WS["h"][0])
    a(f"s_mul_i32 s7, s6, {128*1280}")
    srd_add(a, 12, 7)
    srd(a, 16, 48, 49, 80 * 4096, WS["abt"][0])
    a(f"s_mul_i32 s7, s5, {80*4096}")
    srd_add(a, 16, 7)
    a("s_lshl_b32 s7, s6, 8")
    srd_add(a, 16, 7)
    return 1280, 1280


def pre_A(a, vE):
    a(f"s_load_dwordx4 s[56:59], s[0:1], {KA['seq_re']}")
    a("s_and_b32 s36, s2, 127")
    a("s_lshl_b32 s36, s36, 16")
    a("s_lshl_b32 s37, s40, 14")
    a("s_add_u32 s36, s36, s37")
    a("v_lshlrev_b32 v4, 4, v1")
    a("v_add_u32 v4, s36, v4")
    a("s_waitcnt lgkmcnt(0)")
    a("s_cmp_ge_u32 s2, 128")
    a("s_cselect_b32 s60, s58, s56")
    a("s_cselect_b32 s61, s59, s57")
    a(f"s_mov_b32 s62, {2048*2048*2}")
    a("s_mov_b32 s63, 0x00020000")
    for i in range(16):
        a(f"s_mov_b32 s37, {(i//4)*4096}")
        a(f"buffer_load_dwordx4 v[{vE+4*(i&7)}:{vE+4*(i&7)+3}], v4, s[60:63], s37 offen offset:{(i%4)*1024}")
    return 16


def epi_A(a, vR, vF, vE, nsb):
    a("v_lshlrev_b32 v4, 12, v2")
    a("v_lshl_add_u32 v4, v3, 4, v4")
    a("s_lshl_b32 s46, s40, 6")
    a("v_add_u32 v4, s46, v4")
    for b in range(nsb):
        r = vR + b * 8
        o = vF + (b & 1) * 4
        for k in range(4):
            a(f"v_cvt_pk_bf16_f32 v{o+k}, v{r+2*k}, v{r+2*k+1}")
        a(f"s_mov_b32 s46, {b*16*4096}")
        a(f"buffer_store_dwordx4 v[{o}:{o+3}], v4, s[16:19], s46 offen")


def setup_B(a):
    load_ptrs(a, ["ws", "seq_re", "seq_im"])
    a("s_and_b32 s3, s2, 7")
    a("s_lshr_b32 s4, s2, 3")
    if XB:
        a("s_and_b32 s5, s4, 1")
        a("s_lshl_b32 s6, s3, 1")
        a("s_bfe_u32 s7, s4, 0x10001")
        a("s_add_u32 s6, s6, s7")
        a("s_lshr_b32 s7, s4, 2")
    else:
        a("s_and_b32 s5, s3, 1")
        a("s_lshr_b32 s6, s3, 1")
        a("s_lshl_b32 s6, s6, 2")
        a("s_and_b32 s7, s4, 3")
        a("s_add_u32 s6, s6, s7")
        a("s_lshr_b32 s7, s4, 2")
    srd(a, 8, 48, 49, 80 * 4096, WS["abt"][0])
    a(f"s_mul_i32 s20, s5, {640*4096}")
    a(f"s_mul_i32 s21, s7, {80*4096}")
    a("s_add_u32 s20, s20, s21")
    srd_add(a, 8, 20)
    a("s_cmp_eq_u32 s5, 1")
    a("s_cselect_b32 s12, s52, s50")
    a("s_cselect_b32 s13, s53, s51")
    a(f"s_mov_b32 s14, {128*4096}")
    a("s_mov_b32 s15, 0x00020000")
    a(f"s_mul_i32 s20, s6, {128*4096}")
    srd_add(a, 12, 20)
    srd(a, 16, 48, 49, 128 * 1280, WS["y"][0])
    a(f"s_mul_i32 s20, s5, {2048*1280}")
    a(f"s_mul_i32 s21, s6, {128*1280}")
    a("s_add_u32 s20, s20, s21")
    a("s_mul_i32 s21, s7, 160")
    a("s_add_u32 s20, s20, s21")
    srd_add(a, 16, 20)
    return 4096, 4096


PFD = 13
XB = int(__import__('os').environ.get('XB', '0'))
XA = int(__import__('os').environ.get('XA', '0'))
XL = int(__import__('os').environ.get('XL', '1'))
RAMP1 = 1
STAMP = int(__import__('os').environ.get('STAMP', '0'))
STAMPK = [0]
TLBWARM = int(__import__('os').environ.get('TLBW', '0'))


PFMODE = int(__import__("os").environ.get("PFMODE", "3"))


def pre_B(a, vE):
    a("s_lshl_b32 s58, s7, 4")
    a("s_lshl_b32 s59, s40, 2")
    a("s_add_u32 s58, s58, s59")
    a("v_add_u32 v7, s58, v3")
    a("v_lshlrev_b32 v7, 12, v7")
    a("v_lshl_add_u32 v7, v2, 4, v7")
    if PFMODE == 1:
        for i in range(3, 16):
            a(f"buffer_load_dwordx4 v[{vE+4*(i&7)}:{vE+4*(i&7)+3}], v7, s[12:15], 0 offen offset:{i*256}")
    return 16


def stage_hook_B(a, s, vE):
    if PFMODE == 2 and s == 0:
        for i in range(3, 16):
            a(f"buffer_load_dwordx4 v[{vE+4*(i&7)}:{vE+4*(i&7)+3}], v7, s[12:15], 0 offen offset:{i*256}")
    if PFMODE == 3 and s < 4:
        for i in range(4 + 3 * s, min(16, 7 + 3 * s)):
            a(f"buffer_load_dwordx4 v[{vE+4*(i&7)}:{vE+4*(i&7)+3}], v7, s[12:15], 0 offen offset:{i*256}")


def make_epi_S(ldo, relu=False, resid=False):
    def epi(a, vR, vF, vE, nsb):
        a("s_lshl_b32 s46, s42, 5")
        a("v_add_u32 v4, s46, v2")
        a(f"s_movk_i32 s46, {ldo}")
        a("v_mul_lo_u32 v4, v4, s46")
        a("v_lshl_add_u32 v5, v3, 3, v4")
        a("v_lshl_add_u32 v4, v3, 4, v4")
        a(f"s_mov_b32 s47, {16*ldo}")
        if resid:
            pass
        cnt = 0
        for vb in range(2):
            so = "s47" if vb else "0"
            for p in range((nsb + 1) // 2):
                full = 2 * p + 1 < nsb
                nreg = 4 if full else 2
                o = vF + (cnt & 3) * 4
                cnt += 1
                xr = vE + 12 + vb * 10 + p * 4
                for k in range(nreg):
                    b = 2 * p + (k >> 1)
                    r = vR + (b * 2 + vb) * 4 + (k & 1) * 2
                    if relu:
                        a(f"v_max_f32 v{r}, 0, v{r}")
                        a(f"v_max_f32 v{r+1}, 0, v{r+1}")
                    a(f"v_cvt_pk_bf16_f32 v{o+k}, v{r}, v{r+1}")
                if resid:
                    t = vF + 24
                    for k in range(nreg):
                        unpack(a, t, t + 1, o + k)
                        unpack(a, t + 2, t + 3, vE + p * 4 + k)
                        a(f"v_mul_f32 v{t}, v{t}, v{t+2}")
                        a(f"v_mul_f32 v{t+1}, v{t+1}, v{t+3}")
                        a(f"v_cvt_pk_bf16_f32 v{t+4}, v{t}, v{t+1}")
                        unpack(a, t, t + 1, t + 4)
                        unpack(a, t + 2, t + 3, xr + k)
                        a(f"v_add_f32 v{t}, v{t}, v{t+2}")
                        a(f"v_add_f32 v{t+1}, v{t+1}, v{t+3}")
                        a(f"v_cvt_pk_bf16_f32 v{o+k}, v{t}, v{t+1}")
                a(f"buffer_store_dwordx{nreg} v[{o}:{o+nreg-1}], v{4 if full else 5}, s[16:19], {so} offen offset:{p*64}")
    return epi


def epi_D(a, vR, vF, vE, nsb):
    t = vF + 24
    for p in range(3):
        full = p < 2
        nreg = 4 if full else 2
        o = vF + p * 4
        for k in range(nreg):
            b = 2 * p + (k >> 1)
            r = vR + b * 4 + (k & 1) * 2
            a(f"v_cvt_pk_bf16_f32 v{o+k}, v{r}, v{r+1}")
            unpack(a, t, t + 1, o + k)
            unpack(a, t + 2, t + 3, vE + p * 4 + k)
            a(f"v_mul_f32 v{t}, v{t}, v{t+2}")
            a(f"v_mul_f32 v{t+1}, v{t+1}, v{t+3}")
            a(f"v_cvt_pk_bf16_f32 v{t+4}, v{t}, v{t+1}")
            unpack(a, t, t + 1, t + 4)
            unpack(a, t + 2, t + 3, vE + 12 + p * 4 + k)
            a(f"v_add_f32 v{t}, v{t}, v{t+2}")
            a(f"v_add_f32 v{t+1}, v{t+1}, v{t+3}")
            a(f"v_cvt_pk_bf16_f32 v{o+k}, v{t}, v{t+1}")
        a(f"buffer_store_dwordx{nreg} v[{o}:{o+nreg-1}], v{vE+24 if full else vE+25}, s[16:19], 0 offen offset:{p*64}")


def setup_C(a):
    load_ptrs(a, ["ws"])
    a("s_and_b32 s3, s2, 7")
    a("s_lshr_b32 s4, s2, 3")
    if XL:
        a("s_lshr_b32 s5, s4, 1")
        a("s_lshl_b32 s6, s3, 1")
        a("s_and_b32 s7, s4, 1")
        a("s_add_u32 s6, s6, s7")
    else:
        a("s_and_b32 s5, s3, 3")
        a("s_lshl_b32 s5, s5, 2")
        a("s_and_b32 s6, s4, 3")
        a("s_add_u32 s5, s5, s6")
        a("s_lshr_b32 s6, s3, 2")
        a("s_lshl_b32 s6, s6, 3")
        a("s_lshr_b32 s7, s4, 2")
        a("s_add_u32 s6, s6, s7")
    srd(a, 8, 48, 49, 96 * 1280, WS["w1t"][0])
    a(f"s_mul_i32 s20, s5, {96*1280}")
    srd_add(a, 8, 20)
    srd(a, 12, 48, 49, 128 * 1280, WS["h2"][0])
    a(f"s_mul_i32 s20, s6, {128*1280}")
    srd_add(a, 12, 20)
    srd(a, 16, 48, 49, 128 * 3072, WS["h1"][0])
    a(f"s_mul_i32 s20, s6, {128*3072}")
    a("s_mul_i32 s21, s5, 192")
    a("s_add_u32 s20, s20, s21")
    srd_add(a, 16, 20)
    return 1280, 1280


def setup_D(a):
    load_ptrs(a, ["ws", "out"])
    a("s_and_b32 s3, s2, 7")
    a("s_lshr_b32 s4, s2, 3")
    if XL:
        a("s_lshr_b32 s5, s4, 2")
        a("s_lshl_b32 s6, s3, 2")
        a("s_and_b32 s7, s4, 3")
        a("s_add_u32 s6, s6, s7")
    else:
        a("s_and_b32 s5, s3, 1")
        a("s_lshl_b32 s5, s5, 2")
        a("s_and_b32 s6, s4, 3")
        a("s_add_u32 s5, s5, s6")
        a("s_lshr_b32 s6, s3, 1")
        a("s_lshl_b32 s6, s6, 3")
        a("s_lshr_b32 s7, s4, 2")
        a("s_add_u32 s6, s6, s7")
    srd(a, 8, 48, 49, 80 * 3072, WS["w2t"][0])
    a(f"s_mul_i32 s20, s5, {80*3072}")
    srd_add(a, 8, 20)
    srd(a, 12, 48, 49, 64 * 3072, WS["h1"][0])
    a(f"s_mul_i32 s20, s6, {64*3072}")
    srd_add(a, 12, 20)
    a(f"s_mul_i32 s28, s6, {64*1280}")
    a("s_mul_i32 s29, s5, 160")
    a("s_add_u32 s30, s28, s29")
    srd(a, 16, 50, 51, 64 * 1280 - 0)
    srd_add(a, 16, 30)
    srd(a, 20, 48, 49, 64 * 1280, WS["x1"][0])
    srd_add(a, 20, 30)
    srd(a, 24, 48, 49, 160, WS["mod"][0] + 5 * 1280)
    srd_add(a, 24, 29)
    return 3072, 3072


def pre_epi_D(a, vE):
    a("v_lshlrev_b32 v4, 4, v3")
    a("v_lshlrev_b32 v5, 3, v3")
    a(f"buffer_load_dwordx4 v[{vE}:{vE+3}], v4, s[24:27], 0 offen")
    a(f"buffer_load_dwordx4 v[{vE+4}:{vE+7}], v4, s[24:27], 0 offen offset:64")
    a(f"buffer_load_dwordx2 v[{vE+8}:{vE+9}], v5, s[24:27], 0 offen offset:128")
    a("s_lshl_b32 s46, s42, 5")
    a("s_lshl_b32 s47, s43, 4")
    a("s_add_u32 s46, s46, s47")
    a("v_add_u32 v4, s46, v2")
    a("s_movk_i32 s46, 1280")
    a("v_mul_lo_u32 v4, v4, s46")
    a(f"v_lshl_add_u32 v{vE+25}, v3, 3, v4")
    a(f"v_lshl_add_u32 v{vE+24}, v3, 4, v4")
    r = vE + 12
    a(f"buffer_load_dwordx4 v[{r}:{r+3}], v{vE+24}, s[20:23], 0 offen")
    a(f"buffer_load_dwordx4 v[{r+4}:{r+7}], v{vE+24}, s[20:23], 0 offen offset:64")
    a(f"buffer_load_dwordx2 v[{r+8}:{r+9}], v{vE+25}, s[20:23], 0 offen offset:128")
    return 9


def main():
    a = Asm()
    descs = []
    launches = []
    FUSE = int(__import__("os").environ.get("FUSE", "0"))
    if not FUSE:
        descs.append(prep_kernel(a)); launches.append(("prep_kernel", PREP_WGS, 256, 10240))
    d, lds = fa_kernel(a) if FUSE else (gemma3_kernel(a) if int(__import__('os').environ.get('A3', '0')) else gemma2_kernel(a))
    descs.append(d); launches.append(("gemma_kernel", 256, 512, lds))
    d, lds = gemm_kernel(a, "gemmb_kernel", 2048, 80, 128, 128, True, 1, 3, setup_B, make_epi_S(1280), pre_epi=pre_B, stage_hook=stage_hook_B)
    descs.append(d); launches.append(("gemmb_kernel", 256, 512, lds))
    descs.append(ln_kernel(a, True)); launches.append(("ln2_kernel", LN2_WGS, 256, 10240))
    d, lds = gemm_kernel(a, "gemmc_kernel", 640, 96, 128, 64, True, 1, 5, setup_C, make_epi_S(3072, relu=True))
    descs.append(d); launches.append(("gemmc_kernel", 256, 512, lds))
    d, lds = gemm_kernel(a, "gemmd_kernel", 1536, 80, 64, 128, True, 2, 4, setup_D, epi_D,
                         pre_epi=pre_epi_D)
    descs.append(d); launches.append(("gemmd_kernel", 256, 512, lds))

    hdr = open(f"cdna_kernels/{NAME}.s.ref").read().split("\n")
    out = []
    for ln in hdr:
        if ln.startswith(";") and "@launch" not in ln and "Override" not in ln and "grid=ceil" not in ln:
            out.append(ln)
        elif not ln.startswith(";"):
            break
    for k, g, b, lds in launches:
        out.append(f"; @launch kernel={k} grid=({g},1,1) block=({b},1,1) lds={lds}")
    out.append('.amdgcn_target "amdgcn-amd-amdhsa--gfx950"')
    out.append(".text")
    a.raw(".p2align 4")
    a.label("code_end_label")
    txt = "\n".join(out) + "\n" + a.text()
    txt += '.section .rodata,"a"\n'
    for d in descs:
        txt += ".p2align 6\n" + d
    path = sys.argv[1] if len(sys.argv) > 1 else f"cdna_kernels/{NAME}.s"
    open(path, "w").write(txt)
    print("wrote", path, len(txt), "bytes")


if __name__ == "__main__":
    main()
```

```python
import sys

NAME = "adaLN_cond__spectral_fnet__dense_activation_relu__prompt"
S_LEN, D, DFF = 2048, 640, 1536

KA = dict(x=0, seq_re=8, seq_im=16, hid_re=24, hid_im=32, bx=40, w1=48, w2=56, c=64, wmod=72,
          out=80, dbg=88, ws=96)

def _al(x, a=0x10000):
    return (x + a - 1) // a * a
WS = {}
_o = 0
for nm, sz in [("mod", 3840 * 2), ("modf", 3840 * 4), ("w1t", DFF * D * 2), ("w2t", D * DFF * 2), ("h", S_LEN * D * 2),
               ("abt", 2 * D * S_LEN * 2), ("y", 2 * S_LEN * D * 2), ("x1", S_LEN * D * 2),
               ("h2", S_LEN * D * 2), ("h1", S_LEN * DFF * 2)]:
    WS[nm] = (_o, sz)
    _o = _al(_o + sz)


CODEPF = 1
CODEPF2 = 0
HIDX = int(__import__('os').environ.get('HIDX', '0'))
LN0 = 224 if HIDX else 152
PREP_WGS = LN0 + 256 + 8 * CODEPF
LN2_WGS = 256 + 480
LN1_WGS = 256


class Asm:
    def __init__(self):
        self.lines = []

    def __call__(self, s):
        import re
        m = re.search(r"offset:(\d+)", s)
        if m and s.startswith("buffer_"):
            assert int(m.group(1)) <= 4095, s
        if m and s.startswith("ds_"):
            assert int(m.group(1)) <= 65535, s
        self.lines.append("    " + s)

    def label(self, s):
        self.lines.append(s + ":")

    def raw(self, s):
        self.lines.append(s)

    def text(self):
        return "\n".join(self.lines) + "\n"


def srd(a, sreg, base_lo, base_hi, nbytes, add=0):
    if add:
        a(f"s_add_u32 s{sreg}, s{base_lo}, {add}")
        a(f"s_addc_u32 s{sreg+1}, s{base_hi}, 0")
    else:
        a(f"s_mov_b32 s{sreg}, s{base_lo}")
        a(f"s_mov_b32 s{sreg+1}, s{base_hi}")
    a(f"s_mov_b32 s{sreg+2}, {nbytes}")
    a(f"s_mov_b32 s{sreg+3}, 0x00020000")


def srd_add(a, sreg, soff):
    a(f"s_add_u32 s{sreg}, s{sreg}, s{soff}")
    a(f"s_addc_u32 s{sreg+1}, s{sreg+1}, 0")


def kernel_header(a, label):
    a.raw(f".globl {label}")
    a.raw(".p2align 8")
    a.raw(f".type {label},@function")
    a.label(label)


def kernel_desc(label, nvgpr, nsgpr, accum):
    return f""".amdhsa_kernel {label}
  .amdhsa_next_free_vgpr {nvgpr}
  .amdhsa_next_free_sgpr {nsgpr}
  .amdhsa_accum_offset {accum}
  .amdhsa_group_segment_fixed_size 0
  .amdhsa_kernarg_size 104
  .amdhsa_user_sgpr_count 2
  .amdhsa_user_sgpr_kernarg_segment_ptr 1
  .amdhsa_system_sgpr_workgroup_id_x 1
  .amdhsa_float_denorm_mode_32 3
  .amdhsa_float_denorm_mode_16_64 3
.end_amdhsa_kernel
"""


_cp = [0]


def code_prefetch(a, first, last_end, sreg, vaddr, vdst, idx_sgpr_expr):
    if not CODEPF2:
        return
    _cp[0] += 1
    ref = f"cpref_{_cp[0]}"
    a(f"s_getpc_b64 s[{sreg}:{sreg+1}]")
    a.label(ref)
    a(f"s_add_u32 s{sreg}, s{sreg}, {first} - {ref}")
    a(f"s_addc_u32 s{sreg+1}, s{sreg+1}, 0")
    a(f"s_lshr_b32 s{sreg+2}, s2, 3")
    a(f"s_and_b32 s{sreg+2}, s{sreg+2}, 31")
    a(f"s_lshl_b32 s{sreg+2}, s{sreg+2}, 10")
    a(f"v_and_b32 v{vaddr}, 63, v0")
    a(f"v_lshlrev_b32 v{vaddr}, 4, v{vaddr}")
    a(f"v_add_u32 v{vaddr}, s{sreg+2}, v{vaddr}")
    a(f"s_mov_b32 s{sreg+2}, {last_end} - {first} - 16")
    a(f"v_min_u32 v{vaddr}, s{sreg+2}, v{vaddr}")
    a(f"global_load_dwordx4 v[{vdst}:{vdst+3}], v{vaddr}, s[{sreg}:{sreg+1}] offset:0")


def unpack(a, lo, hi, src):
    a(f"v_lshlrev_b32 v{lo}, 16, v{src}")
    a(f"v_and_b32 v{hi}, 0xffff0000, v{src}")


def transpose_body(a, L, base):
    a.label(f"{L}_tr")
    a(f"s_load_dwordx2 s[4:5], s[0:1], {KA['ws']}")
    a(f"s_load_dwordx4 s[28:31], s[0:1], {KA['w1']}")
    a(f"s_sub_u32 s6, s2, {base}")
    a("s_waitcnt lgkmcnt(0)")
    a("s_cmp_ge_u32 s6, 240")
    a(f"s_cbranch_scc1 {L}_tr2")
    a("s_mul_i32 s7, s6, 2731")
    a("s_lshr_b32 s7, s7, 16")
    a("s_mul_i32 s20, s7, 24")
    a("s_sub_u32 s20, s6, s20")
    srd(a, 8, 28, 29, 640 * 1536 * 2)
    srd(a, 12, 4, 5, WS["w1t"][1], WS["w1t"][0])
    a("s_movk_i32 s21, 3072")
    a("s_movk_i32 s22, 1280")
    a(f"s_branch {L}_trgo")
    a.label(f"{L}_tr2")
    a("s_sub_u32 s6, s6, 240")
    a("s_mul_i32 s7, s6, 6554")
    a("s_lshr_b32 s7, s7, 16")
    a("s_mul_i32 s20, s7, 10")
    a("s_sub_u32 s20, s6, s20")
    srd(a, 8, 30, 31, 640 * 1536 * 2)
    srd(a, 12, 4, 5, WS["w2t"][1], WS["w2t"][0])
    a("s_movk_i32 s21, 1280")
    a("s_movk_i32 s22, 3072")
    a.label(f"{L}_trgo")
    a("v_lshrrev_b32 v1, 3, v0")
    a("v_and_b32 v2, 7, v0")
    a("s_lshl_b32 s23, s7, 6")
    a("v_add_u32 v3, s23, v1")
    a("v_mul_lo_u32 v3, v3, s21")
    a("v_lshl_add_u32 v3, v2, 4, v3")
    a("s_lshl_b32 s24, s20, 7")
    a("v_add_u32 v3, s24, v3")
    a("s_lshl_b32 s25, s21, 5")
    a("buffer_load_dwordx4 v[8:11], v3, s[8:11], 0 offen")
    a("buffer_load_dwordx4 v[12:15], v3, s[8:11], s25 offen")
    a("s_movk_i32 s26, 1152")
    a("v_mul_lo_u32 v4, v2, s26")
    a("v_lshl_add_u32 v4, v1, 1, v4")
    a("s_waitcnt vmcnt(1)")
    for q in range(4):
        a(f"ds_write_b16 v4, v{8+q} offset:{(2*q)*144}")
        a(f"ds_write_b16_d16_hi v4, v{8+q} offset:{(2*q+1)*144}")
    a("s_waitcnt vmcnt(0)")
    for q in range(4):
        a(f"ds_write_b16 v4, v{12+q} offset:{(2*q)*144+64}")
        a(f"ds_write_b16_d16_hi v4, v{12+q} offset:{(2*q+1)*144+64}")
    a("s_waitcnt lgkmcnt(0)")
    a("s_barrier")
    a("s_movk_i32 s26, 144")
    a("v_mul_lo_u32 v5, v1, s26")
    a("v_lshl_add_u32 v5, v2, 4, v5")
    a("ds_read_b128 v[8:11], v5")
    a(f"ds_read_b128 v[12:15], v5 offset:{32*144}")
    a("s_lshl_b32 s23, s20, 6")
    a("v_add_u32 v6, s23, v1")
    a("v_mul_lo_u32 v6, v6, s22")
    a("v_lshl_add_u32 v6, v2, 4, v6")
    a("s_lshl_b32 s24, s7, 7")
    a("v_add_u32 v6, s24, v6")
    a("s_lshl_b32 s25, s22, 5")
    a("s_waitcnt lgkmcnt(1)")
    a("buffer_store_dwordx4 v[8:11], v6, s[12:15], 0 offen")
    a("s_waitcnt lgkmcnt(0)")
    a("buffer_store_dwordx4 v[12:15], v6, s[12:15], s25 offen")
    a(f"s_branch {L}_end")


def prep_kernel(a):
    L = "prep_kernel"
    kernel_header(a, L)
    a(f"s_cmp_ge_u32 s2, {PREP_WGS}")
    a(f"s_cbranch_scc1 {L}_end")
    if CODEPF:
        a(f"s_cmp_lt_u32 s2, {LN0+256}")
        a(f"s_cbranch_scc1 {L}_nocp")
        a("s_getpc_b64 s[4:5]")
        a.label(f"{L}_pcref")
        a(f"s_sub_u32 s4, s4, {L}_pcref - {L}")
        a("s_subb_u32 s5, s5, 0")
        a("v_lshlrev_b32 v1, 4, v0")
        a(f"s_mov_b32 s6, code_end_label - {L} - 16")
        for i in range(12):
            a("v_min_u32 v2, s6, v1")
            a(f"global_load_dwordx4 v[{4+4*i}:{7+4*i}], v2, s[4:5] offset:0")
            a("v_add_u32 v1, 0x1000, v1")
        a("s_endpgm")
        a.label(f"{L}_nocp")
    a(f"s_cmp_ge_u32 s2, {LN0}")
    a(f"s_cbranch_scc1 {L}_ln")
    if not HIDX:
        a("s_cmp_ge_u32 s2, 146")
        a(f"s_cbranch_scc1 {L}_end")
    a("s_cmp_ge_u32 s2, 120")
    a(f"s_cbranch_scc1 {L}_pf")
    a(f"s_load_dwordx2 s[4:5], s[0:1], {KA['ws']}")
    a(f"s_load_dwordx4 s[32:35], s[0:1], {KA['c']}")
    a("s_waitcnt lgkmcnt(0)")
    a("s_and_b32 s6, s2, 7")
    a("s_mul_i32 s6, s6, 15")
    a("s_lshr_b32 s7, s2, 3")
    a("s_add_u32 s6, s6, s7")
    srd(a, 8, 34, 35, 640 * 3840 * 2)
    srd(a, 12, 32, 33, 640 * 2)
    srd(a, 16, 4, 5, WS["mod"][1], WS["mod"][0])
    a("v_lshrrev_b32 v1, 2, v0")
    a("v_and_b32 v2, 3, v0")
    a("s_movk_i32 s20, 7680")
    a("v_mul_lo_u32 v3, v1, s20")
    a("v_lshl_add_u32 v3, v2, 4, v3")
    a("s_lshl_b32 s21, s6, 6")
    a("v_add_u32 v3, s21, v3")
    a("v_lshlrev_b32 v4, 1, v1")
    for p in range(10):
        a(f"buffer_load_ushort v{10+p}, v4, s[12:15], 0 offen offset:{p*128}")
    for p in range(10):
        a(f"s_mov_b32 s22, {p*64*7680}")
        a(f"buffer_load_dwordx4 v[{20+4*p}:{23+4*p}], v3, s[8:11], s22 offen")
    for k in range(8):
        a(f"v_mov_b32 v{60+k}, 0")
    a("s_waitcnt vmcnt(10)")
    a("s_mov_b32 s23, 0xbfb8aa3b")
    for p in range(10):
        a(f"v_lshlrev_b32 v{10+p}, 16, v{10+p}")
        a(f"v_mul_f32 v70, s23, v{10+p}")
        a("v_exp_f32 v70, v70")
        a("s_nop 0")
        a("v_add_f32 v70, 1.0, v70")
        a("v_rcp_f32 v70, v70")
        a("s_nop 0")
        a(f"v_mul_f32 v70, v{10+p}, v70")
        a("v_cvt_pk_bf16_f32 v70, v70, v70")
        a(f"v_lshlrev_b32 v{10+p}, 16, v70")
    for p in range(10):
        a(f"s_waitcnt vmcnt({9-p})")
        for q in range(4):
            unpack(a, 70, 71, 20 + 4 * p + q)
            a(f"v_fmac_f32 v{60+2*q}, v{10+p}, v70")
            a(f"v_fmac_f32 v{61+2*q}, v{10+p}, v71")
    a("v_lshlrev_b32 v5, 7, v1")
    a("v_lshl_add_u32 v5, v2, 5, v5")
    a("ds_write_b128 v5, v[60:63]")
    a("ds_write_b128 v5, v[64:67] offset:16")
    a("s_waitcnt lgkmcnt(0)")
    a("s_barrier")
    a("v_and_b32 v6, 31, v0")
    a("v_lshrrev_b32 v7, 5, v0")
    a("v_lshlrev_b32 v8, 10, v7")
    a("v_lshl_add_u32 v8, v6, 2, v8")
    for i in range(8):
        a(f"ds_read_b32 v{20+i}, v8 offset:{i*128}")
    a("s_waitcnt lgkmcnt(0)")
    a("v_add_f32 v20, v20, v21")
    a("v_add_f32 v22, v22, v23")
    a("v_add_f32 v24, v24, v25")
    a("v_add_f32 v26, v26, v27")
    a("v_add_f32 v20, v20, v22")
    a("v_add_f32 v24, v24, v26")
    a("v_add_f32 v20, v20, v24")
    a("v_lshlrev_b32 v9, 2, v0")
    a("ds_write_b32 v9, v20 offset:8192")
    a("s_waitcnt lgkmcnt(0)")
    a("s_barrier")
    a("v_lshlrev_b32 v9, 2, v6")
    for i in range(8):
        a(f"ds_read_b32 v{20+i}, v9 offset:{8192+i*128}")
    a("s_waitcnt lgkmcnt(0)")
    a("v_add_f32 v20, v20, v21")
    a("v_add_f32 v22, v22, v23")
    a("v_add_f32 v24, v24, v25")
    a("v_add_f32 v26, v26, v27")
    a("v_add_f32 v20, v20, v22")
    a("v_add_f32 v24, v24, v26")
    a("v_add_f32 v20, v20, v24")
    a("v_cvt_pk_bf16_f32 v20, v20, v20")
    a("v_lshlrev_b32 v21, 16, v20")
    a("v_add_f32 v22, 1.0, v21")
    a("v_cvt_pk_bf16_f32 v22, v22, v22")
    a("v_lshlrev_b32 v22, 16, v22")
    a("s_mul_i32 s26, s6, 3277")
    a("s_lshr_b32 s26, s26, 16")
    a("s_cmp_eq_u32 s26, 1")
    a("s_cselect_b32 s27, 1, 0")
    a("s_cmp_eq_u32 s26, 4")
    a("s_cselect_b32 s27, 1, s27")
    a("s_cmp_eq_u32 s27, 1")
    a(f"s_cbranch_scc0 {L}_gnc")
    a("v_mov_b32 v21, v22")
    a.label(f"{L}_gnc")
    srd(a, 28, 4, 5, WS["modf"][1], WS["modf"][0])
    a("v_lshlrev_b32 v9, 1, v6")
    a("v_add_u32 v9, s21, v9")
    a("v_lshlrev_b32 v10, 1, v9")
    a("v_cmp_gt_u32 vcc, 32, v0")
    a("s_and_saveexec_b64 s[24:25], vcc")
    a(f"s_cbranch_execz {L}_end")
    a("buffer_store_short v20, v9, s[16:19], 0 offen")
    a("buffer_store_dword v21, v10, s[28:31], 0 offen")
    a(f"s_branch {L}_end")
    a.label(f"{L}_pf")
    a(f"s_load_dwordx8 s[28:35], s[0:1], {KA['seq_re']}")
    a("s_sub_u32 s6, s2, 120")
    a("s_waitcnt lgkmcnt(0)")
    if HIDX:
        a("s_and_b32 s7, s2, 1")
        a("s_cmp_eq_u32 s7, 1")
        a("s_cselect_b32 s8, s34, s32")
        a("s_cselect_b32 s9, s35, s33")
        a(f"s_mov_b32 s10, {640*640*2}")
        a("s_mov_b32 s11, 0x00020000")
        a("s_lshr_b32 s6, s6, 3")
    else:
        a("s_mov_b32 s8, s32")
        a("s_mov_b32 s9, s33")
        a(f"s_mov_b32 s10, {640*640*2}")
        a("s_mov_b32 s11, 0x00020000")
        a("s_cmp_lt_u32 s6, 13")
        a(f"s_cbranch_scc1 {L}_pfgo")
        a("s_sub_u32 s6, s6, 13")
        a("s_mov_b32 s8, s34")
        a("s_mov_b32 s9, s35")
    a.label(f"{L}_pfgo")
    a("s_lshl_b32 s6, s6, 16")
    a("v_lshlrev_b32 v1, 4, v0")
    a("v_add_u32 v1, s6, v1")
    for i in range(16):
        a(f"s_mov_b32 s7, {i*4096}")
        a(f"buffer_load_dwordx4 v[{4+4*i}:{7+4*i}], v1, s[8:11], s7 offen")
    a(f"s_branch {L}_end")
    a.label(f"{L}_ln")
    a(f"s_load_dwordx2 s[4:5], s[0:1], {KA['ws']}")
    a(f"s_load_dwordx2 s[6:7], s[0:1], {KA['x']}")
    a(f"s_sub_u32 s3, s2, {LN0}")
    if XL:
        a("s_and_b32 s20, s3, 7")
        a("s_lshl_b32 s20, s20, 5")
        a("s_lshr_b32 s3, s3, 3")
        a("s_add_u32 s3, s3, s20")
    a("v_lshrrev_b32 v1, 5, v0")
    a("s_lshl_b32 s3, s3, 3")
    a("v_add_u32 v1, s3, v1")
    a("v_and_b32 v2, 31, v0")
    a("v_lshlrev_b32 v2, 3, v2")
    a("s_movk_i32 s3, 1280")
    a("v_mul_lo_u32 v1, v1, s3")
    a("v_add_u32 v1, v1, v2")
    a("s_waitcnt lgkmcnt(0)")
    NB = S_LEN * D * 2
    srd(a, 8, 6, 7, NB)
    srd(a, 16, 4, 5, NB, WS["h"][0])
    for i in range(5):
        a(f"buffer_load_dwordx2 v[{10+2*i}:{11+2*i}], v1, s[8:11], 0 offen offset:{i*256}")
    a("s_waitcnt vmcnt(0)")
    for k in range(10):
        unpack(a, 20 + 2 * k, 21 + 2 * k, 10 + k)
    ln_core(a, 20, 0, 0, 40, 50, apply=False)
    for i in range(5):
        a(f"buffer_store_dwordx2 v[{40+2*i}:{41+2*i}], v1, s[16:19], 0 offen offset:{i*256}")
    a.label(f"{L}_end")
    a("s_endpgm")
    return kernel_desc(L, 72, 40, 72)


def reduce32(a, v, t):
    a("s_nop 1")
    a(f"v_add_f32_dpp v{t}, v{v}, v{v} quad_perm:[1,0,3,2] row_mask:0xf bank_mask:0xf")
    a("s_nop 1")
    a(f"v_add_f32_dpp v{v}, v{t}, v{t} quad_perm:[2,3,0,1] row_mask:0xf bank_mask:0xf")
    a("s_nop 1")
    a(f"v_add_f32_dpp v{t}, v{v}, v{v} row_half_mirror row_mask:0xf bank_mask:0xf")
    a("s_nop 1")
    a(f"v_add_f32_dpp v{v}, v{t}, v{t} row_mirror row_mask:0xf bank_mask:0xf")
    a(f"ds_swizzle_b32 v{t}, v{v} offset:0x401F")
    a("s_waitcnt lgkmcnt(0)")
    a(f"v_add_f32 v{v}, v{v}, v{t}")


def ln_core(a, X, C1, SH, OUT, T, apply=True):
    s, t, m, r = T, T + 1, T + 2, T + 3
    a(f"v_add_f32 v{s}, v{X}, v{X+1}")
    a(f"v_add_f32 v{t}, v{X+2}, v{X+3}")
    for k in range(4, 20, 2):
        a(f"v_add_f32 v{s}, v{s}, v{X+k}")
        a(f"v_add_f32 v{t}, v{t}, v{X+k+1}")
    a(f"v_add_f32 v{s}, v{s}, v{t}")
    reduce32(a, s, t)
    a(f"v_mul_f32 v{m}, 0x3acccccd, v{s}")
    a(f"v_sub_f32 v{t}, v{X}, v{m}")
    a(f"v_mul_f32 v{s}, v{t}, v{t}")
    a(f"v_sub_f32 v{t}, v{X+1}, v{m}")
    a(f"v_mul_f32 v{r}, v{t}, v{t}")
    for k in range(2, 20, 2):
        a(f"v_sub_f32 v{t}, v{X+k}, v{m}")
        a(f"v_fmac_f32 v{s}, v{t}, v{t}")
        a(f"v_sub_f32 v{t}, v{X+k+1}, v{m}")
        a(f"v_fmac_f32 v{r}, v{t}, v{t}")
    a(f"v_add_f32 v{s}, v{s}, v{r}")
    reduce32(a, s, t)
    a(f"v_mul_f32 v{s}, 0x3acccccd, v{s}")
    a(f"v_cvt_pk_bf16_f32 v{t}, v{m}, v{s}")
    unpack(a, m, s, t)
    a(f"v_add_f32 v{s}, 0x3727c5ac, v{s}")
    a(f"v_cvt_pk_bf16_f32 v{t}, v{s}, v{s}")
    a(f"v_lshlrev_b32 v{s}, 16, v{t}")
    a(f"v_sqrt_f32 v{s}, v{s}")
    a("s_nop 0")
    a(f"v_cvt_pk_bf16_f32 v{t}, v{s}, v{s}")
    a(f"v_lshlrev_b32 v{s}, 16, v{t}")
    a(f"v_rcp_f32 v{r}, v{s}")
    a("s_nop 0")
    u, w = T + 4, T + 5
    for k in range(0, 20, 2):
        a(f"v_sub_f32 v{u}, v{X+k}, v{m}")
        a(f"v_sub_f32 v{w}, v{X+k+1}, v{m}")
        a(f"v_cvt_pk_bf16_f32 v{t}, v{u}, v{w}")
        unpack(a, u, w, t)
        a(f"v_mul_f32 v{u}, v{u}, v{r}")
        a(f"v_mul_f32 v{w}, v{w}, v{r}")
        if not apply:
            a(f"v_cvt_pk_bf16_f32 v{OUT+k//2}, v{u}, v{w}")
            continue
        a(f"v_cvt_pk_bf16_f32 v{t}, v{u}, v{w}")
        unpack(a, u, w, t)
        a(f"v_mul_f32 v{u}, v{u}, v{C1+k}")
        a(f"v_mul_f32 v{w}, v{w}, v{C1+k+1}")
        a(f"v_cvt_pk_bf16_f32 v{t}, v{u}, v{w}")
        unpack(a, u, w, t)
        a(f"v_add_f32 v{u}, v{u}, v{SH+k}")
        a(f"v_add_f32 v{w}, v{w}, v{SH+k+1}")
        a(f"v_cvt_pk_bf16_f32 v{OUT+k//2}, v{u}, v{w}")


def ln_kernel(a, second):
    L = "ln2_kernel" if second else "ln1_kernel"
    kernel_header(a, L)
    if not second:
        a(f"s_cmp_ge_u32 s2, {LN1_WGS}")
        a(f"s_cbranch_scc1 {L}_end")
        a("s_cmp_lt_u32 s2, 256")
        a(f"s_cbranch_scc1 {L}_go")
        a(f"s_load_dwordx4 s[28:31], s[0:1], {KA['seq_re']}")
        a("s_sub_u32 s6, s2, 192")
        a("s_waitcnt lgkmcnt(0)")
        a("s_cmp_ge_u32 s6, 128")
        a("s_cselect_b32 s8, s30, s28")
        a("s_cselect_b32 s9, s31, s29")
        a(f"s_mov_b32 s10, {2048*2048*2}")
        a("s_mov_b32 s11, 0x00020000")
        a("s_and_b32 s6, s6, 127")
        a("s_lshl_b32 s6, s6, 16")
        a("v_lshlrev_b32 v1, 4, v0")
        a("v_add_u32 v1, s6, v1")
        for i in range(16):
            a(f"s_mov_b32 s7, {i*4096}")
            a(f"buffer_load_dwordx4 v[{4+4*i}:{7+4*i}], v1, s[8:11], s7 offen")
        a("s_endpgm")
        a.label(f"{L}_go")
    else:
        a(f"s_cmp_ge_u32 s2, {LN2_WGS}")
        a(f"s_cbranch_scc1 {L}_end")
        a("s_cmp_lt_u32 s2, 256")
        a(f"s_cbranch_scc1 {L}_go")
        transpose_body(a, L, 256)
        a.label(f"{L}_go")
    a(f"s_load_dwordx2 s[4:5], s[0:1], {KA['ws']}")
    a(f"s_load_dwordx2 s[6:7], s[0:1], {KA['x']}")
    a("s_waitcnt lgkmcnt(0)")
    NB = S_LEN * D * 2
    srd(a, 8, 6, 7, NB)
    srd(a, 12, 4, 5, WS["mod"][1], WS["mod"][0])
    srd(a, 16, 4, 5, NB, WS["h2" if second else "h"][0])
    if second:
        srd(a, 20, 4, 5, NB, WS["y"][0])
        srd(a, 24, 4, 5, NB, WS["y"][0] + NB)
        srd(a, 28, 4, 5, NB, WS["x1"][0])
    a("v_lshrrev_b32 v1, 5, v0")
    if XL:
        a("s_and_b32 s33, s2, 7")
        a("s_lshl_b32 s33, s33, 5")
        a("s_lshr_b32 s3, s2, 3")
        a("s_add_u32 s3, s3, s33")
        a("s_lshl_b32 s3, s3, 3")
    else:
        a("s_lshl_b32 s3, s2, 3")
    a("v_add_u32 v1, s3, v1")
    a("v_and_b32 v2, 31, v0")
    a("v_lshlrev_b32 v2, 3, v2")
    a("s_movk_i32 s3, 1280")
    a("v_mul_lo_u32 v1, v1, s3")
    a("v_add_u32 v1, v1, v2")
    for i in range(5):
        a(f"buffer_load_dwordx2 v[{10+2*i}:{11+2*i}], v1, s[8:11], 0 offen offset:{i*256}")
    if second:
        for i in range(5):
            a(f"buffer_load_dwordx2 v[{20+2*i}:{21+2*i}], v1, s[20:23], 0 offen offset:{i*256}")
        for i in range(5):
            a(f"buffer_load_dwordx2 v[{30+2*i}:{31+2*i}], v1, s[24:27], 0 offen offset:{i*256}")
        for i in range(5):
            a(f"buffer_load_dwordx2 v[{40+2*i}:{41+2*i}], v2, s[12:15], 0 offen offset:{2*1280+i*256}")
    coff = (4 if second else 1) * 1280
    soff = (3 if second else 0) * 1280
    a(f"s_movk_i32 s3, {coff}")
    for i in range(5):
        a(f"buffer_load_dwordx2 v[{50+2*i}:{51+2*i}], v2, s[12:15], s3 offen offset:{i*256}")
    a(f"s_movk_i32 s32, {soff}")
    for i in range(5):
        a(f"buffer_load_dwordx2 v[{60+2*i}:{61+2*i}], v2, s[12:15], s32 offen offset:{i*256}")
    X, C1, SH, OUT, T = 70, 90, 110, 130, 140
    if second:
        a("s_waitcnt vmcnt(10)")
        for k in range(10):
            unpack(a, T, T + 1, 20 + k)
            unpack(a, T + 2, T + 3, 30 + k)
            a(f"v_sub_f32 v{T}, v{T}, v{T+2}")
            a(f"v_sub_f32 v{T+1}, v{T+1}, v{T+3}")
            a(f"v_cvt_pk_bf16_f32 v{T+4}, v{T}, v{T+1}")
            unpack(a, T, T + 1, T + 4)
            unpack(a, T + 2, T + 3, 40 + k)
            a(f"v_mul_f32 v{T}, v{T}, v{T+2}")
            a(f"v_mul_f32 v{T+1}, v{T+1}, v{T+3}")
            a(f"v_cvt_pk_bf16_f32 v{T+4}, v{T}, v{T+1}")
            unpack(a, T, T + 1, T + 4)
            unpack(a, T + 2, T + 3, 10 + k)
            a(f"v_add_f32 v{T}, v{T}, v{T+2}")
            a(f"v_add_f32 v{T+1}, v{T+1}, v{T+3}")
            a(f"v_cvt_pk_bf16_f32 v{20+k}, v{T}, v{T+1}")
            unpack(a, X + 2 * k, X + 2 * k + 1, 20 + k)
        for i in range(5):
            a(f"buffer_store_dwordx2 v[{20+2*i}:{21+2*i}], v1, s[28:31], 0 offen offset:{i*256}")
        a("s_waitcnt vmcnt(5)")
    else:
        a("s_waitcnt vmcnt(10)")
        for k in range(10):
            unpack(a, X + 2 * k, X + 2 * k + 1, 10 + k)
        a("s_waitcnt vmcnt(0)")
    for k in range(10):
        unpack(a, T, T + 1, 50 + k)
        a(f"v_add_f32 v{T}, 1.0, v{T}")
        a(f"v_add_f32 v{T+1}, 1.0, v{T+1}")
        a(f"v_cvt_pk_bf16_f32 v{T+2}, v{T}, v{T+1}")
        unpack(a, C1 + 2 * k, C1 + 2 * k + 1, T + 2)
        unpack(a, SH + 2 * k, SH + 2 * k + 1, 60 + k)
    ln_core(a, X, C1, SH, OUT, T)
    for i in range(5):
        a(f"buffer_store_dwordx2 v[{OUT+2*i}:{OUT+1+2*i}], v1, s[16:19], 0 offen offset:{i*256}")
    a.label(f"{L}_end")
    a("s_endpgm")
    return kernel_desc(L, 152, 40, 152)


def rowmap(paired_ok, nb, b, i):
    if paired_ok and not (b == nb - 1 and nb % 2 == 1):
        return 32 * (b >> 1) + 8 * (i >> 2) + 4 * (b & 1) + (i & 3)
    return 16 * b + i


def fsw_row(paired_ok, nb, n):
    npair = (nb // 2) * 32 if paired_ok else 0
    if n < npair:
        return 2 * ((n >> 3) & 3) + ((n >> 1) & 1)
    return (n >> 1) & 7


def check_conflicts(paired_ok, nb):
    groups = [[0, 1, 2, 3, 12, 13, 14, 15] + list(range(20, 28)),
              list(range(4, 12)) + [16, 17, 18, 19, 28, 29, 30, 31]]
    groups += [[x + 32 for x in g] for g in groups]
    for b in range(nb):
        for j in range(2):
            for g in groups:
                qs = set()
                for l in g:
                    n = rowmap(paired_ok, nb, b, l & 15)
                    assert fsw_row(paired_ok, nb, n) == ((l & 15) >> 1)
                    addr = n * 128 + ((4 * j) ^ (l >> 4) ^ fsw_row(paired_ok, nb, n)) * 16
                    qs.add((addr // 16) % 16)
                assert len(qs) == 16, (paired_ok, nb, b, j)


def gemm_kernel(a, L, K, BS, BV, BK, ndimS, ksplit, nslot, setup, epilogue, pre_epi=None, nwg=256, stage_hook=None, nextcode=None):
    nsb = BS // 16
    check_conflicts(ndimS, nsb)
    check_conflicts(not ndimS, 2)
    kernel_header(a, L)
    a(f"s_cmp_ge_u32 s2, {nwg}")
    a(f"s_cbranch_scc1 {L}_end")
    if STAMP:
        a("s_memtime s[96:97]")
    a("v_lshrrev_b32 v1, 6, v0")
    a("s_nop 0")
    a("v_readfirstlane_b32 s40, v1")
    a("v_and_b32 v1, 63, v0")
    a("v_and_b32 v2, 15, v1")
    a("v_lshrrev_b32 v3, 4, v1")
    ldS, ldV = setup(a)
    nsub = BK // 64
    nst = K // BK
    subS, subV = BS * 128, BV * 128
    slotsz = nsub * (subS + subV)
    NS = min(nslot, nst)
    chunks = [("S", u, r) for u in range(nsub) for r in range(BS // 8)] + \
             [("V", u, r) for u in range(nsub) for r in range(BV // 8)]
    nS = nsub * BS // 8
    assert nS % 4 == 0 and len(chunks) % 4 == 0
    nt = len(chunks) // 4

    def lds_off(op, u, r):
        return (u * subS + r * 1024) if op == "S" else (nsub * subS + u * subV + r * 1024)

    steps = [(u, j) for u in range(nsub) for j in range(2)] if ksplit == 1 else [(u, None) for u in range(nsub)]
    spw = len(steps)
    vDMA = 8
    nj = 2 if ksplit == 1 else 1
    nSA = 2 if (ndimS and nsb % 2 == 1) else 1
    vSA = 8
    vVA = vSA + NS * nSA * nj
    vT = max(vVA + NS * nj, vDMA + nt)
    vF = (vT + 4 + 3) // 4 * 4
    nfr = nsb + 2
    vR = vF + 2 * nfr * 4
    vE = vR + nsb * 8
    vTot = vE + (32 if pre_epi else 0) + (1 if STAMP else 0)
    accum = (vTot + 3) // 4 * 4
    nacc = nsb * 2 * 4
    assert accum + nacc <= 256
    sLO = 64
    a("s_cmp_lt_u32 s40, 4")
    a(f"s_cbranch_scc1 {L}_comp")
    a("s_sub_u32 s40, s40, 4")
    a("v_lshrrev_b32 v4, 3, v1")
    a("v_and_b32 v5, 7, v1")
    a("v_and_b32 v6, 1, v3")
    a("v_xor_b32 v6, v6, v5")
    a("v_xor_b32 v7, v3, v5")
    a(f"s_movk_i32 s46, {ldS}")
    a(f"v_mul_lo_u32 v{vT}, v4, s46")
    a(f"s_movk_i32 s46, {ldV}")
    a(f"v_mul_lo_u32 v{vT+1}, v4, s46")
    q = []

    def vm_wait_for(tag):
        last = -1
        for idx, t in enumerate(q):
            if t == tag:
                last = idx
        return min(len(q) - 1 - last, 63)

    def issue_one(s, t):
        op = chunks[4 * t][0]
        a(f"s_add_u32 m0, s{sLO+t}, {(s % NS)*slotsz}")
        a(f"s_movk_i32 s46, {s*BK*2}")
        sr = "s[8:11]" if op == "S" else "s[12:15]"
        a(f"buffer_load_dwordx4 v{vDMA+t}, {sr}, s46 offen lds")
        q.append(s)

    def issue(s):
        for t in range(nt):
            issue_one(s, t)

    def sel(dst, vals):
        if all(v == vals[0] + (vals[1] - vals[0]) * k for k, v in enumerate(vals)):
            if vals[1] == vals[0]:
                a(f"s_mov_b32 s{dst}, {vals[0]}")
            else:
                a(f"s_mul_i32 s{dst}, s40, {vals[1]-vals[0]}")
                if vals[0]:
                    a(f"s_add_u32 s{dst}, s{dst}, {vals[0]}")
        else:
            a(f"s_mov_b32 s{dst}, {vals[0]}")
            for w in range(1, 4):
                a(f"s_cmp_eq_u32 s40, {w}")
                a(f"s_cselect_b32 s{dst}, {vals[w]}, s{dst}")

    for t in range(nt):
        ops = [chunks[4 * t + w] for w in range(4)]
        op = ops[0][0]
        assert all(o[0] == op for o in ops)
        ld = ldS if op == "S" else ldV
        paired_ok = ndimS if op == "S" else (not ndimS)
        nb = nsb if op == "S" else 2
        npair = (nb // 2) * 32 if paired_ok else 0
        def is_paired(o):
            n = o[2] * 8
            if op == "V":
                n &= 31
            return n < npair
        pk = [is_paired(o) for o in ops]
        sx = [(2 * (o[2] & 3) if p else 4 * (o[2] & 1)) for o, p in zip(ops, pk)]
        for o, p, x in zip(ops, pk, sx):
            for lane in range(64):
                n = o[2] * 8 + (lane >> 3)
                nn = n & 31 if op == "V" else n
                f = fsw_row(paired_ok, nb, nn)
                lx = ((lane >> 4) & 1) if p else ((lane >> 4) & 3)
                assert f == (x ^ lx), (op, o, lane)
        sel(44, sx)
        sel(45, [o[2] * 8 * ld + o[1] * 128 for o in ops])
        sel(sLO + t, [lds_off(*o) for o in ops])
        if all(pk) or not any(pk):
            a(f"v_xor_b32 v{vT+2}, s44, v{6 if pk[0] else 7}")
        else:
            sel(47, [1 if p else 0 for p in pk])
            a("s_cmp_eq_u32 s47, 1")
            a("s_cselect_b64 vcc, -1, 0")
            a(f"v_cndmask_b32 v{vT+2}, v7, v6, vcc")
            a(f"v_xor_b32 v{vT+2}, s44, v{vT+2}")
        a(f"v_lshl_add_u32 v{vT+2}, v{vT+2}, 4, v{vT if op == 'S' else vT+1}")
        a(f"v_add_u32 v{vDMA+t}, s45, v{vT+2}")
        issue_one(0, t)
    if NS > 1:
        issue(1)
    a(f"s_waitcnt vmcnt({vm_wait_for(0)})")
    a("s_barrier")
    nxt = 2
    for s in range(nst - 1):
        cnt = 0
        while nxt < nst and nxt <= s + NS - 1 and cnt < 2:
            issue(nxt)
            nxt += 1
            cnt += 1
        a(f"s_waitcnt vmcnt({vm_wait_for(s+1)})")
        a("s_barrier")
    a("s_endpgm")
    a.label(f"{L}_comp")
    if ksplit == 2:
        a("s_and_b32 s42, s40, 1")
        a("s_lshr_b32 s43, s40, 1")
    else:
        a("s_mov_b32 s42, s40")
        a("s_mov_b32 s43, 0")
    a("v_lshrrev_b32 v4, 1, v2")
    a("v_xor_b32 v4, v4, v3")
    if ksplit == 2:
        a("s_lshl_b32 s46, s43, 2")
        a("v_xor_b32 v4, s46, v4")
    a("v_and_b32 v5, 12, v2")
    a("v_lshlrev_b32 v5, 1, v5")
    a("v_and_b32 v6, 3, v2")
    a("v_or_b32 v5, v5, v6")
    def addr_regs(dst_fn, rowreg, extra_sgpr=None):
        for j in range(nj):
            a(f"v_xor_b32 v6, {4*j}, v4")
            a(f"v_lshlrev_b32 v6, 4, v6")
            a(f"v_lshl_add_u32 v6, v{rowreg}, 7, v6")
            if extra_sgpr is not None:
                a(f"v_add_u32 v6, s{extra_sgpr}, v6")
            for sl in range(NS):
                a(f"v_add_u32 v{dst_fn(sl, j)}, {sl*slotsz}, v6")
    saddr = lambda kind, sl, j: vSA + (sl * nSA + kind) * nj + j
    vaddr = lambda sl, j: vVA + sl * nj + j
    addr_regs(lambda sl, j: saddr(0, sl, j), 5 if ndimS else 2)
    if nSA == 2:
        addr_regs(lambda sl, j: saddr(1, sl, j), 2)
    a(f"s_lshl_b32 s46, s42, 12")
    a(f"s_add_u32 s46, s46, {nsub*subS}")
    addr_regs(vaddr, 2 if ndimS else 5, 46)
    if pre_epi:
        pre_epi(a, vE)
    if nextcode:
        code_prefetch(a, nextcode[0], nextcode[1], 84, vR, vR + 4, None)

    def frag_reads(s, k, buf):
        slot = s % NS
        u, j = steps[k]
        jj = j if j is not None else 0
        for vb in range(2):
            r = vF + (buf * nfr + nsb + vb) * 4
            off = u * subV + (rowmap(not ndimS, 2, vb, 0)) * 128
            a(f"ds_read_b128 v[{r}:{r+3}], v{vaddr(slot, jj)} offset:{off}")
        for b in range(nsb):
            r = vF + (buf * nfr + b) * 4
            left = ndimS and nsb % 2 == 1 and b == nsb - 1
            off = u * subS + rowmap(ndimS, nsb, b, 0) * 128
            a(f"ds_read_b128 v[{r}:{r+3}], v{saddr(1 if left else 0, slot, jj)} offset:{off}")

    def mfmas(buf, first):
        for b in range(nsb):
            for vb in range(2):
                ar = (b * 2 + vb) * 4
                sf = vF + (buf * nfr + b) * 4
                vf = vF + (buf * nfr + nsb + vb) * 4
                A, B = (sf, vf) if ndimS else (vf, sf)
                c = "0" if first else f"a[{ar}:{ar+3}]"
                a(f"v_mfma_f32_16x16x32_bf16 a[{ar}:{ar+3}], v[{A}:{A+3}], v[{B}:{B+3}], {c}")

    nstamp = [0]
    def stamp():
        if STAMP:
            a(f"s_memtime s[{100-2}:{100-1}]")
            a("s_waitcnt lgkmcnt(0)")
            a(f"v_writelane_b32 v{vST}, s98, {nstamp[0]}")
            nstamp[0] += 1
    vST = accum - 1
    step = 0
    if STAMP:
        a(f"v_writelane_b32 v{vST}, s96, 63")
    stamp()
    a("s_barrier")
    stamp()
    frag_reads(0, 0, 0)
    for s in range(nst):
        if stage_hook:
            stage_hook(a, s, vE)
        for k in range(spw):
            buf = step & 1
            last = k == spw - 1
            if not last:
                frag_reads(s, k + 1, buf ^ 1)
                a(f"s_waitcnt lgkmcnt({nfr})")
            else:
                a("s_waitcnt lgkmcnt(0)")
                if s + 1 < nst:
                    a("s_barrier")
                    stamp()
                    frag_reads(s + 1, 0, buf ^ 1)
            mfmas(buf, step == 0)
            step += 1
    a("s_nop 7")
    a("s_nop 7")
    stamp()
    if ksplit == 2:
        a("s_barrier")
        a("v_lshlrev_b32 v4, 4, v1")
        a(f"s_mul_i32 s46, s40, {nsb*1024}")
        a("v_add_u32 v5, s46, v4")
        a("s_xor_b32 s47, s40, 2")
        a(f"s_mul_i32 s46, s47, {nsb*1024}")
        a("v_add_u32 v4, s46, v4")
        a("s_cmp_eq_u32 s43, 0")
        a(f"s_cbranch_scc1 {L}_k0")
        for b in range(nsb):
            k = b * 2
            a(f"ds_write_b128 v5, a[{4*k}:{4*k+3}] offset:{b*1024}")
        for b in range(nsb):
            for r in range(4):
                a(f"v_accvgpr_read_b32 v{vR+b*4+r}, a{(b*2+1)*4+r}")
        a(f"s_branch {L}_k1")
        a.label(f"{L}_k0")
        for b in range(nsb):
            k = b * 2 + 1
            a(f"ds_write_b128 v5, a[{4*k}:{4*k+3}] offset:{b*1024}")
        for b in range(nsb):
            for r in range(4):
                a(f"v_accvgpr_read_b32 v{vR+b*4+r}, a{(b*2)*4+r}")
        a.label(f"{L}_k1")
        a("s_waitcnt lgkmcnt(0)")
        a("s_barrier")
        for b in range(nsb):
            a(f"ds_read_b128 v[{vF+4*b}:{vF+4*b+3}], v4 offset:{b*1024}")
        a("s_waitcnt lgkmcnt(0)")
        for k in range(nsb * 4):
            a(f"v_add_f32 v{vR+k}, v{vR+k}, v{vF+k}")
    else:
        for k in range(nsb * 2 * 4):
            a(f"v_accvgpr_read_b32 v{vR+k}, a{k}")
    a("s_waitcnt vmcnt(0)")
    epilogue(a, vR, vF, vE, nsb)
    if STAMP:
        stamp()
        a("s_waitcnt vmcnt(0)")
        stamp()
        srd(a, 92, 48, 49, 1 << 20, (200 << 20) + STAMPK[0] * (1 << 20))
        STAMPK[0] += 1
        a("s_lshl_b32 s46, s2, 10")
        a("s_lshl_b32 s47, s40, 8")
        a("s_add_u32 s46, s46, s47")
        a("v_lshlrev_b32 v4, 2, v1")
        a(f"buffer_store_dword v{vST}, v4, s[92:95], s46 offen")
    a.label(f"{L}_end")
    a("s_endpgm")
    lds = max(NS * slotsz, (4 * nsb * 1024) if ksplit == 2 else 0)
    assert lds <= 163840, lds
    return kernel_desc(L, accum + nacc, 102, accum), lds


def gemma2_kernel(a):
    L = "gemma_kernel"
    K, NS = 640, 4
    nst = 10
    VB = 0
    SB = 81920
    slotsz = 160 * 128
    kernel_header(a, L)
    a("s_cmp_ge_u32 s2, 256")
    a(f"s_cbranch_scc1 {L}_end")
    a(f"s_load_dwordx2 s[48:49], s[0:1], {KA['ws']}")
    a(f"s_load_dwordx4 s[52:55], s[0:1], {KA['hid_re']}")
    a("v_lshrrev_b32 v1, 6, v0")
    a("s_nop 0")
    a("v_readfirstlane_b32 s40, v1")
    a("v_and_b32 v1, 63, v0")
    a("v_and_b32 v2, 15, v1")
    a("v_lshrrev_b32 v3, 4, v1")
    a("s_and_b32 s3, s2, 7")
    a("s_lshr_b32 s4, s2, 3")
    if XL and XA:
        a("s_lshr_b32 s5, s4, 2")
        a("s_lshl_b32 s6, s3, 2")
        a("s_and_b32 s7, s4, 3")
        a("s_add_u32 s6, s6, s7")
    else:
        a("s_and_b32 s5, s3, 1")
        a("s_lshl_b32 s5, s5, 2")
        a("s_and_b32 s6, s4, 3")
        a("s_add_u32 s5, s5, s6")
        a("s_lshr_b32 s6, s3, 1")
        a("s_lshl_b32 s6, s6, 3")
        a("s_lshr_b32 s7, s4, 2")
        a("s_add_u32 s6, s6, s7")
    a("s_lshl_b32 s44, s40, 3")
    a("v_add_u32 v4, s44, v3")
    a("s_movk_i32 s45, 1280")
    a("v_mul_lo_u32 v5, v4, s45")
    a("v_lshl_add_u32 v5, v2, 4, v5")
    a("v_lshlrev_b32 v6, 4, v2")
    a("s_waitcnt lgkmcnt(0)")
    a("s_cmp_ge_u32 s5, 4")
    a("s_cselect_b32 s8, s54, s52")
    a("s_cselect_b32 s9, s55, s53")
    a(f"s_mov_b32 s10, {160*1280}")
    a("s_mov_b32 s11, 0x00020000")
    a("s_and_b32 s7, s5, 3")
    a(f"s_mul_i32 s7, s7, {160*1280}")
    srd_add(a, 8, 7)
    srd(a, 12, 48, 49, 64 * 1280, WS["h"][0])
    a(f"s_mul_i32 s7, s6, {64*1280}")
    srd_add(a, 12, 7)
    srd(a, 20, 48, 49, WS["mod"][1], WS["mod"][0])
    a("s_movk_i32 s45, 5120")
    for rp in range(2):
        for k in range(5):
            r = 16 + (rp * 5 + k) * 4
            so = "s45" if rp else "0"
            a(f"buffer_load_dwordx4 v[{r}:{r+3}], v5, s[12:15], {so} offen offset:{k*256}")
    for k in range(5):
        a(f"buffer_load_dwordx4 v[{56+4*k}:{59+4*k}], v6, s[20:23], 0 offen offset:{1280+k*256}")
    for k in range(5):
        a(f"buffer_load_dwordx4 v[{76+4*k}:{79+4*k}], v6, s[20:23], 0 offen offset:{k*256}")
    if TLBWARM:
        a(f"s_load_dwordx4 s[56:59], s[0:1], {KA['seq_re']}")
        a("s_lshr_b32 s36, s3, 1")
        a("s_lshl_b32 s36, s36, 9")
        a("s_lshl_b32 s37, s4, 4")
        a("s_add_u32 s36, s36, s37")
        a("v_add_u32 v12, s36, v2")
        a("v_lshlrev_b32 v12, 12, v12")
        a("s_waitcnt lgkmcnt(0)")
        a("s_and_b32 s37, s3, 1")
        a("s_cmp_eq_u32 s37, 1")
        a("s_cselect_b32 s60, s58, s56")
        a("s_cselect_b32 s61, s59, s57")
        a(f"s_mov_b32 s62, {2048*2048*2}")
        a("s_mov_b32 s63, 0x00020000")
        a("buffer_load_dword v13, v12, s[60:63], 0 offen")
    srd(a, 16, 48, 49, 160 * 4096, WS["abt"][0])
    a(f"s_mul_i32 s7, s5, {160*4096}")
    srd_add(a, 16, 7)
    a("s_lshl_b32 s7, s6, 7")
    srd_add(a, 16, 7)
    a("s_and_b32 s41, s40, 3")
    a("v_lshrrev_b32 v8, 3, v1")
    a("v_and_b32 v9, 7, v1")
    a("v_xor_b32 v9, v9, v3")
    a("s_and_b32 s44, s41, 1")
    a("s_lshl_b32 s44, s44, 2")
    a("v_xor_b32 v9, s44, v9")
    a("s_lshl_b32 s44, s41, 3")
    a("v_add_u32 v8, s44, v8")
    a("s_movk_i32 s45, 1280")
    a("v_mul_lo_u32 v8, v8, s45")
    a("v_lshl_add_u32 v8, v9, 4, v8")
    a("s_lshl_b32 s42, s41, 10")
    a(f"s_add_u32 s42, s42, {SB}")
    a("s_cmp_lt_u32 s40, 4")
    a(f"s_cbranch_scc1 {L}_p0")

    def issue(s):
        for t in range(5):
            a(f"s_add_u32 m0, s42, {(s % NS)*slotsz + t*4096}")
            a(f"s_mov_b32 s46, {s*128 + t*32*1280}")
            a("buffer_load_dwordx4 v8, s[8:11], s46 offen lds")
    for s in range(NS):
        issue(s)
    a("s_waitcnt vmcnt(20)")
    a(f"s_branch {L}_p0b")
    a.label(f"{L}_p0")
    a("s_waitcnt vmcnt(0)")
    a.label(f"{L}_p0b")
    a("v_lshrrev_b32 v10, 1, v3")
    a("s_and_b32 s44, s40, 3")
    a("s_lshl_b32 s44, s44, 1")
    a("v_or_b32 v10, s44, v10")
    a("v_and_b32 v11, 7, v2")
    a("v_xor_b32 v10, v10, v11")
    a("v_lshlrev_b32 v10, 4, v10")
    a("v_lshl_add_u32 v10, v4, 7, v10")
    a("v_lshrrev_b32 v11, 3, v2")
    a("v_lshl_add_u32 v10, v11, 13, v10")
    a("v_add_u32 v11, 0x8000, v10")
    T = 96
    for k in range(5):
        for q in range(4):
            unpack(a, T, T + 1, 56 + 4 * k + q)
            a(f"v_add_f32 v{T}, 1.0, v{T}")
            a(f"v_add_f32 v{T+1}, 1.0, v{T+1}")
            a(f"v_cvt_pk_bf16_f32 v{T+6}, v{T}, v{T+1}")
            unpack(a, T, T + 1, T + 6)
            unpack(a, T + 2, T + 3, 76 + 4 * k + q)
            for rp in range(2):
                r = 16 + (rp * 5 + k) * 4 + q
                unpack(a, T + 4, T + 5, r)
                a(f"v_mul_f32 v{T+4}, v{T+4}, v{T}")
                a(f"v_mul_f32 v{T+5}, v{T+5}, v{T+1}")
                a(f"v_cvt_pk_bf16_f32 v{T+6}, v{T+4}, v{T+5}")
                unpack(a, T + 4, T + 5, T + 6)
                a(f"v_add_f32 v{T+4}, v{T+4}, v{T+2}")
                a(f"v_add_f32 v{T+5}, v{T+5}, v{T+3}")
                a(f"v_cvt_pk_bf16_f32 v{r}, v{T+4}, v{T+5}")
        for rp in range(2):
            r = 16 + (rp * 5 + k) * 4
            off = k * 16384 + rp * 512
            areg = 10
            if off >= 32768:
                off -= 32768
                areg = 11
            a(f"ds_write_b128 v{areg}, v[{r}:{r+3}] offset:{off}")
    a("s_cmp_lt_u32 s40, 4")
    a(f"s_cbranch_scc1 {L}_comp")
    a("s_waitcnt vmcnt(15) lgkmcnt(0)")
    a("s_barrier")
    for s in range(nst - 1):
        out = min(NS - 1, nst - 2 - s) - 0
        issued = min(nst, NS + s)
        a(f"s_waitcnt vmcnt({(issued - (s + 2)) * 5})")
        a("s_barrier")
        if s + NS < nst:
            issue(s + NS)
    a("s_endpgm")
    a.label(f"{L}_comp")
    a("s_and_b32 s42, s40, 1")
    a("s_lshr_b32 s43, s40, 1")
    a("v_lshrrev_b32 v4, 1, v2")
    a("v_xor_b32 v4, v4, v3")
    a("v_and_b32 v5, 12, v2")
    a("v_lshlrev_b32 v5, 1, v5")
    a("v_and_b32 v6, 3, v2")
    a("v_or_b32 v5, v5, v6")
    vSA, vVA = 8, 16
    a(f"s_mul_i32 s44, s42, {80*128}")
    a(f"s_add_u32 s44, s44, {SB}")
    a(f"s_lshl_b32 s45, s43, 12")
    for j in range(2):
        a(f"v_xor_b32 v6, {4*j}, v4")
        a("v_lshlrev_b32 v6, 4, v6")
        a("v_lshl_add_u32 v7, v2, 7, v6")
        a("v_add_u32 v7, s44, v7")
        for sl in range(NS):
            a(f"v_add_u32 v{vSA+sl*2+j}, {sl*slotsz}, v7")
        a("v_lshl_add_u32 v7, v5, 7, v6")
        a(f"v_add_u32 v{vVA+j}, s45, v7")
        a(f"v_add_u32 v{vVA+2+j}, 0xa000, v{vVA+j}")
    vF = 24
    nfr = 7
    vR = vF + 2 * nfr * 4
    code_prefetch(a, "gemmb_kernel", "ln2_kernel", 56, vR, vR + 4, None)

    def frag_reads(s, j, buf):
        for vb in range(2):
            r = vF + (buf * nfr + 5 + vb) * 4
            hi = s >= 5
            off = (s - 5 * hi) * 8192 + vb * 512
            a(f"ds_read_b128 v[{r}:{r+3}], v{vVA+2*hi+j} offset:{off}")
        for b in range(5):
            r = vF + (buf * nfr + b) * 4
            a(f"ds_read_b128 v[{r}:{r+3}], v{vSA+(s%NS)*2+j} offset:{b*2048}")

    def mfmas(buf, first):
        for b in range(5):
            for vb in range(2):
                ar = (b * 2 + vb) * 4
                sf = vF + (buf * nfr + b) * 4
                vf = vF + (buf * nfr + 5 + vb) * 4
                c = "0" if first else f"a[{ar}:{ar+3}]"
                a(f"v_mfma_f32_16x16x32_bf16 a[{ar}:{ar+3}], v[{vf}:{vf+3}], v[{sf}:{sf+3}], {c}")

    a("s_waitcnt lgkmcnt(0)")
    a("s_barrier")
    frag_reads(0, 0, 0)
    step = 0
    for s in range(nst):
        for j in range(2):
            buf = step & 1
            if j == 0:
                frag_reads(s, 1, buf ^ 1)
                a(f"s_waitcnt lgkmcnt({nfr})")
            else:
                a("s_waitcnt lgkmcnt(0)")
                if s + 1 < nst:
                    a("s_barrier")
                    frag_reads(s + 1, 0, buf ^ 1)
            mfmas(buf, step == 0)
            step += 1
    a("s_nop 7")
    a("s_nop 7")
    a("s_mul_i32 s44, s42, 80")
    a("v_add_u32 v4, s44, v2")
    a("v_lshlrev_b32 v4, 12, v4")
    a("v_lshl_add_u32 v4, v3, 4, v4")
    a("s_lshl_b32 s46, s43, 6")
    a("v_add_u32 v4, s46, v4")
    for b in range(5):
        o = vR + b * 4
        for k in range(4):
            a(f"v_accvgpr_read_b32 v{vF}, a{b*8+2*k}")
            a(f"v_accvgpr_read_b32 v{vF+1}, a{b*8+2*k+1}")
            a(f"v_cvt_pk_bf16_f32 v{o+k}, v{vF}, v{vF+1}")
        a(f"s_mov_b32 s46, {b*16*4096}")
        a(f"buffer_store_dwordx4 v[{o}:{o+3}], v4, s[16:19], s46 offen")
    a.label(f"{L}_end")
    a("s_endpgm")
    return kernel_desc(L, 120 + 40, 64, 120), 163840


def fa_kernel(a):
    L = "gemma_kernel"
    NS = 4
    nst = 10
    SB = 81920
    slotsz = 160 * 128
    kernel_header(a, L)
    a("s_cmp_ge_u32 s2, 256")
    a(f"s_cbranch_scc1 {L}_end")
    a(f"s_load_dwordx4 s[48:51], s[0:1], {KA['dbg']}")
    a(f"s_load_dwordx4 s[52:55], s[0:1], {KA['hid_re']}")
    a(f"s_load_dwordx4 s[56:59], s[0:1], {KA['c']}")
    a(f"s_load_dwordx2 s[60:61], s[0:1], {KA['x']}")
    a("v_lshrrev_b32 v1, 6, v0")
    a("s_nop 0")
    a("v_readfirstlane_b32 s40, v1")
    a("v_and_b32 v1, 63, v0")
    a("v_and_b32 v2, 15, v1")
    a("v_lshrrev_b32 v3, 4, v1")
    a("s_and_b32 s3, s2, 7")
    a("s_lshr_b32 s4, s2, 3")
    a("s_and_b32 s5, s3, 1")
    a("s_lshl_b32 s5, s5, 2")
    a("s_and_b32 s6, s4, 3")
    a("s_add_u32 s5, s5, s6")
    a("s_lshr_b32 s6, s3, 1")
    a("s_lshl_b32 s6, s6, 3")
    a("s_lshr_b32 s7, s4, 2")
    a("s_add_u32 s6, s6, s7")
    a("s_mul_i32 s33, s3, 15")
    a("s_add_u32 s33, s33, s4")
    a("s_lshl_b32 s44, s40, 3")
    a("v_add_u32 v4, s44, v3")
    a("s_movk_i32 s45, 1280")
    a("v_mul_lo_u32 v5, v4, s45")
    a("v_lshl_add_u32 v5, v2, 4, v5")
    a("v_lshrrev_b32 v12, 2, v0")
    a("v_and_b32 v13, 3, v0")
    a("s_movk_i32 s45, 7680")
    a("v_mul_lo_u32 v14, v12, s45")
    a("v_lshl_add_u32 v14, v13, 4, v14")
    a("s_lshl_b32 s34, s33, 6")
    a("v_add_u32 v14, s34, v14")
    a("v_lshlrev_b32 v15, 1, v12")
    a("s_and_b32 s41, s40, 3")
    a("v_lshrrev_b32 v8, 3, v1")
    a("v_and_b32 v9, 7, v1")
    a("v_xor_b32 v9, v9, v3")
    a("s_and_b32 s44, s41, 1")
    a("s_lshl_b32 s44, s44, 2")
    a("v_xor_b32 v9, s44, v9")
    a("s_lshl_b32 s44, s41, 3")
    a("v_add_u32 v8, s44, v8")
    a("s_movk_i32 s45, 1280")
    a("v_mul_lo_u32 v8, v8, s45")
    a("v_lshl_add_u32 v8, v9, 4, v8")
    a("s_lshl_b32 s42, s41, 10")
    a(f"s_add_u32 s42, s42, {SB}")
    a("s_waitcnt lgkmcnt(0)")
    a("s_cmp_ge_u32 s5, 4")
    a("s_cselect_b32 s8, s54, s52")
    a("s_cselect_b32 s9, s55, s53")
    a(f"s_mov_b32 s10, {160*1280}")
    a("s_mov_b32 s11, 0x00020000")
    a("s_and_b32 s7, s5, 3")
    a(f"s_mul_i32 s7, s7, {160*1280}")
    srd_add(a, 8, 7)
    srd(a, 12, 60, 61, 64 * 1280)
    a(f"s_mul_i32 s7, s6, {64*1280}")
    srd_add(a, 12, 7)
    srd(a, 20, 50, 51, WS["modf"][1], WS["modf"][0])
    srd(a, 24, 58, 59, 640 * 3840 * 2)
    srd(a, 28, 56, 57, 640 * 2)
    srd(a, 64, 48, 49, 256)
    srd(a, 68, 50, 51, WS["mod"][1], WS["mod"][0])
    srd(a, 16, 50, 51, 160 * 4096, WS["abt"][0])
    a(f"s_mul_i32 s7, s5, {160*4096}")
    srd_add(a, 16, 7)
    a("s_lshl_b32 s7, s6, 7")
    srd_add(a, 16, 7)
    a("s_cmp_ge_u32 s2, 120")
    a(f"s_cbranch_scc1 {L}_nog1")
    for p in range(5):
        a(f"buffer_load_ushort v{76+p}, v15, s[28:31], 0 offen offset:{p*256}")
    for p in range(5):
        a(f"s_mov_b32 s45, {p*128*7680}")
        a(f"buffer_load_dwordx4 v[{56+4*p}:{59+4*p}], v14, s[24:27], s45 offen")
    a.label(f"{L}_nog1")
    a("s_movk_i32 s45, 5120")
    for rp in range(2):
        for k in range(5):
            r = 16 + (rp * 5 + k) * 4
            so = "s45" if rp else "0"
            a(f"buffer_load_dwordx4 v[{r}:{r+3}], v5, s[12:15], {so} offen offset:{k*256}")

    def issue(s):
        for t in range(5):
            a(f"s_add_u32 m0, s42, {(s % NS)*slotsz + t*4096}")
            a(f"s_mov_b32 s46, {s*128 + t*32*1280}")
            a("buffer_load_dwordx4 v8, s[8:11], s46 offen lds")
    a("s_cmp_lt_u32 s40, 4")
    a(f"s_cbranch_scc1 {L}_nold")
    for s in range(NS):
        issue(s)
    a.label(f"{L}_nold")

    def rolewait(nc, tag):
        a("s_cmp_lt_u32 s40, 4")
        a(f"s_cbranch_scc1 {L}_w{tag}a")
        a(f"s_waitcnt vmcnt({nc+20})")
        a(f"s_branch {L}_w{tag}b")
        a.label(f"{L}_w{tag}a")
        a(f"s_waitcnt vmcnt({nc})")
        a.label(f"{L}_w{tag}b")
    a("s_cmp_ge_u32 s2, 120")
    a(f"s_cbranch_scc1 {L}_nog2")
    rolewait(10, "g")
    A0 = 96
    for k in range(8):
        a(f"v_mov_b32 v{A0+k}, 0")
    a("s_mov_b32 s45, 0xbfb8aa3b")
    for p in range(5):
        a(f"v_lshlrev_b32 v{76+p}, 16, v{76+p}")
        a(f"v_mul_f32 v104, s45, v{76+p}")
        a("v_exp_f32 v104, v104")
        a("s_nop 0")
        a("v_add_f32 v104, 1.0, v104")
        a("v_rcp_f32 v104, v104")
        a("s_nop 0")
        a(f"v_mul_f32 v104, v{76+p}, v104")
        a("v_cvt_pk_bf16_f32 v104, v104, v104")
        a(f"v_lshlrev_b32 v{76+p}, 16, v104")
        for q in range(4):
            unpack(a, 104, 105, 56 + 4 * p + q)
            a(f"v_fmac_f32 v{A0+2*q}, v{76+p}, v104")
            a(f"v_fmac_f32 v{A0+1+2*q}, v{76+p}, v105")
    a("v_lshlrev_b32 v104, 7, v12")
    a("v_lshl_add_u32 v104, v13, 5, v104")
    a(f"ds_write_b128 v104, v[{A0}:{A0+3}]")
    a(f"ds_write_b128 v104, v[{A0+4}:{A0+7}] offset:16")
    a("s_waitcnt lgkmcnt(0)")
    a("s_barrier")
    a("v_and_b32 v105, 31, v0")
    a("v_lshrrev_b32 v106, 5, v0")
    a("v_lshlrev_b32 v104, 10, v106")
    a("v_lshl_add_u32 v104, v105, 2, v104")
    for i in range(8):
        a(f"ds_read_b32 v{A0+i}, v104 offset:{i*128}")
    a("s_waitcnt lgkmcnt(0)")
    for (x, y) in [(0, 1), (2, 3), (4, 5), (6, 7), (0, 2), (4, 6), (0, 4)]:
        a(f"v_add_f32 v{A0+x}, v{A0+x}, v{A0+y}")
    a("v_lshlrev_b32 v104, 2, v0")
    a(f"ds_write_b32 v104, v{A0} offset:16384")
    a("s_waitcnt lgkmcnt(0)")
    a("s_barrier")
    a("s_cmp_lg_u32 s40, 0")
    a(f"s_cbranch_scc1 {L}_nog2")
    a("v_lshrrev_b32 v106, 5, v1")
    a("v_lshlrev_b32 v104, 10, v106")
    a("v_lshl_add_u32 v104, v105, 2, v104")
    for i in range(8):
        a(f"ds_read_b32 v{A0+i}, v104 offset:{16384+i*128}")
    a("s_waitcnt lgkmcnt(0)")
    for (x, y) in [(0, 1), (2, 3), (4, 5), (6, 7), (0, 2), (4, 6), (0, 4)]:
        a(f"v_add_f32 v{A0+x}, v{A0+x}, v{A0+y}")
    a(f"v_mov_b32 v{A0+1}, v{A0}")
    a("s_nop 1")
    a(f"v_permlane32_swap_b32 v{A0}, v{A0+1}")
    a("s_nop 1")
    a(f"v_add_f32 v{A0}, v{A0}, v{A0+1}")
    a(f"v_cvt_pk_bf16_f32 v{A0+1}, v{A0}, v{A0}")
    a(f"v_lshlrev_b32 v{A0+2}, 16, v{A0+1}")
    a(f"v_add_f32 v{A0+3}, 1.0, v{A0+2}")
    a(f"v_cvt_pk_bf16_f32 v{A0+3}, v{A0+3}, v{A0+3}")
    a(f"v_lshlrev_b32 v{A0+3}, 16, v{A0+3}")
    a("s_mul_i32 s44, s33, 3277")
    a("s_lshr_b32 s44, s44, 16")
    a("s_cmp_eq_u32 s44, 1")
    a("s_cselect_b32 s45, 1, 0")
    a("s_cmp_eq_u32 s44, 4")
    a("s_cselect_b32 s45, 1, s45")
    a("s_cmp_eq_u32 s45, 1")
    a(f"s_cbranch_scc0 {L}_gnc")
    a(f"v_mov_b32 v{A0+2}, v{A0+3}")
    a.label(f"{L}_gnc")
    a("v_lshlrev_b32 v104, 1, v105")
    a("v_add_u32 v104, s34, v104")
    a("v_lshlrev_b32 v106, 1, v104")
    a("v_mov_b32 v107, 0")
    a("v_mov_b32 v108, 1")
    a("v_cmp_gt_u32 vcc, 32, v1")
    a("s_and_saveexec_b64 s[36:37], vcc")
    a(f"buffer_store_short v{A0+1}, v104, s[68:71], 0 offen")
    a(f"buffer_store_dword v{A0+2}, v106, s[20:23], 0 offen sc0 sc1")
    a("s_waitcnt vmcnt(0)")
    a("s_cmp_ge_u32 s33, 40")
    a(f"s_cbranch_scc1 {L}_gna")
    a("v_cmp_gt_u32 vcc, 1, v1")
    a("s_and_b64 exec, exec, vcc")
    a("buffer_atomic_add v108, v107, s[64:67], 0 offen")
    a.label(f"{L}_gna")
    a("s_mov_b64 exec, s[36:37]")
    a.label(f"{L}_nog2")
    rolewait(0, "x")
    X, T = 96, 136

    def red16(v, t):
        for mod_ in ["quad_perm:[1,0,3,2]", "quad_perm:[2,3,0,1]", "row_half_mirror", "row_mirror"]:
            a("s_nop 1")
            a(f"v_add_f32_dpp v{t}, v{v}, v{v} {mod_} row_mask:0xf bank_mask:0xf")
            v, t = t, v
    for rp in range(2):
        R = 16 + rp * 20
        for k in range(20):
            unpack(a, X + 2 * k, X + 2 * k + 1, R + k)
        s_, t_, m_, r_, u_, w_ = T, T + 1, T + 2, T + 3, T + 4, T + 5
        a(f"v_add_f32 v{s_}, v{X}, v{X+1}")
        a(f"v_add_f32 v{t_}, v{X+2}, v{X+3}")
        for k in range(4, 40, 2):
            a(f"v_add_f32 v{s_}, v{s_}, v{X+k}")
            a(f"v_add_f32 v{t_}, v{t_}, v{X+k+1}")
        a(f"v_add_f32 v{s_}, v{s_}, v{t_}")
        red16(s_, t_)
        a(f"v_mul_f32 v{m_}, 0x3acccccd, v{s_}")
        a(f"v_sub_f32 v{t_}, v{X}, v{m_}")
        a(f"v_mul_f32 v{s_}, v{t_}, v{t_}")
        a(f"v_sub_f32 v{t_}, v{X+1}, v{m_}")
        a(f"v_mul_f32 v{r_}, v{t_}, v{t_}")
        for k in range(2, 40, 2):
            a(f"v_sub_f32 v{t_}, v{X+k}, v{m_}")
            a(f"v_fmac_f32 v{s_}, v{t_}, v{t_}")
            a(f"v_sub_f32 v{u_}, v{X+k+1}, v{m_}")
            a(f"v_fmac_f32 v{r_}, v{u_}, v{u_}")
        a(f"v_add_f32 v{s_}, v{s_}, v{r_}")
        red16(s_, t_)
        a(f"v_mul_f32 v{s_}, 0x3acccccd, v{s_}")
        a(f"v_cvt_pk_bf16_f32 v{t_}, v{m_}, v{s_}")
        unpack(a, m_, s_, t_)
        a(f"v_add_f32 v{s_}, 0x3727c5ac, v{s_}")
        a(f"v_cvt_pk_bf16_f32 v{t_}, v{s_}, v{s_}")
        a(f"v_lshlrev_b32 v{s_}, 16, v{t_}")
        a(f"v_sqrt_f32 v{s_}, v{s_}")
        a("s_nop 0")
        a(f"v_cvt_pk_bf16_f32 v{t_}, v{s_}, v{s_}")
        a(f"v_lshlrev_b32 v{s_}, 16, v{t_}")
        a(f"v_rcp_f32 v{r_}, v{s_}")
        a("s_nop 0")
        for k in range(20):
            a(f"v_sub_f32 v{u_}, v{X+2*k}, v{m_}")
            a(f"v_sub_f32 v{w_}, v{X+2*k+1}, v{m_}")
            a(f"v_cvt_pk_bf16_f32 v{t_}, v{u_}, v{w_}")
            unpack(a, u_, w_, t_)
            a(f"v_mul_f32 v{u_}, v{u_}, v{r_}")
            a(f"v_mul_f32 v{w_}, v{w_}, v{r_}")
            a(f"v_cvt_pk_bf16_f32 v{R+k}, v{u_}, v{w_}")
    a("s_cmp_lg_u32 s40, 0")
    a(f"s_cbranch_scc1 {L}_nopoll")
    a("v_mov_b32 v107, 0")
    a("s_mov_b32 s44, 0")
    a.label(f"{L}_poll")
    a("buffer_load_dword v108, v107, s[64:67], 0 offen sc0 sc1")
    a("s_waitcnt vmcnt(0)")
    a("v_readfirstlane_b32 s45, v108")
    a("s_add_u32 s44, s44, 1")
    a("s_cmp_ge_u32 s45, 40")
    a(f"s_cbranch_scc1 {L}_polled")
    a("s_sleep 2")
    a("s_cmp_lt_u32 s44, 0x40000")
    a(f"s_cbranch_scc1 {L}_poll")
    a.label(f"{L}_polled")
    a("v_lshlrev_b32 v12, 4, v1")
    a("s_movk_i32 s45, 4096")
    for i in range(5):
        so = "s45" if i == 4 else "0"
        a(f"buffer_load_dwordx4 v[{X+4*i}:{X+4*i+3}], v12, s[20:23], {so} offen offset:{(i%4)*1024} sc0 sc1")
    a("s_waitcnt vmcnt(0)")
    for i in range(5):
        a(f"ds_write_b128 v12, v[{X+4*i}:{X+4*i+3}] offset:{i*1024}")
    a("s_waitcnt lgkmcnt(0)")
    a.label(f"{L}_nopoll")
    a("s_barrier")
    a("v_lshlrev_b32 v12, 5, v2")
    SA, C1 = 56, 96
    for k in range(5):
        for h in range(2):
            a(f"ds_read_b128 v[{SA+8*k+4*h}:{SA+8*k+4*h+3}], v12 offset:{k*512+h*16}")
            a(f"ds_read_b128 v[{C1+8*k+4*h}:{C1+8*k+4*h+3}], v12 offset:{2560+k*512+h*16}")
    a("v_lshrrev_b32 v10, 1, v3")
    a("s_and_b32 s44, s40, 3")
    a("s_lshl_b32 s44, s44, 1")
    a("v_or_b32 v10, s44, v10")
    a("v_and_b32 v11, 7, v2")
    a("v_xor_b32 v10, v10, v11")
    a("v_lshlrev_b32 v10, 4, v10")
    a("v_lshl_add_u32 v10, v4, 7, v10")
    a("v_lshrrev_b32 v11, 3, v2")
    a("v_lshl_add_u32 v10, v11, 13, v10")
    a("v_add_u32 v11, 0x8000, v10")
    a("s_waitcnt lgkmcnt(0)")
    a("s_barrier")
    for k in range(5):
        for rp in range(2):
            for q in range(4):
                r = 16 + (rp * 5 + k) * 4 + q
                c = 8 * k + 2 * q
                unpack(a, T, T + 1, r)
                a(f"v_mul_f32 v{T}, v{T}, v{C1+c}")
                a(f"v_mul_f32 v{T+1}, v{T+1}, v{C1+c+1}")
                a(f"v_cvt_pk_bf16_f32 v{T+2}, v{T}, v{T+1}")
                unpack(a, T, T + 1, T + 2)
                a(f"v_add_f32 v{T}, v{T}, v{SA+c}")
                a(f"v_add_f32 v{T+1}, v{T+1}, v{SA+c+1}")
                a(f"v_cvt_pk_bf16_f32 v{r}, v{T}, v{T+1}")
            r = 16 + (rp * 5 + k) * 4
            off = k * 16384 + rp * 512
            areg = 10
            if off >= 32768:
                off -= 32768
                areg = 11
            a(f"ds_write_b128 v{areg}, v[{r}:{r+3}] offset:{off}")
    a("s_cmp_lt_u32 s40, 4")
    a(f"s_cbranch_scc1 {L}_comp")
    a("s_waitcnt vmcnt(15) lgkmcnt(0)")
    a("s_barrier")
    for s in range(nst - 1):
        issued = min(nst, NS + s)
        a(f"s_waitcnt vmcnt({(issued - (s + 2)) * 5})")
        a("s_barrier")
        if s + NS < nst:
            issue(s + NS)
    a("s_endpgm")
    a.label(f"{L}_comp")
    a("s_and_b32 s42, s40, 1")
    a("s_lshr_b32 s43, s40, 1")
    a("v_lshrrev_b32 v4, 1, v2")
    a("v_xor_b32 v4, v4, v3")
    a("v_and_b32 v5, 12, v2")
    a("v_lshlrev_b32 v5, 1, v5")
    a("v_and_b32 v6, 3, v2")
    a("v_or_b32 v5, v5, v6")
    vSA, vVA = 60, 68
    a(f"s_mul_i32 s44, s42, {80*128}")
    a(f"s_add_u32 s44, s44, {SB}")
    a(f"s_lshl_b32 s45, s43, 12")
    for j in range(2):
        a(f"v_xor_b32 v6, {4*j}, v4")
        a("v_lshlrev_b32 v6, 4, v6")
        a("v_lshl_add_u32 v7, v2, 7, v6")
        a("v_add_u32 v7, s44, v7")
        for sl in range(NS):
            a(f"v_add_u32 v{vSA+sl*2+j}, {sl*slotsz}, v7")
        a("v_lshl_add_u32 v7, v5, 7, v6")
        a(f"v_add_u32 v{vVA+j}, s45, v7")
        a(f"v_add_u32 v{vVA+2+j}, 0xa000, v{vVA+j}")
    vF = 72
    nfr = 7
    vR = 16

    def frag_reads(s, j, buf):
        for vb in range(2):
            r = vF + (buf * nfr + 5 + vb) * 4
            hi = s >= 5
            off = (s - 5 * hi) * 8192 + vb * 512
            a(f"ds_read_b128 v[{r}:{r+3}], v{vVA+2*hi+j} offset:{off}")
        for b in range(5):
            r = vF + (buf * nfr + b) * 4
            a(f"ds_read_b128 v[{r}:{r+3}], v{vSA+(s%NS)*2+j} offset:{b*2048}")

    def mfmas(buf, first):
        for b in range(5):
            for vb in range(2):
                ar = (b * 2 + vb) * 4
                sf = vF + (buf * nfr + b) * 4
                vf = vF + (buf * nfr + 5 + vb) * 4
                c = "0" if first else f"a[{ar}:{ar+3}]"
                a(f"v_mfma_f32_16x16x32_bf16 a[{ar}:{ar+3}], v[{vf}:{vf+3}], v[{sf}:{sf+3}], {c}")

    a("s_waitcnt lgkmcnt(0)")
    a("s_barrier")
    frag_reads(0, 0, 0)
    step = 0
    for s in range(nst):
        for j in range(2):
            buf = step & 1
            if j == 0:
                frag_reads(s, 1, buf ^ 1)
                a(f"s_waitcnt lgkmcnt({nfr})")
            else:
                a("s_waitcnt lgkmcnt(0)")
                if s + 1 < nst:
                    a("s_barrier")
                    frag_reads(s + 1, 0, buf ^ 1)
            mfmas(buf, step == 0)
            step += 1
    a("s_nop 7")
    a("s_nop 7")
    a("s_mul_i32 s44, s42, 80")
    a("v_add_u32 v4, s44, v2")
    a("v_lshlrev_b32 v4, 12, v4")
    a("v_lshl_add_u32 v4, v3, 4, v4")
    a("s_lshl_b32 s46, s43, 6")
    a("v_add_u32 v4, s46, v4")
    for b in range(5):
        o = vR + b * 4
        for k in range(4):
            a(f"v_accvgpr_read_b32 v{vF}, a{b*8+2*k}")
            a(f"v_accvgpr_read_b32 v{vF+1}, a{b*8+2*k+1}")
            a(f"v_cvt_pk_bf16_f32 v{o+k}, v{vF}, v{vF+1}")
        a(f"s_mov_b32 s46, {b*16*4096}")
        a(f"buffer_store_dwordx4 v[{o}:{o+3}], v4, s[16:19], s46 offen")
    a.label(f"{L}_end")
    a("s_endpgm")
    return kernel_desc(L, 144 + 40, 80, 144), 163840


def gemma3_kernel(a):
    L = "gemma_kernel"
    NS, nst = 4, 10
    SB = 81920
    slotsz = 160 * 128
    kernel_header(a, L)
    a("s_cmp_ge_u32 s2, 256")
    a(f"s_cbranch_scc1 {L}_end")
    a(f"s_load_dwordx2 s[48:49], s[0:1], {KA['ws']}")
    a(f"s_load_dwordx4 s[52:55], s[0:1], {KA['hid_re']}")
    a("v_lshrrev_b32 v1, 6, v0")
    a("s_nop 0")
    a("v_readfirstlane_b32 s40, v1")
    a("v_and_b32 v1, 63, v0")
    a("v_and_b32 v2, 15, v1")
    a("v_lshrrev_b32 v3, 4, v1")
    a("s_and_b32 s3, s2, 7")
    a("s_lshr_b32 s4, s2, 3")
    a("s_and_b32 s5, s3, 1")
    a("s_lshl_b32 s5, s5, 2")
    a("s_and_b32 s6, s4, 3")
    a("s_add_u32 s5, s5, s6")
    a("s_lshr_b32 s6, s3, 1")
    a("s_lshl_b32 s6, s6, 3")
    a("s_lshr_b32 s7, s4, 2")
    a("s_add_u32 s6, s6, s7")
    a("s_cmp_lt_u32 s40, 4")
    a(f"s_cbranch_scc1 {L}_comp")
    a("s_sub_u32 s41, s40, 4")
    a("s_lshl_b32 s44, s41, 4")
    a("v_add_u32 v4, s44, v3")
    a("s_movk_i32 s45, 1280")
    a("v_mul_lo_u32 v5, v4, s45")
    a("v_lshl_add_u32 v5, v2, 4, v5")
    a("v_lshlrev_b32 v6, 5, v2")
    a("v_lshrrev_b32 v8, 3, v1")
    a("v_and_b32 v9, 7, v1")
    a("v_xor_b32 v9, v9, v3")
    a("s_and_b32 s44, s41, 1")
    a("s_lshl_b32 s44, s44, 2")
    a("v_xor_b32 v9, s44, v9")
    a("s_lshl_b32 s44, s41, 3")
    a("v_add_u32 v8, s44, v8")
    a("v_mul_lo_u32 v8, v8, s45")
    a("v_lshl_add_u32 v8, v9, 4, v8")
    a("s_lshl_b32 s42, s41, 10")
    a(f"s_add_u32 s42, s42, {SB}")
    a("s_waitcnt lgkmcnt(0)")
    a("s_cmp_ge_u32 s5, 4")
    a("s_cselect_b32 s8, s54, s52")
    a("s_cselect_b32 s9, s55, s53")
    a(f"s_mov_b32 s10, {160*1280}")
    a("s_mov_b32 s11, 0x00020000")
    a("s_and_b32 s7, s5, 3")
    a(f"s_mul_i32 s7, s7, {160*1280}")
    srd_add(a, 8, 7)
    srd(a, 12, 48, 49, 64 * 1280, WS["h"][0])
    a(f"s_mul_i32 s7, s6, {64*1280}")
    srd_add(a, 12, 7)
    srd(a, 20, 48, 49, WS["modf"][1], WS["modf"][0])
    q = []

    def wait_for(tag, extra=""):
        last = max(i for i, t in enumerate(q) if t == tag)
        a(f"s_waitcnt vmcnt({min(63, len(q)-1-last)}){extra}")

    def issue(s):
        for t in range(5):
            a(f"s_add_u32 m0, s42, {(s % NS)*slotsz + t*4096}")
            a(f"s_mov_b32 s46, {s*128 + t*32*1280}")
            a("buffer_load_dwordx4 v8, s[8:11], s46 offen lds")
            q.append(("S", s))
    Nr = lambda k, rp: 16 + (k * 4 + rp) * 4
    C1 = lambda k: 96 + k * 16
    SA = lambda k: 104 + k * 16
    for rp in range(4):
        a(f"s_movk_i32 s{56+rp}, {rp*4*1280}")

    def loadk(k):
        for rp in range(4):
            r = Nr(k, rp)
            a(f"buffer_load_dwordx4 v[{r}:{r+3}], v5, s[12:15], s{56+rp} offen offset:{k*256}")
            q.append(("K", k))
        for h in range(2):
            a(f"buffer_load_dwordx4 v[{C1(k)+4*h}:{C1(k)+4*h+3}], v6, s[20:23], 0 offen offset:{2560+k*512+h*16 if 2560+k*512+h*16 < 4096 else 0}" if False else
              f"buffer_load_dwordx4 v[{C1(k)+4*h}:{C1(k)+4*h+3}], v7, s[20:23], 0 offen offset:{k*512+h*16}")
            q.append(("K", k))
            a(f"buffer_load_dwordx4 v[{SA(k)+4*h}:{SA(k)+4*h+3}], v6, s[20:23], 0 offen offset:{k*512+h*16}")
            q.append(("K", k))
    a("v_add_u32 v7, 2560, v6")
    loadk(0); issue(0); issue(1); loadk(1); issue(2); issue(3); loadk(2); loadk(3); loadk(4)
    a("v_lshrrev_b32 v10, 1, v3")
    a("v_and_b32 v11, 7, v2")
    a("v_xor_b32 v10, v10, v11")
    a("v_lshrrev_b32 v11, 3, v2")
    a("v_lshlrev_b32 v11, 13, v11")
    a("v_lshl_add_u32 v11, v4, 7, v11")
    a("s_and_b32 s44, s41, 1")
    a("s_lshl_b32 s44, s44, 2")
    for h in range(2):
        a(f"s_add_u32 s45, s44, {2*h}")
        a(f"v_xor_b32 v9, s45, v10")
        a(f"v_lshl_add_u32 v{12+h}, v9, 4, v11")
        if h:
            a(f"v_add_u32 v{12+h}, {8*128}, v{12+h}")
        a(f"v_add_u32 v{14+h}, 0x8000, v{12+h}")
    T = 176

    def apply(k):
        wait_for(("K", k))
        for rp in range(4):
            for qq in range(4):
                r = Nr(k, rp) + qq
                unpack(a, T, T + 1, r)
                a(f"v_mul_f32 v{T}, v{T}, v{C1(k)+2*qq}")
                a(f"v_mul_f32 v{T+1}, v{T+1}, v{C1(k)+2*qq+1}")
                a(f"v_cvt_pk_bf16_f32 v{T+2}, v{T}, v{T+1}")
                unpack(a, T, T + 1, T + 2)
                a(f"v_add_f32 v{T}, v{T}, v{SA(k)+2*qq}")
                a(f"v_add_f32 v{T+1}, v{T+1}, v{SA(k)+2*qq+1}")
                a(f"v_cvt_pk_bf16_f32 v{r}, v{T}, v{T+1}")
            r = Nr(k, rp)
            off = k * 16384 + (rp & 1) * 512
            areg = 12 + (rp >> 1)
            if off >= 32768:
                off -= 32768
                areg += 2
            a(f"ds_write_b128 v{areg}, v[{r}:{r+3}] offset:{off}")
    for s in range(nst):
        if s < 5:
            apply(s)
        wait_for(("S", s), " lgkmcnt(0)")
        a("s_barrier")
        if s >= 1 and s - 1 + NS < nst:
            issue(s - 1 + NS)
    a("s_endpgm")
    a.label(f"{L}_comp")
    a("s_and_b32 s42, s40, 1")
    a("s_lshr_b32 s43, s40, 1")
    a("v_lshrrev_b32 v4, 1, v2")
    a("v_xor_b32 v4, v4, v3")
    a("v_and_b32 v5, 12, v2")
    a("v_lshlrev_b32 v5, 1, v5")
    a("v_and_b32 v6, 3, v2")
    a("v_or_b32 v5, v5, v6")
    vSA, vVA = 8, 16
    a(f"s_mul_i32 s44, s42, {80*128}")
    a(f"s_add_u32 s44, s44, {SB}")
    a(f"s_lshl_b32 s45, s43, 12")
    for j in range(2):
        a(f"v_xor_b32 v6, {4*j}, v4")
        a("v_lshlrev_b32 v6, 4, v6")
        a("v_lshl_add_u32 v7, v2, 7, v6")
        a("v_add_u32 v7, s44, v7")
        for sl in range(NS):
            a(f"v_add_u32 v{vSA+sl*2+j}, {sl*slotsz}, v7")
        a("v_lshl_add_u32 v7, v5, 7, v6")
        a(f"v_add_u32 v{vVA+j}, s45, v7")
        a(f"v_add_u32 v{vVA+2+j}, 0xa000, v{vVA+j}")
    a("s_mul_i32 s44, s42, 80")
    a("v_add_u32 v20, s44, v2")
    a("v_lshlrev_b32 v20, 12, v20")
    a("v_lshl_add_u32 v20, v3, 4, v20")
    a("s_lshl_b32 s46, s43, 6")
    a("v_add_u32 v20, s46, v20")
    a("s_waitcnt lgkmcnt(0)")
    srd(a, 16, 48, 49, 160 * 4096, WS["abt"][0])
    a(f"s_mul_i32 s7, s5, {160*4096}")
    srd_add(a, 16, 7)
    a("s_lshl_b32 s7, s6, 7")
    srd_add(a, 16, 7)
    vF = 24
    nfr = 7
    vA = 80
    vR = 120

    def frag_reads(s, j, buf):
        for vb in range(2):
            r = vF + (buf * nfr + 5 + vb) * 4
            hi = s >= 5
            off = (s - 5 * hi) * 8192 + vb * 512
            a(f"ds_read_b128 v[{r}:{r+3}], v{vVA+2*hi+j} offset:{off}")
        for b in range(5):
            r = vF + (buf * nfr + b) * 4
            a(f"ds_read_b128 v[{r}:{r+3}], v{vSA+(s%NS)*2+j} offset:{b*2048}")

    def mfmas(buf, first):
        for b in range(5):
            for vb in range(2):
                ar = vA + (b * 2 + vb) * 4
                sf = vF + (buf * nfr + b) * 4
                vf = vF + (buf * nfr + 5 + vb) * 4
                c = "0" if first else f"v[{ar}:{ar+3}]"
                a(f"v_mfma_f32_16x16x32_bf16 v[{ar}:{ar+3}], v[{vf}:{vf+3}], v[{sf}:{sf+3}], {c}")

    a("s_barrier")
    frag_reads(0, 0, 0)
    step = 0
    for s in range(nst):
        for j in range(2):
            buf = step & 1
            if j == 0:
                frag_reads(s, 1, buf ^ 1)
                a(f"s_waitcnt lgkmcnt({nfr})")
            else:
                a("s_waitcnt lgkmcnt(0)")
                if s + 1 < nst:
                    a("s_barrier")
                    frag_reads(s + 1, 0, buf ^ 1)
            mfmas(buf, step == 0)
            step += 1
    a("s_nop 7")
    a("s_nop 7")
    for b in range(5):
        o = vR + b * 4
        for k in range(4):
            a(f"v_cvt_pk_bf16_f32 v{o+k}, v{vA+b*8+2*k}, v{vA+b*8+2*k+1}")
        a(f"s_mov_b32 s46, {b*16*4096}")
        a(f"buffer_store_dwordx4 v[{o}:{o+3}], v20, s[16:19], s46 offen")
    a.label(f"{L}_end")
    a("s_endpgm")
    return kernel_desc(L, 180, 64, 180), 163840


def load_ptrs(a, names):
    for k, nm in enumerate(names):
        a(f"s_load_dwordx2 s[{48+2*k}:{49+2*k}], s[0:1], {KA[nm]}")
    a("s_waitcnt lgkmcnt(0)")


def setup_A(a):
    load_ptrs(a, ["ws", "hid_re", "hid_im"])
    a("s_and_b32 s3, s2, 7")
    a("s_lshr_b32 s4, s2, 3")
    a("s_and_b32 s5, s3, 3")
    a("s_lshl_b32 s5, s5, 2")
    a("s_and_b32 s6, s4, 3")
    a("s_add_u32 s5, s5, s6")
    a("s_lshr_b32 s6, s3, 2")
    a("s_lshl_b32 s6, s6, 3")
    a("s_lshr_b32 s7, s4, 2")
    a("s_add_u32 s6, s6, s7")
    a("s_cmp_ge_u32 s5, 8")
    a("s_cselect_b32 s8, s52, s50")
    a("s_cselect_b32 s9, s53, s51")
    a(f"s_mov_b32 s10, {80*1280}")
    a("s_mov_b32 s11, 0x00020000")
    a("s_and_b32 s7, s5, 7")
    a(f"s_mul_i32 s7, s7, {80*1280}")
    srd_add(a, 8, 7)
    srd(a, 12, 48, 49, 128 * 1280, WS["h"][0])
    a(f"s_mul_i32 s7, s6, {128*1280}")
    srd_add(a, 12, 7)
    srd(a, 16, 48, 49, 80 * 4096, WS["abt"][0])
    a(f"s_mul_i32 s7, s5, {80*4096}")
    srd_add(a, 16, 7)
    a("s_lshl_b32 s7, s6, 8")
    srd_add(a, 16, 7)
    return 1280, 1280


def pre_A(a, vE):
    a(f"s_load_dwordx4 s[56:59], s[0:1], {KA['seq_re']}")
    a("s_and_b32 s36, s2, 127")
    a("s_lshl_b32 s36, s36, 16")
    a("s_lshl_b32 s37, s40, 14")
    a("s_add_u32 s36, s36, s37")
    a("v_lshlrev_b32 v4, 4, v1")
    a("v_add_u32 v4, s36, v4")
    a("s_waitcnt lgkmcnt(0)")
    a("s_cmp_ge_u32 s2, 128")
    a("s_cselect_b32 s60, s58, s56")
    a("s_cselect_b32 s61, s59, s57")
    a(f"s_mov_b32 s62, {2048*2048*2}")
    a("s_mov_b32 s63, 0x00020000")
    for i in range(16):
        a(f"s_mov_b32 s37, {(i//4)*4096}")
        a(f"buffer_load_dwordx4 v[{vE+4*(i&7)}:{vE+4*(i&7)+3}], v4, s[60:63], s37 offen offset:{(i%4)*1024}")
    return 16


def epi_A(a, vR, vF, vE, nsb):
    a("v_lshlrev_b32 v4, 12, v2")
    a("v_lshl_add_u32 v4, v3, 4, v4")
    a("s_lshl_b32 s46, s40, 6")
    a("v_add_u32 v4, s46, v4")
    for b in range(nsb):
        r = vR + b * 8
        o = vF + (b & 1) * 4
        for k in range(4):
            a(f"v_cvt_pk_bf16_f32 v{o+k}, v{r+2*k}, v{r+2*k+1}")
        a(f"s_mov_b32 s46, {b*16*4096}")
        a(f"buffer_store_dwordx4 v[{o}:{o+3}], v4, s[16:19], s46 offen")


def setup_B(a):
    load_ptrs(a, ["ws", "seq_re", "seq_im"])
    a("s_and_b32 s3, s2, 7")
    a("s_lshr_b32 s4, s2, 3")
    if XB:
        a("s_and_b32 s5, s4, 1")
        a("s_lshl_b32 s6, s3, 1")
        a("s_bfe_u32 s7, s4, 0x10001")
        a("s_add_u32 s6, s6, s7")
        a("s_lshr_b32 s7, s4, 2")
    else:
        a("s_and_b32 s5, s3, 1")
        a("s_lshr_b32 s6, s3, 1")
        a("s_lshl_b32 s6, s6, 2")
        a("s_and_b32 s7, s4, 3")
        a("s_add_u32 s6, s6, s7")
        a("s_lshr_b32 s7, s4, 2")
    srd(a, 8, 48, 49, 80 * 4096, WS["abt"][0])
    a(f"s_mul_i32 s20, s5, {640*4096}")
    a(f"s_mul_i32 s21, s7, {80*4096}")
    a("s_add_u32 s20, s20, s21")
    srd_add(a, 8, 20)
    a("s_cmp_eq_u32 s5, 1")
    a("s_cselect_b32 s12, s52, s50")
    a("s_cselect_b32 s13, s53, s51")
    a(f"s_mov_b32 s14, {128*4096}")
    a("s_mov_b32 s15, 0x00020000")
    a(f"s_mul_i32 s20, s6, {128*4096}")
    srd_add(a, 12, 20)
    srd(a, 16, 48, 49, 128 * 1280, WS["y"][0])
    a(f"s_mul_i32 s20, s5, {2048*1280}")
    a(f"s_mul_i32 s21, s6, {128*1280}")
    a("s_add_u32 s20, s20, s21")
    a("s_mul_i32 s21, s7, 160")
    a("s_add_u32 s20, s20, s21")
    srd_add(a, 16, 20)
    return 4096, 4096


PFD = 13
XB = int(__import__('os').environ.get('XB', '0'))
XA = int(__import__('os').environ.get('XA', '0'))
XL = int(__import__('os').environ.get('XL', '1'))
RAMP1 = 1
STAMP = int(__import__('os').environ.get('STAMP', '0'))
STAMPK = [0]
TLBWARM = int(__import__('os').environ.get('TLBW', '0'))


PFMODE = int(__import__("os").environ.get("PFMODE", "3"))


def pre_B(a, vE):
    a("s_lshl_b32 s58, s7, 4")
    a("s_lshl_b32 s59, s40, 2")
    a("s_add_u32 s58, s58, s59")
    a("v_add_u32 v7, s58, v3")
    a("v_lshlrev_b32 v7, 12, v7")
    a("v_lshl_add_u32 v7, v2, 4, v7")
    if PFMODE == 1:
        for i in range(3, 16):
            a(f"buffer_load_dwordx4 v[{vE+4*(i&7)}:{vE+4*(i&7)+3}], v7, s[12:15], 0 offen offset:{i*256}")
    return 16


def stage_hook_B(a, s, vE):
    if PFMODE == 2 and s == 0:
        for i in range(3, 16):
            a(f"buffer_load_dwordx4 v[{vE+4*(i&7)}:{vE+4*(i&7)+3}], v7, s[12:15], 0 offen offset:{i*256}")
    if PFMODE == 3 and s < 4:
        for i in range(4 + 3 * s, min(16, 7 + 3 * s)):
            a(f"buffer_load_dwordx4 v[{vE+4*(i&7)}:{vE+4*(i&7)+3}], v7, s[12:15], 0 offen offset:{i*256}")


def make_epi_S(ldo, relu=False, resid=False):
    def epi(a, vR, vF, vE, nsb):
        a("s_lshl_b32 s46, s42, 5")
        a("v_add_u32 v4, s46, v2")
        a(f"s_movk_i32 s46, {ldo}")
        a("v_mul_lo_u32 v4, v4, s46")
        a("v_lshl_add_u32 v5, v3, 3, v4")
        a("v_lshl_add_u32 v4, v3, 4, v4")
        a(f"s_mov_b32 s47, {16*ldo}")
        if resid:
            pass
        cnt = 0
        for vb in range(2):
            so = "s47" if vb else "0"
            for p in range((nsb + 1) // 2):
                full = 2 * p + 1 < nsb
                nreg = 4 if full else 2
                o = vF + (cnt & 3) * 4
                cnt += 1
                xr = vE + 12 + vb * 10 + p * 4
                for k in range(nreg):
                    b = 2 * p + (k >> 1)
                    r = vR + (b * 2 + vb) * 4 + (k & 1) * 2
                    if relu:
                        a(f"v_max_f32 v{r}, 0, v{r}")
                        a(f"v_max_f32 v{r+1}, 0, v{r+1}")
                    a(f"v_cvt_pk_bf16_f32 v{o+k}, v{r}, v{r+1}")
                if resid:
                    t = vF + 24
                    for k in range(nreg):
                        unpack(a, t, t + 1, o + k)
                        unpack(a, t + 2, t + 3, vE + p * 4 + k)
                        a(f"v_mul_f32 v{t}, v{t}, v{t+2}")
                        a(f"v_mul_f32 v{t+1}, v{t+1}, v{t+3}")
                        a(f"v_cvt_pk_bf16_f32 v{t+4}, v{t}, v{t+1}")
                        unpack(a, t, t + 1, t + 4)
                        unpack(a, t + 2, t + 3, xr + k)
                        a(f"v_add_f32 v{t}, v{t}, v{t+2}")
                        a(f"v_add_f32 v{t+1}, v{t+1}, v{t+3}")
                        a(f"v_cvt_pk_bf16_f32 v{o+k}, v{t}, v{t+1}")
                a(f"buffer_store_dwordx{nreg} v[{o}:{o+nreg-1}], v{4 if full else 5}, s[16:19], {so} offen offset:{p*64}")
    return epi


def epi_D(a, vR, vF, vE, nsb):
    t = vF + 24
    for p in range(3):
        full = p < 2
        nreg = 4 if full else 2
        o = vF + p * 4
        for k in range(nreg):
            b = 2 * p + (k >> 1)
            r = vR + b * 4 + (k & 1) * 2
            a(f"v_cvt_pk_bf16_f32 v{o+k}, v{r}, v{r+1}")
            unpack(a, t, t + 1, o + k)
            unpack(a, t + 2, t + 3, vE + p * 4 + k)
            a(f"v_mul_f32 v{t}, v{t}, v{t+2}")
            a(f"v_mul_f32 v{t+1}, v{t+1}, v{t+3}")
            a(f"v_cvt_pk_bf16_f32 v{t+4}, v{t}, v{t+1}")
            unpack(a, t, t + 1, t + 4)
            unpack(a, t + 2, t + 3, vE + 12 + p * 4 + k)
            a(f"v_add_f32 v{t}, v{t}, v{t+2}")
            a(f"v_add_f32 v{t+1}, v{t+1}, v{t+3}")
            a(f"v_cvt_pk_bf16_f32 v{o+k}, v{t}, v{t+1}")
        a(f"buffer_store_dwordx{nreg} v[{o}:{o+nreg-1}], v{vE+24 if full else vE+25}, s[16:19], 0 offen offset:{p*64}")


def setup_C(a):
    load_ptrs(a, ["ws"])
    a("s_and_b32 s3, s2, 7")
    a("s_lshr_b32 s4, s2, 3")
    if XL:
        a("s_lshr_b32 s5, s4, 1")
        a("s_lshl_b32 s6, s3, 1")
        a("s_and_b32 s7, s4, 1")
        a("s_add_u32 s6, s6, s7")
    else:
        a("s_and_b32 s5, s3, 3")
        a("s_lshl_b32 s5, s5, 2")
        a("s_and_b32 s6, s4, 3")
        a("s_add_u32 s5, s5, s6")
        a("s_lshr_b32 s6, s3, 2")
        a("s_lshl_b32 s6, s6, 3")
        a("s_lshr_b32 s7, s4, 2")
        a("s_add_u32 s6, s6, s7")
    srd(a, 8, 48, 49, 96 * 1280, WS["w1t"][0])
    a(f"s_mul_i32 s20, s5, {96*1280}")
    srd_add(a, 8, 20)
    srd(a, 12, 48, 49, 128 * 1280, WS["h2"][0])
    a(f"s_mul_i32 s20, s6, {128*1280}")
    srd_add(a, 12, 20)
    srd(a, 16, 48, 49, 128 * 3072, WS["h1"][0])
    a(f"s_mul_i32 s20, s6, {128*3072}")
    a("s_mul_i32 s21, s5, 192")
    a("s_add_u32 s20, s20, s21")
    srd_add(a, 16, 20)
    return 1280, 1280


def setup_D(a):
    load_ptrs(a, ["ws", "out"])
    a("s_and_b32 s3, s2, 7")
    a("s_lshr_b32 s4, s2, 3")
    if XL:
        a("s_lshr_b32 s5, s4, 2")
        a("s_lshl_b32 s6, s3, 2")
        a("s_and_b32 s7, s4, 3")
        a("s_add_u32 s6, s6, s7")
    else:
        a("s_and_b32 s5, s3, 1")
        a("s_lshl_b32 s5, s5, 2")
        a("s_and_b32 s6, s4, 3")
        a("s_add_u32 s5, s5, s6")
        a("s_lshr_b32 s6, s3, 1")
        a("s_lshl_b32 s6, s6, 3")
        a("s_lshr_b32 s7, s4, 2")
        a("s_add_u32 s6, s6, s7")
    srd(a, 8, 48, 49, 80 * 3072, WS["w2t"][0])
    a(f"s_mul_i32 s20, s5, {80*3072}")
    srd_add(a, 8, 20)
    srd(a, 12, 48, 49, 64 * 3072, WS["h1"][0])
    a(f"s_mul_i32 s20, s6, {64*3072}")
    srd_add(a, 12, 20)
    a(f"s_mul_i32 s28, s6, {64*1280}")
    a("s_mul_i32 s29, s5, 160")
    a("s_add_u32 s30, s28, s29")
    srd(a, 16, 50, 51, 64 * 1280 - 0)
    srd_add(a, 16, 30)
    srd(a, 20, 48, 49, 64 * 1280, WS["x1"][0])
    srd_add(a, 20, 30)
    srd(a, 24, 48, 49, 160, WS["mod"][0] + 5 * 1280)
    srd_add(a, 24, 29)
    return 3072, 3072


def pre_epi_D(a, vE):
    a("v_lshlrev_b32 v4, 4, v3")
    a("v_lshlrev_b32 v5, 3, v3")
    a(f"buffer_load_dwordx4 v[{vE}:{vE+3}], v4, s[24:27], 0 offen")
    a(f"buffer_load_dwordx4 v[{vE+4}:{vE+7}], v4, s[24:27], 0 offen offset:64")
    a(f"buffer_load_dwordx2 v[{vE+8}:{vE+9}], v5, s[24:27], 0 offen offset:128")
    a("s_lshl_b32 s46, s42, 5")
    a("s_lshl_b32 s47, s43, 4")
    a("s_add_u32 s46, s46, s47")
    a("v_add_u32 v4, s46, v2")
    a("s_movk_i32 s46, 1280")
    a("v_mul_lo_u32 v4, v4, s46")
    a(f"v_lshl_add_u32 v{vE+25}, v3, 3, v4")
    a(f"v_lshl_add_u32 v{vE+24}, v3, 4, v4")
    r = vE + 12
    a(f"buffer_load_dwordx4 v[{r}:{r+3}], v{vE+24}, s[20:23], 0 offen")
    a(f"buffer_load_dwordx4 v[{r+4}:{r+7}], v{vE+24}, s[20:23], 0 offen offset:64")
    a(f"buffer_load_dwordx2 v[{r+8}:{r+9}], v{vE+25}, s[20:23], 0 offen offset:128")
    return 9


def main():
    a = Asm()
    descs = []
    launches = []
    FUSE = int(__import__("os").environ.get("FUSE", "0"))
    if not FUSE:
        descs.append(prep_kernel(a)); launches.append(("prep_kernel", PREP_WGS, 256, 10240))
    d, lds = fa_kernel(a) if FUSE else (gemma3_kernel(a) if int(__import__('os').environ.get('A3', '0')) else gemma2_kernel(a))
    descs.append(d); launches.append(("gemma_kernel", 256, 512, lds))
    d, lds = gemm_kernel(a, "gemmb_kernel", 2048, 80, 128, 128, True, 1, 3, setup_B, make_epi_S(1280), pre_epi=pre_B, stage_hook=stage_hook_B, nextcode=("ln2_kernel", "code_end_label"))
    descs.append(d); launches.append(("gemmb_kernel", 256, 512, lds))
    descs.append(ln_kernel(a, True)); launches.append(("ln2_kernel", LN2_WGS, 256, 10240))
    d, lds = gemm_kernel(a, "gemmc_kernel", 640, 96, 128, 64, True, 1, 5, setup_C, make_epi_S(3072, relu=True), nextcode=("gemmd_kernel", "code_end_label"))
    descs.append(d); launches.append(("gemmc_kernel", 256, 512, lds))
    d, lds = gemm_kernel(a, "gemmd_kernel", 1536, 80, 64, 128, True, 2, 4, setup_D, epi_D,
                         pre_epi=pre_epi_D)
    descs.append(d); launches.append(("gemmd_kernel", 256, 512, lds))

    hdr = open(f"cdna_kernels/{NAME}.s.ref").read().split("\n")
    out = []
    for ln in hdr:
        if ln.startswith(";") and "@launch" not in ln and "Override" not in ln and "grid=ceil" not in ln:
            out.append(ln)
        elif not ln.startswith(";"):
            break
    for k, g, b, lds in launches:
        out.append(f"; @launch kernel={k} grid=({g},1,1) block=({b},1,1) lds={lds}")
    out.append('.amdgcn_target "amdgcn-amd-amdhsa--gfx950"')
    out.append(".text")
    a.raw(".p2align 4")
    a.label("code_end_label")
    txt = "\n".join(out) + "\n" + a.text()
    txt += '.section .rodata,"a"\n'
    for d in descs:
        txt += ".p2align 6\n" + d
    path = sys.argv[1] if len(sys.argv) > 1 else f"cdna_kernels/{NAME}.s"
    open(path, "w").write(txt)
    print("wrote", path, len(txt), "bytes")


if __name__ == "__main__":
    main()
```
